```python
import torch

def _softmax(x, axis=-1):
    return torch.softmax(x, dim=axis)

def _gelu(x):
    return torch.nn.functional.gelu(x, approximate='tanh')

def _silu(x):
    return torch.nn.functional.silu(x)

def _sigmoid(x):
    return torch.sigmoid(x)

def _layernorm(x, axis=-1, eps=1e-05):
    m = x.mean(dim=axis, keepdim=True)
    v = x.var(dim=axis, keepdim=True, unbiased=False)
    return (x - m) / torch.sqrt(v + eps)

def _scatter_add(tgt, idx, src, axis=0):
    return tgt.clone().index_add_(axis, idx, src)

def _segment_sum(src, seg, n):
    out = torch.zeros((n,) + src.shape[1:], dtype=src.dtype)
    return out.index_add_(0, seg, src)

def _pad(x, pw):
    flat = tuple((v for pair in reversed(pw) for v in pair))
    return torch.nn.functional.pad(x, flat)
kernel_name = 'gated_mix__memory_aug_recurrent_mem_tr__moe_arch_mod__prompt'

def setup_inputs():

    _w = lambda a: (lambda t: t.to(torch.bfloat16) if t.is_floating_point() else t)(torch.as_tensor(a))

    def _A_setup():
        B, S, Dm = (1, 2048, 512)
        H, Dh = (32, 128)
        M, seg = (8, 32)
        seg = min(seg, S)
        S = S // seg * seg
        return {'x': _w((lambda *s: torch.randn(*s, dtype=torch.bfloat16) * 0.05)(B, S, Dm)), 'mem0': _w((lambda *s: torch.randn(*s, dtype=torch.bfloat16) * 0.8)(B, M, Dm)), 'Wq': _w((lambda *s: torch.randn(*s, dtype=torch.bfloat16) * 3.2)(Dm, H, Dh) * Dm ** (-0.5)), 'Wk': _w((lambda *s: torch.randn(*s, dtype=torch.bfloat16) * 3.2)(Dm, H, Dh) * Dm ** (-0.5)), 'Wv': _w((lambda *s: torch.randn(*s, dtype=torch.bfloat16) * 0.8)(Dm, H, Dh) * Dm ** (-0.5)), 'Wo': _w((lambda *s: torch.randn(*s, dtype=torch.bfloat16) * 0.8)(H, Dh, Dm) * (H * Dh) ** (-0.5)), 'seg_len': seg}
    _A_in = _A_setup()

    def _B_setup():
        B, S, D, F, C = (1, 2048, 512, 1792, 8)
        return {'x': _w((lambda *s: torch.randn(*s, dtype=torch.bfloat16) * 0.05)(B, S, D)), 'w_r': _w((lambda *s: torch.randn(*s, dtype=torch.bfloat16) * 1.6)(D)), 'w_gate': _w((lambda *s: torch.randn(*s, dtype=torch.bfloat16) * 0.2)(D, F)), 'w_up': _w((lambda *s: torch.randn(*s, dtype=torch.bfloat16) * 0.2)(D, F)), 'w_down': _w((lambda *s: torch.randn(*s, dtype=torch.bfloat16) * 0.2)(F, D))}
    _B_in = _B_setup()
    return {'A_x': _A_in['x'], 'A_mem0': _A_in['mem0'], 'A_Wq': _A_in['Wq'], 'A_Wk': _A_in['Wk'], 'A_Wv': _A_in['Wv'], 'A_Wo': _A_in['Wo'], 'A_seg_len': _A_in['seg_len'], 'B_x': _B_in['x'], 'B_w_r': _B_in['w_r'], 'B_w_gate': _B_in['w_gate'], 'B_w_up': _B_in['w_up'], 'B_w_down': _B_in['w_down'], 'gate_w': _w((lambda *s: torch.randn(*s, dtype=torch.bfloat16) * 0.05)(512) * 16.0)}

def reference(A_x, A_mem0, A_Wq, A_Wk, A_Wv, A_Wo, A_seg_len, B_x, B_w_r, B_w_gate, B_w_up, B_w_down, gate_w):

    def _A_ref(x, mem0, Wq, Wk, Wv, Wo, seg_len):
        B, S, Dm = x.shape
        H, Dh = (Wq.shape[1], Wq.shape[2])
        M = mem0.shape[1]
        scale = Dh ** (-0.5)
        n_seg = S // seg_len
        L = M + seg_len
        idx = torch.arange(L)
        mask = (idx[:, None] < M) | (idx[:, None] >= idx[None, :])
        mem = mem0
        outs = []
        for s in range(n_seg):
            xs = x[:, s * seg_len:(s + 1) * seg_len, :].clone()
            h = torch.concatenate([mem, xs], axis=1)
            q = torch.einsum('btd,dhe->bhte', h, Wq)
            k = torch.einsum('btd,dhe->bhte', h, Wk)
            v = torch.einsum('btd,dhe->bhte', h, Wv)
            scores = torch.einsum('bhqe,bhke->bhqk', q, k) * scale
            scores = torch.where(mask[None, None], scores, -1000000000.0)
            p = _softmax(scores, axis=-1)
            o = torch.einsum('bhqk,bhke->bhqe', p, v)
            o = torch.einsum('bhte,hed->btd', o, Wo)
            mem = o[:, :M, :].clone()
            outs.append(o[:, M:, :])
        return torch.concatenate(outs, axis=1)

    def _B_ref(x, w_r, w_gate, w_up, w_down):
        B, S, D = x.shape
        C = 8
        r = x @ w_r
        idx = torch.argsort(-r, axis=-1)[:, :C]
        idx_e = (lambda x, n, axis: torch.repeat_interleave(x, n, dim=axis))(idx.reshape(B, C, 1), D, axis=2)
        x_sel = (lambda x, i, axis: torch.take_along_dim(x, i, dim=axis))(x, idx_e, axis=1)
        g = _silu(x_sel @ w_gate)
        u = x_sel @ w_up
        y = g * u @ w_down
        r_sel = _sigmoid((lambda x, i, axis: torch.take_along_dim(x, i, dim=axis))(r, idx, axis=1))
        y = y * r_sel.reshape(B, C, 1)
        b_off = (torch.arange(B) * S).reshape(B, 1)
        flat_idx = (idx + b_off).reshape(B * C)
        zero = (x * 0.0).reshape(B * S, D)
        upd = _scatter_add(zero, flat_idx, y.reshape(B * C, D), axis=0)
        return x + upd.reshape(B, S, D)
    x = A_x
    g = _sigmoid((x * gate_w).sum(-1, keepdims=True))
    a = _A_ref(x, A_mem0, A_Wq, A_Wk, A_Wv, A_Wo, A_seg_len)
    b = _B_ref(x, B_w_r, B_w_gate, B_w_up, B_w_down)
    return g * a + (1 - g) * b
```

```python
import re

_REG = re.compile(r"(?<![\w.])([vas])\[(\d+):(\d+)\]|(?<![\w.])([vas])(\d+)(?![\w\[])|\b(vcc|exec|m0)\b")


def regs_of(op):
    out = []
    for m in _REG.finditer(op):
        if m.group(1):
            out += [(m.group(1), i) for i in range(int(m.group(2)), int(m.group(3)) + 1)]
        elif m.group(4):
            out.append((m.group(4), int(m.group(5))))
        else:
            out.append((m.group(6), 0))
    return out


def split_ops(rest):
    ops, cur, depth = [], "", 0
    for ch in rest:
        if ch == "[":
            depth += 1
        if ch == "]":
            depth -= 1
        if ch == "," and depth == 0:
            ops.append(cur.strip())
            cur = ""
        else:
            cur += ch
    if cur.strip():
        ops.append(cur.strip())
    return ops


TRANS = ("v_exp_", "v_log_", "v_rcp_", "v_rsq_", "v_sqrt_", "v_sin_", "v_cos_")


class Ins:
    __slots__ = ("text", "op", "ops", "kind", "wr", "rd", "passes", "srcC", "srcAB", "weight", "dpp",
                 "stdata", "is_trans", "is_dot", "vreadlane", "perm", "lds_dma", "dst_tuple", "c_tuple")

    def __init__(self, text):
        self.text = text
        t = text.split(";")[0].strip()
        parts = t.split(None, 1)
        self.op = op = parts[0]
        rest = parts[1] if len(parts) > 1 else ""
        ops = split_ops(rest)
        self.ops = ops
        self.wr, self.rd = [], []
        self.passes = 0
        self.srcC, self.srcAB, self.stdata = [], [], []
        self.weight = 1
        self.dpp = ("_dpp" in op) or ("row_" in rest) or ("quad_perm" in rest) or ("wave_" in rest)
        self.is_trans = op.startswith(TRANS)
        self.is_dot = op.startswith("v_dot")
        self.vreadlane = op.startswith(("v_readlane", "v_readfirstlane"))
        self.perm = op.startswith("v_permlane")
        self.lds_dma = False
        self.dst_tuple = self.c_tuple = None
        R = [regs_of(o) for o in ops]
        if op == "s_nop":
            self.kind = "nop"
            self.weight = int(ops[0], 0) + 1
        elif op.startswith(("v_mfma", "v_smfmac")):
            self.kind = "mfma"
            self.passes = 8 if "32x32" in op else 4
            self.wr = R[0]
            self.dst_tuple = tuple(R[0])
            if op.startswith("v_smfmac"):
                self.srcC = R[0]
                self.c_tuple = tuple(R[0])
                self.srcAB = R[1] + R[2] + R[3]
            else:
                self.srcC = R[3]
                self.c_tuple = tuple(R[3])
                self.srcAB = R[1] + R[2]
            self.rd = self.srcC + self.srcAB
        elif op.startswith("v_"):
            self.kind = "valu"
            if op.startswith("v_cmp"):
                self.wr = R[0]
                self.rd = sum(R[1:], [])
                if op.startswith("v_cmpx"):
                    raise ValueError("v_cmpx not supported by hazard pass")
            elif self.perm:
                self.wr = R[0] + R[1]
                self.rd = R[0] + R[1]
            elif "_co_" in op:
                self.wr = R[0] + R[1]
                self.rd = sum(R[2:], [])
            elif op.startswith(("v_fmac", "v_dot2c", "v_pk_fmac", "v_writelane")):
                self.wr = R[0]
                self.rd = sum(R, [])
            elif op == "v_nop":
                pass
            else:
                self.wr = R[0]
                self.rd = sum(R[1:], [])
                if self.dpp:
                    self.rd = self.rd + R[0]
        elif op.startswith(("global_", "buffer_", "flat_", "scratch_")):
            self.kind = "vmem"
            allr = sum(R, [])
            if "_lds_" in op or (op.startswith("buffer_load") and re.search(r"\blds\b", rest)):
                self.lds_dma = True
                self.rd = allr + [("m0", 0)]
            elif "_load" in op:
                self.wr = R[0]
                self.rd = sum(R[1:], [])
            elif "_store" in op:
                self.rd = allr
                data = R[1] if op.startswith(("global_", "flat_", "scratch_")) else R[0]
                if len(data) >= 3:
                    self.stdata = data
            elif "_atomic" in op:
                if re.search(r"\bsc0\b", rest):
                    self.wr = R[0]
                    self.rd = sum(R[1:], []) if op.startswith("global_") else allr
                else:
                    self.rd = allr
            else:
                self.rd = allr
        elif op.startswith("ds_"):
            self.kind = "ds"
            if op.startswith(("ds_read", "ds_bpermute", "ds_permute", "ds_swizzle")) or "_rtn" in op:
                self.wr = R[0]
                self.rd = sum(R[1:], [])
            else:
                self.rd = sum(R, [])
        elif op.startswith("s_"):
            self.kind = "salu"
            if op.startswith(("s_cmp", "s_waitcnt", "s_branch", "s_cbranch", "s_barrier", "s_endpgm", "s_setprio",
                              "s_sleep", "s_bitcmp")):
                self.rd = sum(R, [])
            else:
                self.wr = R[0] if R else []
                self.rd = sum(R[1:], [])
        else:
            raise ValueError("unknown instruction: " + text)


def need(p, c):
    n = 0
    pw = set(p.wr)
    crd, cwr = set(c.rd), set(c.wr)
    isvec = lambda s: {r for r in s if r[0] in "va"}
    issc = lambda s: {r for r in s if r[0] in ("s", "vcc")}
    if p.kind == "valu":
        hit = isvec(pw) & crd
        if hit:
            if c.kind == "mfma":
                n = max(n, 2)
            if c.kind == "valu":
                if c.perm or c.dpp:
                    n = max(n, 2)
                if c.vreadlane:
                    n = max(n, 1)
                if p.is_trans and not c.is_trans:
                    n = max(n, 1)
        if p.is_dot and (isvec(pw) & (crd | cwr)):
            if c.op == p.op:
                ab = set(regs_of(c.ops[1]) + regs_of(c.ops[2]))
                if isvec(pw) & ab:
                    n = max(n, 3)
            else:
                n = max(n, 3)
        sh = issc(pw) & crd
        if sh:
            if c.kind == "valu":
                n = max(n, 4 if c.op.startswith(("v_readlane", "v_writelane")) else 2)
            if c.kind == "vmem":
                n = max(n, 5)
            if c.kind == "salu":
                n = max(n, 1)
    if p.kind == "mfma":
        ps = p.passes
        if c.kind == "mfma":
            if pw & set(c.srcAB):
                n = max(n, ps + 4)
            if pw & set(c.srcC):
                if not (c.c_tuple == p.dst_tuple and c.passes == ps):
                    n = max(n, ps + 2)
            elif pw & cwr:
                n = max(n, ps + 2)
        elif c.kind in ("valu", "vmem", "ds"):
            if pw & (crd | cwr):
                n = max(n, ps + 4)
        if c.kind == "valu" and (set(p.srcC) & cwr):
            n = max(n, ps - 1)
    if p.kind == "vmem" and p.stdata:
        if set(p.stdata) & cwr:
            n = max(n, 2 if c.kind == "valu" else 1)
    if p.kind == "salu" and ("m0", 0) in pw and c.lds_dma:
        n = max(n, 1)
    return n


def is_ins(line):
    t = line.split(";")[0].strip()
    return bool(t) and not t.endswith(":") and not t.startswith(".")


def fix_hazards(lines, check_only=False):
    out = []
    hist = []
    added = 0
    for line in lines:
        if not is_ins(line):
            out.append(line)
            continue
        c = Ins(line)
        dist = 0
        req = 0
        for p in reversed(hist):
            if dist >= 20:
                break
            r = need(p, c) - dist
            if r > req:
                req = r
            dist += p.weight
        if req > 0:
            if check_only:
                raise AssertionError("hazard: need %d before: %s" % (req, line))
            k = req
            while k > 0:
                m = min(k, 16)
                nop = "  s_nop %d" % (m - 1)
                out.append(nop + "    ; hz")
                hist.append(Ins(nop))
                k -= m
            added += req
        out.append(line)
        hist.append(c)
        if c.op in ("s_branch", "s_endpgm"):
            hist = []
        if len(hist) > 40:
            hist = hist[-30:]
    return out


def check_branches(lines):
    idx = {}
    for i, l in enumerate(lines):
        t = l.split(";")[0].strip()
        if t.endswith(":"):
            idx[t[:-1]] = i
    for i, l in enumerate(lines):
        if not is_ins(l):
            continue
        t = l.split(";")[0].split()
        if t[0].startswith(("s_branch", "s_cbranch")):
            tgt = idx[t[1]]
            tail = [x for x in lines[max(0, i - 24):i + 1] if is_ins(x)]
            for j in range(len(tail) - 2, -1, -1):
                if tail[j].split()[0] in ("s_branch", "s_endpgm"):
                    tail = tail[j + 1:]
                    break
            tail = [("  s_nop 0" if x.split()[0] == "s_branch" else x) for x in tail]
            head = []
            for x in lines[tgt:tgt + 40]:
                if is_ins(x):
                    head.append(x)
                    if x.split()[0] in ("s_branch", "s_endpgm"):
                        break
            try:
                fix_hazards(tail + head, check_only=True)
            except AssertionError as e:
                raise AssertionError("on branch path %s -> %s: %s" % (l.strip(), t[1], e))


class Asm:
    def __init__(self):
        self.lines = []
        self._uid = 0

    def __call__(self, s):
        for l in s.split("\n"):
            l = l.rstrip()
            if l.strip():
                self.lines.append("  " + l.strip() if not l.strip().endswith(":") else l.strip())

    def label(self, name):
        self.lines.append(name + ":")

    def uid(self, p="L"):
        self._uid += 1
        return "%s_%d" % (p, self._uid)

    def comment(self, s):
        self.lines.append("  ; " + s)

    def text(self):
        l = fix_hazards(self.lines)
        check_branches(l)
        return "\n".join(l) + "\n"


def v(i, n=1):
    return "v%d" % i if n == 1 else "v[%d:%d]" % (i, i + n - 1)


def a(i, n=1):
    return "a%d" % i if n == 1 else "a[%d:%d]" % (i, i + n - 1)


def s(i, n=1):
    return "s%d" % i if n == 1 else "s[%d:%d]" % (i, i + n - 1)


def interleave(main, fill, per_gap=2, start=0):
    out = []
    fi = 0
    for k, m in enumerate(main):
        out.append(m)
        if k >= start:
            for _ in range(per_gap):
                if fi < len(fill):
                    out.append(fill[fi])
                    fi += 1
    out += fill[fi:]
    return out
```

```python
from asmlib import *
from layout import *
from gen_rec import add64, f32bits, dec, spin_guard, S_WQ, S_WK, S_WV, S_WS, S_DBG, S_H, S_W, S_SPIN, S_T0, S_T1, S_T2, S_T3, S_SRC, S_TB, LT
import math
import gen_rec
S_X = 4
S_TBK = 22
S_IT = 23
S_C = 24
S_SEG = 25
S_O = 28
ACC = 64
XF = 0
WF = 128
NRING = 8

def gen_p1(A, TB, n_init):
    A.comment("=== phase 1 role ===")
    A.label("L_p1")
    def f_xo(tid):
        w, l = tid >> 6, tid & 63
        return (32 * w + (l & 31)) * 1024 + (l >> 5) * 16
    def f_dma(tid):
        w, l, n, g = dec(tid)
        return (16 * w + g) * 8192 + ((n ^ (g << 2)) * 16)
    def f_tr(ft):
        def f(tid):
            w, l, n, G = dec(tid); r, c = n >> 2, n & 3
            return (8 * (G >> 1) + r) * 256 + ((ft ^ r) * 64) + (G & 1) * 32 + 8 * c
        return f
    def f_ko(tid):
        l = tid & 63; tok, hi = l & 31, l >> 5
        return (tid >> 6) * 32 * 8192 + (tok >> 4) * 4096 + (hi * 16 + (tok & 15)) * 16
    def f_vo(tid):
        l = tid & 63; e, hi = l & 31, l >> 5
        return (tid >> 6) * 32 * 8192 + (e >> 4) * 1024 + (hi * 16 + (e & 15)) * 16
    g0 = TB.add([f_xo, f_dma, f_ko, f_vo])
    g1 = TB.add([f_tr(0), f_tr(1), f_tr(2), f_tr(3)])
    g2 = TB.add([lambda t: (t >> 6) * 32 * 8192 + (t & 63) * 16, lambda t: (t & 31) - 4 * ((t >> 5) & 1),
                 lambda t: (t >> 6) * 32 * 128 + (t & 31) * 4, lambda t: 0])
    V_XO, V_DMA, V_KO, V_VO, V_TR, V_LIN, V_THR, V_STO, V_Z = 4, 5, 6, 7, 8, 12, 13, 14, 15
    V_TRB = 16
    A(f"""v_lshrrev_b32 v1, 6, v0
    v_lshlrev_b32 v2, 4, v0
    s_nop 0
    v_readfirstlane_b32 {s(S_W)}, v1""")
    TB.base(A, S_TB)
    for g, r in [(g0, 4), (g1, 8), (g2, 12)]: TB.load(A, g, r, 2, S_TB, S_SRC)
    A(f"s_mov_b32 {s(S_C)}, {f32bits(128**-0.5 * math.log2(math.e)):#x}")
    A(f"s_mov_b32 {s(S_IT)}, 0")
    A(f"s_lshl_b32 {s(S_T0)}, {s(S_H)}, 8")
    for b in (S_WQ, S_WK, S_WV): add64(A, b, b, s(S_T0))
    A("s_waitcnt vmcnt(0)")
    A.label("L_p1_task")
    S_XB = 38
    A(f"s_lshl_b32 {s(S_T0)}, {s(S_TBK)}, 17")
    add64(A, S_XB, S_X, s(S_T0))
    def dma(c):
        buf = c % 3
        L = []
        L.append("\n".join(f"global_load_dwordx4 {a(XF+4*ks,4)}, {v(V_XO)}, {s(S_XB,2)} offset:{32*ks}" for ks in range(4*c, 4*c+4)) + f"\ns_lshl_b32 {s(S_T2)}, {s(S_W)}, 12")
        L.append(f"s_add_u32 {s(S_T2)}, {s(S_T2)}, {buf*49152}")
        for m, b in enumerate((S_WQ, S_WK, S_WV)):
            for i in range(4):
                L.append(f"s_add_u32 {s(S_SRC)}, {s(b)}, {(64*c+4*i)*8192}")
                L.append(f"s_addc_u32 {s(S_SRC+1)}, {s(b+1)}, 0")
                L.append(f"s_add_u32 m0, {s(S_T2)}, {m*16384+i*1024}")
                L.append(f"s_nop 0\nglobal_load_lds_dwordx4 {v(V_DMA)}, {s(S_SRC,2)}" if "nodma" not in gen_rec.EXP else "s_nop 0")
        return L
    for c in range(2):
        for x in dma(c): A(x)
    A(f"""s_lshl_b32 {s(S_T0)}, {s(S_TBK)}, 7
    s_add_u32 {s(S_T0)}, {s(S_T0)}, {s(S_H)}
    s_lshl_b32 {s(S_T1)}, {s(S_T0)}, 13""")
    add64(A, S_O, S_WS, s(S_T1))
    add64(A, S_O + 2, S_O, WS_VX + 4096)
    add64(A, S_O + 4, S_O, WS_Q + 4096)
    add64(A, S_O + 6, S_O, WS_OX + 4096)
    A(f"s_lshl_b32 {s(S_T1)}, {s(S_T0)}, 7")
    A(f"s_add_u32 {s(S_T1)}, {s(S_T1)}, {WS_ST}")
    add64(A, S_O + 8, S_WS, s(S_T1))
    acc = lambda t: v(ACC + 16 * t, 16)
    for c in range(8):
        buf = c % 3
        for ft in range(4): A(f"v_add_u32 v{V_TRB+ft}, {buf*49152}, v{V_TR+ft}")
        A("s_waitcnt vmcnt(16)" if c < 7 else "s_waitcnt vmcnt(0)")
        A("s_barrier")
        lt = LT(A)
        seq = [(kk, t) for kk in range(4) for t in range(12)]
        def rd(i):
            kk, t = seq[i]; m, ft = t >> 2, t & 3
            r = WF + 4 * (i % NRING)
            for qd in range(2 if "nord" not in gen_rec.EXP else 0):
                A(lt.op(f"r{i}", f"ds_read_b64_tr_b16 {a(r+2*qd,2)}, v{V_TRB+ft} offset:{m*16384+(16*kk+4*qd)*256}"))
        PRE = NRING - 2
        for i in range(PRE): rd(i)
        dm = dma(c + 2) if c + 2 < 8 else []
        units = [dm[:6]] + [dm[2 + 4 * k: 6 + 4 * k] for k in range(1, 12)] if dm else []
        for i, (kk, t) in enumerate(seq):
            if i + PRE < len(seq): rd(i + PRE)
            w_ = lt.wait(f"r{i}") if "nord" not in gen_rec.EXP else None
            if w_: A(w_)
            ks = 4 * c + kk
            wf, xf = a(WF + 4 * (i % NRING), 4), a(XF + 4 * ks, 4)
            cin = "0" if ks == 0 else acc(t)
            if "nomf" in gen_rec.EXP and ks > 0: pass
            elif t < 8: A(f"v_mfma_f32_32x32x16_bf16 {acc(t)}, {wf}, {xf}, {cin}")
            else: A(f"v_mfma_f32_32x32x16_bf16 {acc(t)}, {xf}, {wf}, {cin}")
            if i % 4 == 1 and units and i // 4 < len(units):
                for x in units[i // 4]: A(x)
    A(f"s_add_u32 {s(S_T3)}, {s(S_IT)}, 8")
    gen_rec.trace(A, s(S_T3), 32)
    A("s_nop 7")
    A("s_nop 3")
    SA, PF = 32, 48
    def packq(b, d):
        for k, q in enumerate((0, 2, 1, 3)):
            A(f"v_cvt_pk_bf16_f32 v{d+2*k}, v{b+4*q}, v{b+4*q+1}")
            A(f"v_cvt_pk_bf16_f32 v{d+2*k+1}, v{b+4*q+2}, v{b+4*q+3}")
    def flag(which, first_wait):
        ln = A.uid("Lp1n")
        A(f"""s_waitcnt vmcnt(0)
        s_barrier
        s_cmp_eq_u32 {s(S_W)}, 0
        s_cbranch_scc0 {ln}""")
        if first_wait:
            A(f"""s_cmp_eq_u32 {s(S_IT)}, 0
            s_cbranch_scc0 L_p1_fl
            s_mov_b32 {s(S_SPIN)}, 0""")
            A.label("L_p1_iw")
            A(f"global_load_dword v60, {v(V_Z)}, {s(S_DBG,2)} offset:{DBG_INIT} sc1")
            spin_guard(A)
            A(f"""s_waitcnt vmcnt(0)
            v_readfirstlane_b32 {s(S_T0)}, v60
            s_cmp_ge_u32 {s(S_T0)}, {n_init}
            s_cbranch_scc0 L_p1_iw""")
            A.label("L_p1_fl")
        A(f"""s_lshl_b32 {s(S_T0)}, {s(S_TBK)}, 5
        s_add_u32 {s(S_T0)}, {s(S_T0)}, {s(S_H)}
        s_lshl_b32 {s(S_T0)}, {s(S_T0)}, 7
        s_add_u32 {s(S_T0)}, {s(S_T0)}, {WS_FLAGS+which}
        v_mov_b32 v60, {s(S_T0)}
        v_mov_b32 v61, 1
        global_store_dword v60, v61, {s(S_WS,2)} sc1""")
        A.label(ln)
    for t in range(4):
        b = ACC + 64 + 16 * t
        for k in range(16): A(f"v_mul_f32 v{b+k}, {s(S_C)}, v{b+k}")
        for k in range(8): A(f"v_cvt_pk_bf16_f32 v{b+k}, v{b+2*k}, v{b+2*k+1}")
        for f in range(2):
            A(f"global_store_dwordx4 {v(V_KO)}, {v(b+4*f,4)}, {s(S_O,2)} offset:{t*1024+f*512} sc1")
    for t in range(4):
        b = ACC + 128 + 16 * t
        packq(b, b)
        for f in range(2): A(f"global_store_dwordx4 {v(V_VO)}, {v(b+4*f,4)}, {s(S_O+2,2)} offset:{t*2048+f*512-4096} sc1")
    for t in range(4):
        b = ACC + 16 * t
        for k in range(8): A(f"v_cvt_pk_bf16_f32 v{b+k}, v{b+2*k}, v{b+2*k+1}")
        for f in range(2):
            A(f"v_mfma_f32_32x32x16_bf16 {v(SA,16)}, {v(ACC+64+16*t+4*f,4)}, {v(b+4*f,4)}, {'0' if t == 0 and f == 0 else v(SA,16)}")
    flag(FL_P1, True)
    for t in range(4):
        b = ACC + 16 * t
        for f in range(2): A(f"global_store_dwordx4 {v(V_LIN)}, {v(b+4*f,4)}, {s(S_O+4,2)} offset:{(2*t+f)*1024-4096} sc1")
    NEG, m, t1, l = 56, 57, 58, 59
    A(f"v_mov_b32 v{NEG}, 0xf149f2ca")
    for r in range(16):
        key = (r & 3) + 8 * (r >> 2)
        A(f"v_cmp_le_i32 vcc, {key}, {v(V_THR)}")
        A(f"v_cndmask_b32 v{SA+r}, v{NEG}, v{SA+r}, vcc")
    A(f"v_max3_f32 v{m}, v{SA}, v{SA+1}, v{SA+2}")
    for r in range(3, 15, 2): A(f"v_max3_f32 v{m}, v{m}, v{SA+r}, v{SA+r+1}")
    A(f"""v_max_f32 v{m}, v{m}, v{SA+15}
    v_mov_b32 v{t1}, v{m}
    v_permlane32_swap_b32 v{m}, v{t1}
    v_max_f32 v{m}, v{m}, v{t1}""")
    for r in range(16): A(f"v_sub_f32 v{SA+r}, v{SA+r}, v{m}")
    for r in range(16): A(f"v_exp_f32 v{SA+r}, v{SA+r}")
    packq(SA, PF)
    for t in range(4):
        b = ACC + 128 + 16 * t
        for f in range(2):
            A(f"v_mfma_f32_32x32x16_bf16 {acc(t)}, {v(b+4*f,4)}, {v(PF+4*f,4)}, {'0' if f == 0 else acc(t)}")
    A(f"v_add_f32 v{l}, v{SA}, v{SA+1}")
    for r in range(2, 16): A(f"v_add_f32 v{l}, v{l}, v{SA+r}")
    A(f"""v_mov_b32 v{t1}, v{l}
    v_permlane32_swap_b32 v{l}, v{t1}
    v_add_f32 v{l}, v{l}, v{t1}
    v_log_f32 v{t1}, v{l}
    v_rcp_f32 v{l}, v{l}
    v_add_f32 v{t1}, v{t1}, v{m}
    global_store_dword {v(V_STO)}, v{t1}, {s(S_O+8,2)} sc1""")
    for t in range(4):
        b = ACC + 16 * t
        for k in range(16): A(f"v_mul_f32 v{b+k}, v{b+k}, v{l}")
        for k in range(8): A(f"v_cvt_pk_bf16_f32 v{b+k}, v{b+2*k}, v{b+2*k+1}")
        for f in range(2): A(f"global_store_dwordx4 {v(V_LIN)}, {v(b+4*f,4)}, {s(S_O+6,2)} offset:{(2*t+f)*1024-4096} sc1")
    flag(FL_P1B, False)
    A.label("L_p1_next")
    A(f"s_add_u32 {s(S_T3)}, {s(S_IT)}, 4")
    gen_rec.trace(A, s(S_T3), 32)
    A(f"""s_add_u32 {s(S_TBK)}, {s(S_TBK)}, 4
    s_add_u32 {s(S_IT)}, {s(S_IT)}, 1
    s_cmp_lt_u32 {s(S_IT)}, 4
    s_cbranch_scc1 L_p1_task
    s_branch L_end""")
```

```python
from asmlib import *
from layout import *
import gen_rec
from gen_rec import add64, f32bits, dec, spin_guard, S_WO, S_WS, S_DBG, S_H, S_W, S_SPIN, S_T0, S_T1, S_T2, S_T3, S_SRC, S_TB, LT
import math
S_X = 4
S_GRP, S_KS, S_NS, S_TK = 22, 23, 24, 25
S_C = 26
S_SEG = 28
S_PH = 29
S_OUT, S_WR, S_WG, S_WU, S_WD, S_GW = 30, 32, 34, 36, 38, 40
S_IDX = 42
S_RS = 66
S_B0, S_B1, S_B2, S_B3 = 74, 76, 78, 80
S_PAR = 82
S_FIRST = 83
LOG2E = math.log2(math.e)

def wait_counter(A, off, n, vt, vz):
    l = A.uid("Lwc")
    A(f"s_mov_b32 {s(S_SPIN)}, 0")
    A.label(l)
    A(f"global_load_dword v{vt}, v{vz}, {s(S_DBG,2)} offset:{off} sc1")
    spin_guard(A)
    A(f"""s_waitcnt vmcnt(0)
    v_readfirstlane_b32 {s(S_T0)}, v{vt}
    s_cmp_ge_u32 {s(S_T0)}, {n}
    s_cbranch_scc0 {l}""")

def wait_flags(A, vaddr, vt, sleep=2):
    l, l2 = A.uid("Lwf"), A.uid("Lwf")
    A(f"s_mov_b32 {s(S_SPIN)}, 0")
    A(f"s_branch {l2}")
    A.label(l)
    A(f"s_sleep {sleep}")
    A.label(l2)
    A(f"global_load_dword v{vt}, v{vaddr}, {s(S_WS,2)} sc1")
    spin_guard(A)
    A(f"""s_waitcnt vmcnt(0)
    v_cmp_ne_u32 vcc, 1, v{vt}
    s_cbranch_vccnz {l}""")

def set_flag(A, soff, vt):
    ln = A.uid("Lsf")
    A(f"""s_waitcnt vmcnt(0)
    s_barrier
    s_cmp_eq_u32 {s(S_W)}, 0
    s_cbranch_scc0 {ln}
    v_mov_b32 v{vt}, {soff}
    v_mov_b32 v{vt+1}, 1
    global_store_dword v{vt}, v{vt+1}, {s(S_WS,2)} sc1""")
    A.label(ln)

def rbf(A, d, x):
    A(f"v_cvt_pk_bf16_f32 v{d}, v{x}, v{x}")
    A(f"v_and_b32 v{d}, 0xffff0000, v{d}")

def sigmoid(A, d, x):
    A(f"v_mul_f32 v{d}, {f32bits(-LOG2E):#x}, v{x}")
    A(f"v_exp_f32 v{d}, v{d}")
    A(f"v_add_f32 v{d}, 1.0, v{d}")
    A(f"v_rcp_f32 v{d}, v{d}")

def allreduce(A, op, r, t):
    for c in ("quad_perm:[1,0,3,2]", "quad_perm:[2,3,0,1]", "row_ror:4", "row_ror:8"):
        A(f"{op}_dpp v{t}, v{r}, v{r} {c} row_mask:0xf bank_mask:0xf")
        A(f"v_mov_b32 v{r}, v{t}")
    for p in ("v_permlane16_swap_b32", "v_permlane32_swap_b32"):
        A(f"v_mov_b32 v{t}, v{r}")
        A(f"{p} v{r}, v{t}")
        A(f"{op} v{r}, v{r}, v{t}")

def gen_init(A, idx_sgpr, n_wg):
    A.comment("--- init job")
    A(f"""v_lshlrev_b32 v8, 4, v0
    v_mov_b32 v12, 0
    v_mov_b32 v13, 0
    v_mov_b32 v14, 0
    v_mov_b32 v15, 0
    v_mov_b32 v16, -1
    v_mov_b32 v17, -1
    v_mov_b32 v18, -1
    v_mov_b32 v19, -1""")
    for base, units, reg in ((WS_FLAGS, FL_TOTAL // 4096, 12), (WS_P2, 768, 12), (WS_KV, 2048, 16)):
        l, le = A.uid("Lin"), A.uid("Lin")
        A(f"s_mov_b32 {s(S_T0)}, {idx_sgpr}")
        A.label(l)
        A(f"""s_cmp_ge_u32 {s(S_T0)}, {units}
        s_cbranch_scc1 {le}
        s_lshl_b32 {s(S_T1)}, {s(S_T0)}, 12
        s_add_u32 {s(S_T1)}, {s(S_T1)}, {base}""")
        add64(A, S_SRC, S_WS, s(S_T1))
        A(f"""global_store_dwordx4 v8, {v(reg,4)}, {s(S_SRC,2)} sc1
        s_add_u32 {s(S_T0)}, {s(S_T0)}, {n_wg}
        s_branch {l}""")
        A.label(le)
    ln = A.uid("Lin")
    A(f"""s_waitcnt vmcnt(0)
    s_barrier
    v_cmp_eq_u32 vcc, 0, v0
    s_and_saveexec_b64 {s(S_SRC,2)}, vcc
    s_cbranch_execz {ln}
    v_mov_b32 v16, 1
    global_atomic_add v12, v16, {s(S_DBG,2)} offset:{DBG_INIT}""")
    A.label(ln)
    A("s_mov_b64 exec, -1")

def gen_m1(A, n_init):
    A.comment("--- M1: router/gate")
    A(f"""s_lshl_b32 {s(S_T3)}, {s(S_GRP)}, 5
    s_add_u32 {s(S_T3)}, {s(S_T3)}, {s(S_TK)}
    s_lshl_b32 {s(S_T0)}, {s(S_T3)}, 15
    s_lshl_b32 {s(S_T1)}, {s(S_W)}, 13
    s_add_u32 {s(S_T0)}, {s(S_T0)}, {s(S_T1)}
    s_add_u32 {s(S_T0)}, {s(S_T0)}, 4096""")
    add64(A, S_B0, S_X, s(S_T0))
    A(f"global_load_dwordx4 v[8:11], v2, {s(S_WR,2)}")
    A(f"global_load_dwordx4 v[12:15], v2, {s(S_GW,2)}")
    for k in range(8): A(f"global_load_dwordx4 {v(64+4*k,4)}, v2, {s(S_B0,2)} offset:{1024*k-4096}")
    A("s_waitcnt vmcnt(8)")
    for j in range(4):
        A(f"v_lshlrev_b32 v{16+2*j}, 16, v{8+j}")
        A(f"v_and_b32 v{17+2*j}, 0xffff0000, v{8+j}")
        A(f"v_lshlrev_b32 v{24+2*j}, 16, v{12+j}")
        A(f"v_and_b32 v{25+2*j}, 0xffff0000, v{12+j}")
    RK, GG = 48, 49
    for k in range(8):
        A(f"s_waitcnt vmcnt({7-k})")
        for j in range(4):
            A(f"v_lshlrev_b32 v{32+2*j}, 16, v{64+4*k+j}")
            A(f"v_and_b32 v{33+2*j}, 0xffff0000, v{64+4*k+j}")
        A(f"v_mul_f32 v40, v32, v16")
        for j in range(1, 8): A(f"v_fmac_f32 v40, v{32+j}, v{16+j}")
        for j in range(8): A(f"v_mul_f32 v{32+j}, v{32+j}, v{24+j}")
        for j in range(4): A(f"v_cvt_pk_bf16_f32 v{32+j}, v{32+2*j}, v{33+2*j}")
        A(f"v_dot2_f32_bf16 v41, v32, {s(S_T2)}, 0" if False else "v_mov_b32 v42, 0x3f803f80")
        A("v_dot2_f32_bf16 v41, v32, v42, 0")
        for j in range(1, 4): A(f"v_dot2_f32_bf16 v41, v{32+j}, v42, v41")
        allreduce(A, "v_add_f32", 40, 43)
        allreduce(A, "v_add_f32", 41, 43)
        A(f"v_cmp_eq_u32 vcc, {k}, v1")
        A(f"v_cndmask_b32 v{RK}, v{RK}, v40, vcc")
        A(f"v_cndmask_b32 v{GG}, v{GG}, v41, vcc")
    A(f"""v_cvt_pk_bf16_f32 v50, v{RK}, v{RK}
    v_and_b32 v50, 0xffff0000, v50
    v_ashrrev_i32 v51, 31, v50
    v_or_b32 v51, 0x80000000, v51
    v_xor_b32 v50, v50, v51
    v_and_b32 v50, 0xffff0000, v50
    s_lshl_b32 {s(S_T0)}, {s(S_T3)}, 5
    s_lshl_b32 {s(S_T1)}, {s(S_W)}, 3
    s_add_u32 {s(S_T0)}, {s(S_T0)}, {s(S_T1)}
    v_add_u32 v52, {s(S_T0)}, v1
    v_sub_u32 v53, 0xffff, v52
    v_or_b32 v50, v50, v53""")
    rbf(A, 54, GG)
    sigmoid(A, 55, 54)
    rbf(A, 54, 55)
    A("v_sub_f32 v55, 1.0, v54")
    rbf(A, 55, 55)
    A(f"""v_lshlrev_b32 v56, 2, v52
    v_add_u32 v56, {WS_RKEY}, v56
    v_lshlrev_b32 v57, 3, v52
    v_add_u32 v57, {WS_G}, v57
    s_mov_b64 exec, 0xff
    global_store_dword v56, v50, {s(S_WS,2)} sc1
    global_store_dwordx2 v57, v[54:55], {s(S_WS,2)} sc1
    s_mov_b64 exec, -1""")
    wait_counter(A, DBG_INIT, n_init, 58, 3)
    A(f"s_lshl_b32 {s(S_T1)}, {s(S_T3)}, 7")
    A(f"s_add_u32 {s(S_T1)}, {s(S_T1)}, {WS_FLAGS+FL_M1}")
    set_flag(A, s(S_T1), 58)

def gen_top8(A, n_init):
    A.comment("--- top8")
    wait_counter(A, DBG_INIT, n_init, 58, 3)
    A(f"v_lshlrev_b32 v8, 7, v1")
    A(f"v_add_u32 v8, {WS_FLAGS+FL_M1}, v8")
    wait_flags(A, 8, 9)
    add64(A, S_B0, S_WS, WS_RKEY + 4096)
    K = 64
    for k in range(8): A(f"global_load_dwordx4 {v(K+4*k,4)}, v2, {s(S_B0,2)} offset:{1024*k-4096} sc1")
    A("s_waitcnt vmcnt(0)")
    A(f"s_mov_b32 {s(S_T1)}, 0")
    for rnd in range(8):
        A(f"v_max3_u32 v8, v{K}, v{K+1}, v{K+2}")
        for j in range(3, 31, 2): A(f"v_max3_u32 v8, v8, v{K+j}, v{K+j+1}")
        A(f"v_max_u32 v8, v8, v{K+31}")
        allreduce(A, "v_max_u32", 8, 9)
        A(f"v_readfirstlane_b32 {s(S_T0)}, v8")
        A(f"s_add_u32 {s(S_T1)}, {s(S_T1)}, {s(S_T0)}")
        A(f"s_mov_b32 {s(S_RS+rnd)}, {s(S_T1)}")
        A(f"s_and_b32 {s(S_T2)}, {s(S_T1)}, 0xffff")
        A(f"s_sub_u32 {s(S_T2)}, 0xffff, {s(S_T2)}")
        A(f"s_and_b32 {s(S_IDX+rnd)}, {s(S_T2)}, 2047")
        if rnd < 7:
            for j in range(32): A(f"v_subrev_u32 v{K+j}, {s(S_T0)}, v{K+j}")

def gen_m2(A, TB, n_init):
    A.comment("--- M2: FFN slice fs = tk (64 cols)")
    def f_dg(tid):
        w, l = tid >> 6, tid & 63
        return (128 * w + (l >> 3)) * 3584 + (l & 7) * 16
    def f_trg(tid):
        w, l, n, g = dec(tid); r, c = n >> 2, n & 3
        return (8 * g + r) * 128 + w * 32 + 8 * c
    def f_trd(tid):
        w, l, n, g = dec(tid); r, c = n >> 2, n & 3
        return (8 * g + r) * 1024 + w * 256 + 8 * c
    def f_hw(tid):
        w, l, n, g = dec(tid); return 131072 + n * 128 + (16 * w + 4 * g) * 2
    g0 = TB.add([f_dg, f_trg, f_trd, f_hw])
    def f_hr(tid):
        w, l, n, g = dec(tid); return 131072 + n * 128 + g * 16
    def f_yo(tid):
        w, l, n, g = dec(tid); return (n & 7) * 2048 + (128 * w + 4 * g) * 4
    g1 = TB.add([f_hr, f_yo, lambda t: ((t & 63) >> 4) * 16, lambda t: t & 7])
    A("v_lshlrev_b32 v4, 4, v0")
    TB.load(A, g0, 16, 4, S_TB, S_SRC)
    TB.load(A, g1, 20, 4, S_TB, S_SRC)
    V_DG, V_TRG, V_TRD, V_HW, V_HR, V_YO, V_G16, V_T7 = range(16, 24)
    A(f"s_lshl_b32 {s(S_T0)}, {s(S_TK)}, 7")
    add64(A, S_B0, S_WG, s(S_T0))
    add64(A, S_B1, S_WU, s(S_T0))
    A(f"s_lshl_b32 {s(S_T2)}, {s(S_W)}, 14")
    A("s_waitcnt vmcnt(0)")
    for m, b in enumerate((S_B0, S_B1)):
        for i in range(16):
            A(f"s_add_u32 m0, {s(S_T2)}, {m*65536+i*1024}")
            A(f"s_nop 0")
            A(f"global_load_lds_dwordx4 v{V_DG}, {s(b,2)}")
            add64(A, b, b, 8 * 3584)
    gen_top8(A, n_init)
    A(f"v_mov_b32 v8, {s(S_IDX)}")
    for k in range(1, 8):
        A(f"v_cmp_eq_u32 vcc, {k}, v{V_T7}")
        A(f"v_mov_b32 v9, {s(S_IDX+k)}")
        A(f"v_cndmask_b32 v8, v8, v9, vcc")
    A(f"v_lshl_add_u32 v8, v8, 10, v{V_G16}")
    XB = 64
    for ks in range(16): A(f"global_load_dwordx4 {v(XB+4*ks,4)}, v8, {s(S_X,2)} offset:{64*ks}")
    A("s_waitcnt vmcnt(0)")
    A("s_barrier")
    AG, AU, WFR = 24, 28, 32
    A(f"v_add_u32 v9, 0x10000, v{V_TRG}")
    for ks in range(16):
        for m, (acc, ad) in enumerate(((AG, V_TRG), (AU, 9))):
            r = WFR + 8 * (ks & 1) + 4 * m
            for qd in range(2): A(f"ds_read_b64_tr_b16 {v(r+2*qd,2)}, v{ad} offset:{(32*ks+4*qd)*128}")
        if ks > 0:
            A("s_waitcnt lgkmcnt(4)")
            for m, acc in enumerate((AG, AU)):
                r = WFR + 8 * ((ks - 1) & 1) + 4 * m
                A(f"v_mfma_f32_16x16x32_bf16 {v(acc,4)}, {v(r,4)}, {v(XB+4*(ks-1),4)}, {'0' if ks == 1 else v(acc,4)}")
    A("s_waitcnt lgkmcnt(0)")
    for m, acc in enumerate((AG, AU)):
        A(f"v_mfma_f32_16x16x32_bf16 {v(acc,4)}, {v(WFR+8+4*m,4)}, {v(XB+60,4)}, {v(acc,4)}")
    A("s_barrier")
    A(f"""s_lshl_b32 {s(S_T0)}, {s(S_TK)}, 16
    s_lshl_b32 {s(S_T2)}, {s(S_W)}, 14
    s_add_u32 {s(S_T0)}, {s(S_T0)}, {s(S_T2)}""")
    add64(A, S_B0, S_WD, s(S_T0))
    for i in range(16):
        A(f"s_add_u32 m0, {s(S_T2)}, {i*1024}")
        A("s_nop 0")
        A(f"global_load_lds_dwordx4 v2, {s(S_B0,2)}")
        add64(A, S_B0, S_B0, 1024)
    for r in range(4):
        rbf(A, AG + r, AG + r)
        sigmoid(A, 48, AG + r)
        A(f"v_mul_f32 v{AG+r}, v{AG+r}, v48")
        rbf(A, AG + r, AG + r)
        rbf(A, AU + r, AU + r)
        A(f"v_mul_f32 v{AG+r}, v{AG+r}, v{AU+r}")
    A(f"""v_cvt_pk_bf16_f32 v48, v{AG}, v{AG+1}
    v_cvt_pk_bf16_f32 v49, v{AG+2}, v{AG+3}
    ds_write_b64 v{V_HW}, v[48:49]
    s_waitcnt vmcnt(0) lgkmcnt(0)
    s_barrier
    ds_read_b128 v[52:55], v{V_HR}
    ds_read_b128 v[56:59], v{V_HR} offset:64""")
    A(f"s_mul_i32 {s(S_T0)}, {s(S_TK)}, 16384")
    A(f"s_add_u32 {s(S_T0)}, {s(S_T0)}, {WS_YP}")
    add64(A, S_B0, S_WS, s(S_T0))
    for T in range(8):
        for kk in range(2):
            for qd in range(2): A(f"ds_read_b64_tr_b16 {v(64+8*T+4*kk+2*qd,2)}, v{V_TRD} offset:{(32*kk+4*qd)*1024+T*32}")
        if T % 2 == 1: A("s_waitcnt lgkmcnt(0)")
    for T in range(8):
        for kk in range(2):
            A(f"v_mfma_f32_16x16x32_bf16 {v(128+4*T,4)}, {v(64+8*T+4*kk,4)}, {v(52+4*kk,4)}, {'0' if kk == 0 else v(128+4*T,4)}")
    for T in range(8): A(f"global_store_dwordx4 v{V_YO}, {v(128+4*T,4)}, {s(S_B0,2)} offset:{64*T} sc1")
    A(f"s_lshl_b32 {s(S_T1)}, {s(S_TK)}, 7")
    A(f"s_add_u32 {s(S_T1)}, {s(S_T1)}, {WS_FLAGS+FL_M2}")
    set_flag(A, s(S_T1), 58)

def gen_m3(A, n_init):
    A.comment("--- M3: rows 2*(tk-28), +1")
    gen_top8(A, n_init)
    A(f"v_min_u32 v8, 27, v1")
    A(f"v_lshlrev_b32 v8, 7, v8")
    A(f"v_add_u32 v8, {WS_FLAGS+FL_M2}, v8")
    wait_flags(A, 8, 9)
    A(f"""s_sub_u32 {s(S_T3)}, {s(S_TK)}, 28
    s_lshl_b32 {s(S_T3)}, {s(S_T3)}, 1
    s_lshr_b32 {s(S_T0)}, {s(S_W)}, 1
    s_add_u32 {s(S_T3)}, {s(S_T3)}, {s(S_T0)}
    s_mov_b32 {s(S_T1)}, {s(S_IDX)}
    s_mov_b32 {s(S_T2)}, {s(S_RS)}""")
    for k in range(1, 8):
        A(f"s_cmp_eq_u32 {s(S_T3)}, {k}")
        A(f"s_cselect_b32 {s(S_T1)}, {s(S_IDX+k)}, {s(S_T1)}")
        A(f"s_cselect_b32 {s(S_T2)}, {s(S_RS+k)}, {s(S_T2)}")
    A(f"""s_and_b32 {s(S_T0)}, {s(S_W)}, 1
    s_lshl_b32 {s(S_T0)}, {s(S_T0)}, 10
    v_add_u32 v8, {s(S_T0)}, v2
    v_lshrrev_b32 v9, 1, v8
    s_lshl_b32 {s(S_T0)}, {s(S_T3)}, 11
    s_add_u32 {s(S_T0)}, {s(S_T0)}, {WS_YP}""")
    add64(A, S_B0, S_WS, s(S_T0))
    for f in range(28):
        A(f"global_load_dwordx4 {v(64+4*f,4)}, v8, {s(S_B0,2)} sc1")
        add64(A, S_B0, S_B0, 16384)
    A(f"s_lshl_b32 {s(S_T0)}, {s(S_T1)}, 10")
    add64(A, S_B1, S_X, s(S_T0))
    A(f"global_load_dwordx2 v[10:11], v9, {s(S_B1,2)}")
    A(f"""s_and_b32 {s(S_T2)}, {s(S_T2)}, 0xffff0000
    v_mov_b32 v12, {s(S_T2)}
    v_ashrrev_i32 v13, 31, v12
    v_not_b32 v13, v13
    v_or_b32 v13, 0x80000000, v13
    v_xor_b32 v12, v12, v13
    v_and_b32 v12, 0xffff0000, v12""")
    sigmoid(A, 13, 12)
    rbf(A, 13, 13)
    A("s_waitcnt vmcnt(0)")
    for f in range(1, 28):
        for r in range(4): A(f"v_add_f32 v{64+r}, v{64+r}, v{64+4*f+r}")
    A("""v_lshlrev_b32 v14, 16, v10
    v_and_b32 v15, 0xffff0000, v10
    v_lshlrev_b32 v16, 16, v11
    v_and_b32 v17, 0xffff0000, v11""")
    for r in range(4):
        rbf(A, 64 + r, 64 + r)
        A(f"v_mul_f32 v{64+r}, v{64+r}, v13")
        rbf(A, 64 + r, 64 + r)
        A(f"v_add_f32 v{64+r}, v{64+r}, v{14+r}")
    A(f"""v_cvt_pk_bf16_f32 v10, v64, v65
    v_cvt_pk_bf16_f32 v11, v66, v67
    s_lshl_b32 {s(S_T0)}, {s(S_T3)}, 10
    s_add_u32 {s(S_T0)}, {s(S_T0)}, {WS_BSEL}""")
    add64(A, S_B0, S_WS, s(S_T0))
    A(f"""global_store_dwordx2 v9, v[10:11], {s(S_B0,2)} sc1
    s_lshl_b32 {s(S_T0)}, {s(S_T3)}, 7
    s_add_u32 {s(S_T0)}, {s(S_T0)}, {WS_IDX}
    v_mov_b32 v12, {s(S_T0)}
    v_mov_b32 v13, {s(S_T1)}
    global_store_dword v12, v13, {s(S_WS,2)} sc1
    s_sub_u32 {s(S_T1)}, {s(S_TK)}, 28
    s_lshl_b32 {s(S_T1)}, {s(S_T1)}, 7
    s_add_u32 {s(S_T1)}, {s(S_T1)}, {WS_FLAGS+FL_M3}""")
    set_flag(A, s(S_T1), 58)

def gen_p2(A, TB, n_init):
    A.comment("=== phase 2 role ===")
    A(f"""s_load_dwordx2 {s(S_OUT,2)}, s[0:1], 104
    s_load_dwordx4 {s(S_WR,4)}, s[0:1], 64
    s_load_dwordx4 {s(S_WU,4)}, s[0:1], 80
    s_load_dwordx2 {s(S_GW,2)}, s[0:1], 96
    v_lshrrev_b32 v4, 6, v0
    v_and_b32 v1, 63, v0
    v_lshlrev_b32 v2, 4, v1
    v_mov_b32 v3, 0
    v_readfirstlane_b32 {s(S_W)}, v4
    s_lshr_b32 {s(S_KS)}, {s(S_TK)}, 2
    s_and_b32 {s(S_NS)}, {s(S_TK)}, 3
    s_mov_b32 {s(S_C)}, {f32bits(128**-0.5 * LOG2E):#x}""")
    TB.base(A, S_TB)
    A(f"""s_waitcnt lgkmcnt(0)
    s_cmp_eq_u32 {s(S_GRP)}, 2
    s_cbranch_scc1 L_p2_moe""")
    gen_m1(A, n_init)
    A("s_branch L_p2_main")
    A.label("L_p2_moe")
    A(f"s_cmp_ge_u32 {s(S_TK)}, 28")
    A("s_cbranch_scc1 L_p2_m3")
    gen_m2(A, TB, n_init)
    A("s_branch L_p2_main")
    A.label("L_p2_m3")
    gen_m3(A, n_init)
    A.label("L_p2_main")
    gen_rec.trace(A, 1, 8)
    def f_dw(tid):
        w, l, n, g = dec(tid); return g * 1024 + ((n ^ (g << 2)) * 16)
    def f_tr(dt):
        def f(tid):
            w, l, n, G = dec(tid); r, c = n >> 2, n & 3
            return w * 32768 + (4 * (G >> 1) + r) * 256 + ((dt ^ r) * 64) + (G & 1) * 32 + 8 * c
        return f
    def f_k(tid):
        l = tid & 63; return (l >> 5) * 128 + (l & 7) * 16
    def f_v(tid):
        l = tid & 63; return 2048 + (l & 31) * 16
    g0 = TB.add([f_dw, f_k, f_v, lambda t: (t & 31) * 4])
    g1 = TB.add([f_tr(0), f_tr(1), f_tr(2), f_tr(3)])
    g2 = TB.add([lambda t: (t >> 6) * 16384 + (t & 63) * 16, lambda t: (t >> 6) * 4096 + (t & 63) * 16,
                 lambda t: (t & 31) * 1024 + ((t >> 6) & 1) * 16 + ((t >> 5) & 1) * 8, lambda t: (t & 31) * 8])
    V_DW, V_K, V_V, V_ST, V_TR, V_RW, V_RR, V_XO, V_GO = 4, 5, 6, 7, 8, 12, 13, 14, 15
    A("v_lshlrev_b32 v16, 4, v0")
    A("s_barrier")
    for g, r in ((g0, 4), (g1, 8), (g2, 12)): TB.load(A, g, r, 16, S_TB, S_SRC)
    A(f"""s_lshl_b32 {s(S_H)}, {s(S_KS)}, 2
    s_add_u32 {s(S_H)}, {s(S_H)}, {s(S_W)}
    s_lshl_b32 {s(S_T0)}, {s(S_H)}, 17
    s_lshl_b32 {s(S_T1)}, {s(S_NS)}, 8
    s_add_u32 {s(S_T0)}, {s(S_T0)}, {s(S_T1)}""")
    add64(A, S_B0, S_WO, s(S_T0))
    A(f"s_lshl_b32 {s(S_T2)}, {s(S_W)}, 15")
    A("s_waitcnt vmcnt(0)")
    for i in range(32):
        A(f"s_add_u32 m0, {s(S_T2)}, {i*1024}")
        A("s_nop 0")
        A(f"global_load_lds_dwordx4 v{V_DW}, {s(S_B0,2)}")
        add64(A, S_B0, S_B0, 4096)
    A("s_waitcnt vmcnt(0)")
    WOF = lambda dt, k: a((dt * 8 + k) * 4, 4)
    for dt in range(4):
        for k in range(8):
            for qd in range(2):
                A(f"ds_read_b64_tr_b16 {a((dt*8+k)*4+2*qd,2)}, v{V_TR+dt} offset:{(16*k+8*qd)*256}")
            if k % 4 == 3: A("s_waitcnt lgkmcnt(0)")
    wait_counter(A, DBG_INIT, n_init, 16, 3)
    A(f"""s_mov_b32 {s(S_SEG)}, {s(S_GRP)}
    s_mov_b32 {s(S_PAR)}, 0
    s_mov_b32 {s(S_PH)}, 1
    s_mov_b32 {s(S_FIRST)}, 1
    s_barrier""")
    QF, OXP, KF, VF, OA, OUT, SA = 128, 32, 64, 96, 128, 192, 112
    A.label("L_p2_seg")
    A(f"""s_lshr_b32 {s(S_T1)}, {s(S_SEG)}, 2
    s_lshl_b32 {s(S_T1)}, {s(S_T1)}, 5
    s_add_u32 {s(S_T1)}, {s(S_T1)}, {s(S_H)}
    s_lshl_b32 {s(S_T1)}, {s(S_T1)}, 7
    s_add_u32 {s(S_T1)}, {s(S_T1)}, {WS_FLAGS+FL_P1B}
    v_mov_b32 v16, {s(S_T1)}""")
    wait_flags(A, 16, 17, 8)
    A(f"""s_lshl_b32 {s(S_T3)}, {s(S_SEG)}, 5
    s_add_u32 {s(S_T3)}, {s(S_T3)}, {s(S_H)}
    s_lshl_b32 {s(S_T0)}, {s(S_T3)}, 13
    s_add_u32 {s(S_T0)}, {s(S_T0)}, {WS_Q+4096}""")
    add64(A, S_B0, S_WS, s(S_T0))
    add64(A, S_B1, S_B0, WS_OX - WS_Q)
    A(f"s_lshl_b32 {s(S_T0)}, {s(S_T3)}, 7")
    A(f"s_add_u32 {s(S_T0)}, {s(S_T0)}, {WS_ST}")
    add64(A, S_B2, S_WS, s(S_T0))
    A(f"s_lshl_b32 {s(S_T0)}, {s(S_T3)}, 12")
    A(f"s_add_u32 {s(S_T0)}, {s(S_T0)}, {WS_KV}")
    add64(A, S_B3, S_WS, s(S_T0))
    for k in range(8): A(f"global_load_dwordx4 {v(OXP+4*k,4)}, v2, {s(S_B1,2)} offset:{1024*k-4096} sc1")
    for k in range(8): A(f"global_load_dwordx4 {a(QF+4*k,4)}, v2, {s(S_B0,2)} offset:{1024*k-4096} sc1")
    LSE = 18
    A(f"global_load_dword v{LSE}, v{V_ST}, {s(S_B2,2)} sc1")
    A("s_waitcnt vmcnt(9)")
    for j in range(32):
        A(f"v_lshlrev_b32 v{OA+2*j}, 16, v{OXP+j}")
        A(f"v_and_b32 v{OA+2*j+1}, 0xffff0000, v{OXP+j}")
    A(f"s_mov_b32 {s(S_SPIN)}, 0")
    A("s_branch L_p2_kv2")
    A.label("L_p2_kv")
    A("s_sleep 4")
    A.label("L_p2_kv2")
    for k in range(8): A(f"global_load_dwordx4 {v(KF+4*k,4)}, v{V_K}, {s(S_B3,2)} offset:{k*256} sc1")
    for et in range(4): A(f"global_load_dwordx4 {v(VF+4*et,4)}, v{V_V}, {s(S_B3,2)} offset:{et*512} sc1")
    spin_guard(A)
    A("s_waitcnt vmcnt(0)")
    A(f"v_max3_u32 v16, v{KF}, v{KF+4}, v{KF+8}")
    for j in range(3, 11, 2): A(f"v_max3_u32 v16, v16, v{KF+4*j}, v{KF+4*j+4}")
    A(f"""v_max_u32 v16, v16, v{KF+44}
    v_cmp_eq_u32 vcc, -1, v16
    s_cbranch_vccnz L_p2_kv""")
    for k in range(8):
        A(f"v_mfma_f32_32x32x16_bf16 {v(SA,16)}, {v(KF+4*k,4)}, {a(QF+4*k,4)}, {'0' if k == 0 else v(SA,16)}")
    A("v_cmp_lt_u32 vcc, 31, v1")
    for et in range(4):
        A(f"v_cndmask_b32 v{VF+4*et}, v{VF+4*et}, v{VF+4*et+2}, vcc")
        A(f"v_cndmask_b32 v{VF+4*et+1}, v{VF+4*et+1}, v{VF+4*et+3}, vcc")
    m, t1, al, l = 19, 20, 21, 22
    for r in range(4): A(f"v_mul_f32 v{SA+r}, {s(S_C)}, v{SA+r}")
    A(f"""v_max3_f32 v{m}, v{SA}, v{SA+1}, v{SA+2}
    v_max3_f32 v{m}, v{m}, v{SA+3}, v{LSE}
    v_mov_b32 v{t1}, v{m}
    v_permlane32_swap_b32 v{m}, v{t1}
    v_max_f32 v{m}, v{m}, v{t1}""")
    for r in range(4): A(f"v_sub_f32 v{SA+r}, v{SA+r}, v{m}")
    A(f"v_sub_f32 v{al}, v{LSE}, v{m}")
    for r in range(4): A(f"v_exp_f32 v{SA+r}, v{SA+r}")
    A(f"""v_exp_f32 v{al}, v{al}
    v_add_f32 v{l}, v{SA}, v{SA+1}
    v_add_f32 v{t1}, v{SA+2}, v{SA+3}
    v_add_f32 v{l}, v{l}, v{t1}
    v_mov_b32 v{t1}, v{l}
    v_permlane32_swap_b32 v{l}, v{t1}
    v_add_f32 v{l}, v{l}, v{t1}
    v_add_f32 v{l}, v{l}, v{al}
    v_rcp_f32 v{l}, v{l}
    s_nop 0
    v_mul_f32 v{al}, v{al}, v{l}""")
    for r in range(4): A(f"v_mul_f32 v{SA+r}, v{SA+r}, v{l}")
    A(f"v_cvt_pk_bf16_f32 v24, v{SA}, v{SA+1}")
    A(f"v_cvt_pk_bf16_f32 v25, v{SA+2}, v{SA+3}")
    for et in range(4):
        for j in range(16): A(f"v_mul_f32 v{OA+16*et+j}, v{OA+16*et+j}, v{al}")
        A(f"v_mfma_f32_32x32x8_bf16 {v(OA+16*et,16)}, {v(VF+4*et,2)}, v[24:25], {v(OA+16*et,16)}")
    for et in range(4):
        for j in range(8): A(f"v_cvt_pk_bf16_f32 v{OXP+8*et+j}, v{OA+16*et+2*j}, v{OA+16*et+2*j+1}")
        for f in range(2):
            k = 2 * et + f
            for dt in range(4):
                A(f"v_mfma_f32_32x32x16_bf16 {v(OUT+16*dt,16)}, {WOF(dt,k)}, {v(OXP+4*k,4)}, {'0' if k == 0 else v(OUT+16*dt,16)}")
    for dt in range(4):
        for j in range(4): A(f"ds_write_b128 v{V_RW}, {v(OUT+16*dt+4*j,4)} offset:{dt*4096+j*1024}")
    A(f"""s_lshl_b32 {s(S_T0)}, {s(S_GRP)}, 1
    s_add_u32 {s(S_T0)}, {s(S_T0)}, {s(S_PAR)}
    s_lshl_b32 {s(S_T0)}, {s(S_T0)}, 2
    s_add_u32 {s(S_T0)}, {s(S_T0)}, {s(S_NS)}
    s_lshl_b32 {s(S_T0)}, {s(S_T0)}, 17
    s_add_u32 {s(S_T0)}, {s(S_T0)}, {WS_P2}
    s_lshl_b32 {s(S_T1)}, {s(S_W)}, 15
    s_lshl_b32 {s(S_T2)}, {s(S_KS)}, 11
    s_add_u32 {s(S_T1)}, {s(S_T1)}, {s(S_T2)}
    s_add_u32 {s(S_T1)}, {s(S_T1)}, {s(S_T0)}""")
    add64(A, S_B0, S_WS, s(S_T1))
    add64(A, S_B1, S_B0, 16384)
    A(f"""s_lshl_b32 {s(S_T1)}, {s(S_KS)}, 14
    s_lshl_b32 {s(S_T2)}, {s(S_W)}, 10
    s_add_u32 {s(S_T1)}, {s(S_T1)}, {s(S_T2)}
    s_add_u32 {s(S_T1)}, {s(S_T1)}, {s(S_T0)}""")
    add64(A, S_B2, S_WS, s(S_T1))
    A("s_waitcnt lgkmcnt(0)")
    A("s_barrier")
    for sw in range(4):
        for j in range(4): A(f"ds_read_b128 {v(64+16*sw+4*j,4)}, v{V_RR} offset:{sw*16384+j*1024}")
    A("s_waitcnt lgkmcnt(8)")
    for r in range(16): A(f"v_add_f32 v{64+r}, v{64+r}, v{80+r}")
    A("s_waitcnt lgkmcnt(0)")
    for r in range(16): A(f"v_add_f32 v{96+r}, v{96+r}, v{112+r}")
    A("s_barrier")
    for j in range(4):
        for r in range(4): A(f"v_add_f32 v{64+4*j+r}, v{64+4*j+r}, v{96+4*j+r}")
        A(f"v_and_or_b32 v{64+4*j}, v{64+4*j}, -2, {s(S_PH)}")
        A(f"global_store_dwordx4 v2, {v(64+4*j,4)}, {s(S_B0 if j < 2 else S_B1,2)} offset:{(j&1)*1024} sc1")
    A(f"s_cmp_ge_u32 {s(S_W)}, 2")
    A("s_cbranch_scc1 L_p2_next")
    A(f"s_cmp_eq_u32 {s(S_FIRST)}, 0")
    A("s_cbranch_scc1 L_p2_nf")
    A(f"""v_and_b32 v16, 3, v1
    v_lshlrev_b32 v16, 7, v16
    v_add_u32 v16, {WS_FLAGS+FL_M3}, v16""")
    wait_flags(A, 16, 17, 8)
    A(f"""v_and_b32 v16, 7, v1
    v_lshlrev_b32 v16, 7, v16
    v_add_u32 v16, {WS_IDX}, v16
    global_load_dword v17, v16, {s(S_WS,2)} sc1
    s_waitcnt vmcnt(0)""")
    for k in range(8): A(f"v_readlane_b32 {s(S_IDX+k)}, v17, {k}")
    A.label("L_p2_nf")
    A(f"""s_lshl_b32 {s(S_T0)}, {s(S_SEG)}, 15
    s_lshl_b32 {s(S_T1)}, {s(S_NS)}, 8
    s_lshl_b32 {s(S_T2)}, {s(S_KS)}, 5
    s_add_u32 {s(S_T1)}, {s(S_T1)}, {s(S_T2)}
    s_add_u32 {s(S_T0)}, {s(S_T0)}, {s(S_T1)}""")
    add64(A, S_B0, S_X, s(S_T0))
    add64(A, S_B1, S_OUT, s(S_T0))
    A(f"s_lshl_b32 {s(S_T0)}, {s(S_SEG)}, 8")
    A(f"s_add_u32 {s(S_T0)}, {s(S_T0)}, {WS_G}")
    add64(A, S_B3, S_WS, s(S_T0))
    A(f"global_load_dwordx2 v[26:27], v{V_XO}, {s(S_B0,2)}")
    A(f"global_load_dwordx2 v[28:29], v{V_GO}, {s(S_B3,2)} sc1")
    A(f"""s_lshl_b32 {s(S_T0)}, {s(S_SEG)}, 5
    v_and_b32 v16, 31, v1
    v_add_u32 v16, {s(S_T0)}, v16
    v_and_b32 v17, 0x3ff, v{V_XO}
    s_add_u32 {s(S_T1)}, {s(S_T1)}, {WS_BSEL}
    v_add_u32 v17, {s(S_T1)}, v17
    s_waitcnt vmcnt(0)""")
    for k in range(8):
        lk = A.uid("Lsel")
        A(f"v_cmp_eq_u32 vcc, {s(S_IDX+k)}, v16")
        A(f"s_cbranch_vccz {lk}")
        A(f"""s_mov_b64 exec, vcc
        v_add_u32 v23, {k*1024}, v17
        global_load_dwordx2 v[26:27], v23, {s(S_WS,2)} sc1
        s_waitcnt vmcnt(0)
        s_mov_b64 exec, -1""")
        A.label(lk)
    A("""v_lshlrev_b32 v96, 16, v26
    v_and_b32 v97, 0xffff0000, v26
    v_lshlrev_b32 v98, 16, v27
    v_and_b32 v99, 0xffff0000, v27""")
    for r in range(4):
        A(f"v_mul_f32 v{96+r}, v{96+r}, v29")
        rbf(A, 96 + r, 96 + r)
    add64(A, S_B3, S_B2, 8192)
    A(f"s_mov_b32 {s(S_SPIN)}, 0")
    A.label("L_p2_fp")
    for src in range(8):
        A(f"global_load_dwordx4 {v(64+4*src,4)}, v2, {s(S_B2 if src < 2 else S_B3,2)} offset:{src*2048 - (0 if src < 2 else 8192)} sc1" if src < 6 else
          f"global_load_dwordx4 {v(64+4*src,4)}, v30, {s(S_B3,2)} offset:{(src-6)*2048} sc1")
        if src == 0: A("v_add_u32 v30, 4096, v2")
    spin_guard(A)
    A("s_waitcnt vmcnt(0)")
    A(f"v_xor_b32 v16, {s(S_PH)}, v64")
    for src in range(1, 8):
        A(f"v_xor_b32 v17, {s(S_PH)}, v{64+4*src}")
        A("v_or_b32 v16, v16, v17")
    A("""v_and_b32 v16, 1, v16
    v_cmp_ne_u32 vcc, 0, v16
    s_cbranch_vccnz L_p2_fp""")
    for src in range(1, 8):
        for r in range(4): A(f"v_add_f32 v{64+r}, v{64+r}, v{64+4*src+r}")
    for r in range(4):
        rbf(A, 64 + r, 64 + r)
        A(f"v_mul_f32 v{64+r}, v{64+r}, v28")
        rbf(A, 64 + r, 64 + r)
        A(f"v_add_f32 v{64+r}, v{64+r}, v{96+r}")
    A(f"""v_cvt_pk_bf16_f32 v26, v64, v65
    v_cvt_pk_bf16_f32 v27, v66, v67
    global_store_dwordx2 v{V_XO}, v[26:27], {s(S_B1,2)}""")
    A.label("L_p2_next")
    A(f"""s_mov_b32 {s(S_FIRST)}, 0
    s_xor_b32 {s(S_PAR)}, {s(S_PAR)}, 1
    s_xor_b32 {s(S_T0)}, {s(S_PAR)}, 1
    s_xor_b32 {s(S_PH)}, {s(S_PH)}, {s(S_T0)}
    s_add_u32 {s(S_SEG)}, {s(S_SEG)}, 3
    s_cmp_lt_u32 {s(S_SEG)}, 64
    s_cbranch_scc1 L_p2_seg""")
    gen_rec.trace(A, 2, 8)
    A("s_branch L_end")
```

```python
from asmlib import *
from layout import *
import math, struct

def f32bits(x): return struct.unpack("<I", struct.pack("<f", x))[0]

S_MEM0, S_WQ, S_WK, S_WV, S_WO, S_WS, S_DBG = 6, 8, 10, 12, 14, 16, 18
S_H, S_W, S_STEP, S_MODE = 20, 21, 22, 23
S_SCALE, S_SEL10, S_SEL01, S_SPIN = 24, 25, 26, 27
S_PST = 28
S_MEMX = 40
S_WS4 = 48
S_KVB = 50
S_FLB = 52
S_T0, S_T1, S_T2, S_T3 = 54, 55, 56, 57
S_KXM0 = 58
S_MK3 = 60
S_SRC = 64
S_TB = 62
S_INB = 4
def INB(par): return 36 + 2 * par
S_SELM = 8
S_FLO = 4
S_FLAG = 5
(V_L16, V_IDX, V_QKW, V_TR,
 V_TRW, V_OW, V_PST, V_MST,
 V_GATH, V_KVO, V_XR, V_WOR,
 V_W2K, V_XW, V_SELV, V_KXO) = range(16)
V_INL = V_GATH
V_FLAG = V_TRW
V_WO01 = 16
V_ONES = 32
V_ZZ = 36
V_PA = 38
V_PB = 40
V_X = 42
V_M = 44
V_AQ, V_AK, V_AV = 80, 88, 96
V_ACC = 80
V_F = 112
V_T = 76
V_WV = 128

def WQ(T, t): return a((T * 8 + t) * 8, 8)
def WK(T, t): return a(128 + (T * 8 + t) * 8, 8)
def WV(T, t): return v(V_WV + (T * 8 + t) * 8, 8)

def add64(A, d, b, off):
    A(f"s_add_u32 {s(d)}, {s(b)}, {off}")
    A(f"s_addc_u32 {s(d+1)}, {s(b+1)}, 0")

class Tables:
    def __init__(self): self.groups = []
    def add(self, fns, nthreads=256):
        assert len(fns) == 4
        self.groups.append([[int(f(t)) & 0xffffffff for f in fns] for t in range(nthreads)])
        return len(self.groups) - 1
    def text(self):
        out = [".p2align 8", "L_tables:"]
        for g in self.groups:
            for row in g: out.append("  .long " + ", ".join("%#x" % x for x in row))
        return "\n".join(out) + "\n"
    def base(self, A, sreg):
        l = A.uid("Lpc")
        A(f"s_getpc_b64 {s(sreg,2)}")
        A.label(l)
        A(f"s_add_u32 {s(sreg)}, {s(sreg)}, L_tables-{l}")
        A(f"s_addc_u32 {s(sreg+1)}, {s(sreg+1)}, 0")
    def load(self, A, g, vdst, vtid16, sreg, stmp):
        add64(A, stmp, sreg, g * 4096)
        A(f"global_load_dwordx4 {v(vdst,4)}, {v(vtid16)}, {s(stmp,2)}")

def dec(tid):
    w, l = tid >> 6, tid & 63
    return w, l, l & 15, l >> 4

def gen_prologue(A, TB):
    A.comment("=== recurrence prologue; s20 = head ===")
    def f_qkw(tid):
        w, l, n, g = dec(tid); return L_QK + (32 * w + n) * 32 + g * 8
    def f_tr(tid):
        w, l, n, g = dec(tid); r, c = n >> 2, n & 3
        return L_QK + es(0, g, r) * 32 + c * 8
    def f_ow(tid):
        w, l, n, g = dec(tid)
        if n & 2: return L_MEM + l * 8
        return L_O + (w & 1) * 1024 + ((g >> 1) * 16 + n + 2 * (w >> 1)) * 16 + (g & 1) * 8
    def f_pst(tid):
        w, l, n, g = dec(tid); return (w * 8 + (n >> 3) * 4 + g) * 4096 + (n & 7) * 16
    def f_mst(tid):
        w, l, n, g = dec(tid); j, b5 = l & 7, l >> 5; c, qq = j >> 1, j & 1
        return (w >> 1) * 1024 + (w & 1) * 256 + (2 * (c >> 1) + qq) * 16 + ((c & 1) * 2 + b5) * 4
    def f_kvo(tid):
        w, l, n, g = dec(tid); key = 2 * (n >> 2) + (n & 1)
        if n & 2: return w * 512 + g * 128 + key * 16
        return 2048 + (32 * w + g * 8 + key) * 16
    def f_xr(tid):
        w, l, n, g = dec(tid); key = 2 * (n >> 2) + (n & 1)
        return L_X + (32 * w + g * 8 + key) * 16
    def f_gath(tid):
        w, l, n, g = dec(tid)
        return (w >> 1) * 0x20000 + (l >> 2) * 128 + (w & 1) * 64 + (l & 3) * 16
    def f_xw(tid):
        w, l, n, g = dec(tid); return L_X + (32 * w + n) * 16 + g * 4
    g0 = TB.add([lambda t: (t & 63) * 16, lambda t: 0xeeee if t & 2 else 0x4444, f_qkw, f_tr])
    g1 = TB.add([lambda t: f_tr(t) + (t >> 6) * 1024, f_ow, f_pst, f_mst])
    def f_kxo(tid):
        w, l, n, g = dec(tid); return (w >> 1) * WS_VX + (w & 1) * 4096 + l * 16
    g2 = TB.add([f_gath, f_kvo, f_xr, lambda t: L_WO + (t >> 6) * 28672 + (t & 63) * 16 - 4096])
    g2b = TB.add([lambda t: (t >> 6) * 2048 + (t & 63) * 16, f_xw, lambda t: 0x3f800000 if t & 1 else 0x3f80, f_kxo])
    fq = lambda d: (d & 1) | (((d >> 4) & 3) << 1)
    fo = lambda e: (e & 1) | (((e >> 2) & 1) << 1) | (((e >> 6) & 1) << 2)
    def f_dq(hi):
        def f(tid):
            w, l, n, g = dec(tid); row = 32 * w + 16 * hi + g
            return g * 8192 + ((n ^ (fq(row) << 1)) * 16)
        return f
    def f_do(odd):
        def f(tid):
            w, l, n, g = dec(tid); row = 32 * w + 4 * odd + g
            return g * 1024 + ((n ^ (fo(row) << 1)) * 16)
        return f
    g3 = TB.add([f_dq(0), f_dq(1), f_do(0), f_do(1)])
    def f_rq(T, hi):
        def f(tid):
            w, l, n, gB = dec(tid); r, c = n >> 2, n & 3
            row = 32 * (r >> 1) + 16 * (gB & 1) + 4 * (gB >> 1) + (r & 1)
            return L_STG + hi * 65536 + row * 256 + ((2 * w + T) ^ fq(row)) * 32 + 8 * c
        return f
    g4 = TB.add([f_rq(0, 0), f_rq(1, 0), f_rq(0, 1), f_rq(1, 1)])
    def f_ro(tid):
        w, l, n, gB = dec(tid); r, c = n >> 2, n & 3
        row = 64 * (r >> 1) + 8 * (gB >> 1) + 4 * (gB & 1) + (r & 1)
        return L_STG + w * 32768 + row * 256 + fo(row) * 32 + 8 * c
    def f_m0(tid):
        l, jj = tid >> 2, tid & 3
        q, half = arow(l & 15)
        return q * 1024 + dslot(0, half, l >> 4, 2 * jj) * 2
    g5 = TB.add([f_ro, f_m0, lambda t: L_MEM + t * 4, lambda t: L_KX + (t >> 6) * 6144 + (t & 63) * 16])
    VD, VR, VRO = 44, 48, 52
    A(f"""
    v_lshrrev_b32 v1, 6, v0
    v_lshlrev_b32 v76, 4, v0
    s_nop 0
    v_readfirstlane_b32 {s(S_W)}, v1
    """)
    TB.base(A, S_TB)
    for g, r in [(g0, 0), (g1, 4), (g2, 8), (g2b, 12), (g3, VD), (g4, VR), (g5, VRO)]:
        TB.load(A, g, r, 76, S_TB, S_SRC)
    A(f"""
    s_mov_b32 {s(S_SCALE)}, {f32bits(128**-0.5 * math.log2(math.e)):#x}
    s_mov_b32 {s(S_SEL10)}, 0x00003f80
    s_mov_b32 {s(S_SEL01)}, 0x3f800000
    s_mov_b32 {s(S_MK3)}, 0x33333333
    s_mov_b32 {s(S_MK3+1)}, 0x33333333
    """)
    for r in range(V_ZZ, V_X + 2): A(f"v_mov_b32 v{r}, 0")
    for par in range(2):
        for z in range(2):
            add64(A, S_PST + 4 * par + 2 * z, S_WS, WS_INBOX + par * 0x40000 + z * 0x20000)
    for r in range(4): add64(A, S_MEMX + 2 * r, S_WS, WS_MEMX + r * 8192)
    add64(A, S_WS4, S_WS, 4096)
    add64(A, S_KVB, S_WS, WS_KV - 0x20000)
    add64(A, S_FLB, S_WS, WS_FLAGS)
    A(f"""s_and_b32 {s(S_T0)}, {s(S_W)}, 1
    s_lshr_b32 {s(S_T1)}, {s(S_W)}, 1
    s_mul_i32 {s(S_T1)}, {s(S_T1)}, {L_VX-L_KX}
    s_lshl_b32 {s(S_T2)}, {s(S_T0)}, 12
    s_add_u32 {s(S_T1)}, {s(S_T1)}, {s(S_T2)}
    s_add_u32 {s(S_KXM0)}, {s(S_T1)}, {L_KX}
    s_add_u32 {s(S_KXM0+1)}, {s(S_T1)}, {L_KX+8192}
    s_lshl_b32 {s(S_T3)}, {s(S_H)}, 12
    s_waitcnt vmcnt(0)
    v_lshrrev_b32 v56, 12, {v(V_PST)}
    v_add_u32 v56, {s(S_H)}, v56
    v_and_b32 v56, 31, v56
    v_lshl_add_u32 {v(V_PST)}, v56, 7, {v(V_PST)}
    s_lshr_b32 {s(S_T0)}, {s(S_H)}, 3
    s_lshl_b32 {s(S_T0)}, {s(S_T0)}, 11
    s_bfe_u32 {s(S_T1)}, {s(S_H)}, 0x10002
    s_lshl_b32 {s(S_T1)}, {s(S_T1)}, 9
    s_add_u32 {s(S_T0)}, {s(S_T0)}, {s(S_T1)}
    s_and_b32 {s(S_T1)}, {s(S_H)}, 3
    s_lshl_b32 {s(S_T1)}, {s(S_T1)}, 6
    s_add_u32 {s(S_T0)}, {s(S_T0)}, {s(S_T1)}
    v_add_u32 {v(V_MST)}, {s(S_T0)}, {v(V_MST)}
    s_lshl_b32 {s(S_T0)}, {s(S_H)}, 12
    v_add_u32 {v(V_KVO)}, {s(S_T0)}, {v(V_KVO)}
    s_lshl_b32 {s(S_T0)}, {s(S_H)}, 13
    v_add_u32 {v(V_KXO)}, {s(S_T0)}, {v(V_KXO)}
    v_mov_b32 v56, 0
    v_mov_b32 v57, 0
    v_mov_b32 v58, 0
    v_mov_b32 v59, 0
    v_mov_b32 v60, -1
    v_add_u32 v61, {s(S_T3)}, v76
    """)
    for pz in range(4):
        A(f"global_store_dwordx4 v61, v[56:59], {s(S_PST+2*pz,2)} sc1")
    for r in range(4):
        A(f"global_store_dword {v(V_MST)}, v60, {s(S_MEMX+2*r,2)} sc1")
    A("s_waitcnt vmcnt(0)")
    mats = [S_WQ, S_WK, S_WV]
    def dma_chunk(ci):
        slot = ci % 4
        if ci < 12:
            base, c = mats[ci // 4], ci % 4
            A(f"s_lshl_b32 {s(S_T0)}, {s(S_W)}, 18")
            A(f"s_lshl_b32 {s(S_T1)}, {s(S_H)}, 8")
            A(f"s_add_u32 {s(S_T0)}, {s(S_T0)}, {s(S_T1)}")
            A(f"s_add_u32 {s(S_T0)}, {s(S_T0)}, {128*c*8192}")
            step = 4 * 8192
            vo = lambda i: VD + (i >> 2)
        else:
            base, c = S_WO, ci - 12
            A(f"s_lshl_b32 {s(S_T0)}, {s(S_W)}, 15")
            A(f"s_lshl_b32 {s(S_T1)}, {s(S_H)}, 17")
            A(f"s_add_u32 {s(S_T0)}, {s(S_T0)}, {s(S_T1)}")
            A(f"s_add_u32 {s(S_T0)}, {s(S_T0)}, {c*256}")
            step = 4 * 1024
            vo = lambda i: VD + 2 + (i & 1)
        add64(A, S_SRC, base, s(S_T0))
        A(f"s_lshl_b32 {s(S_T2)}, {s(S_W)}, 13")
        A(f"s_add_u32 {s(S_T2)}, {s(S_T2)}, {L_STG + slot*32768}")
        for i in range(8):
            A(f"s_mov_b32 m0, {s(S_T2)}")
            A(f"s_add_u32 {s(S_T2)}, {s(S_T2)}, 1024")
            A(f"global_load_lds_dwordx4 v{vo(i)}, {s(S_SRC,2)}")
            if i < 7: add64(A, S_SRC, S_SRC, step)
    for ci in range(4): dma_chunk(ci)
    for t in range(8):
        A(f"global_load_ushort v{60+2*t}, v{VRO+1}, {s(S_MEM0,2)} offset:{128*t}")
        A(f"global_load_ushort v{61+2*t}, v{VRO+1}, {s(S_MEM0,2)} offset:{128*t+2}")
    for ci in range(12):
        slot = ci % 4
        A("s_waitcnt vmcnt(40)" if ci < 4 else "s_waitcnt vmcnt(24)")
        A("s_barrier")
        if ci == 0:
            A(f"""s_cmp_eq_u32 {s(S_W)}, 0
            s_cbranch_scc0 L_rec_noinc
            v_mov_b32 v56, 1
            s_mov_b64 exec, 1
            global_atomic_add {v(V_ZZ)}, v56, {s(S_DBG,2)} offset:{DBG_RECINIT}
            s_mov_b64 exec, -1
            L_rec_noinc:""")
        W = [WQ, WK, WV][ci // 4]
        c = ci % 4
        for tt in range(2):
            t = 2 * c + tt
            for T in range(2):
                wreg = W(T, t)
                kind, lo = wreg[0], int(wreg[2:].split(":")[0])
                for p4 in range(4):
                    off = (2 * (p4 & 1) + 8 * (p4 >> 1) + 64 * tt) * 256 + (slot & 1) * 32768
                    A(f"ds_read_b64_tr_b16 {kind}[{lo+2*p4}:{lo+2*p4+1}], v{VR + T + 2*(slot>>1)} offset:{off}")
        if ci == 4:
            for t in range(8):
                A(f"v_lshl_or_b32 v{60+2*t}, v{61+2*t}, 16, v{60+2*t}")
                A(f"ds_write_b32 v{VRO+2}, v{60+2*t} offset:{1024*t}")
        A("s_waitcnt lgkmcnt(0)")
        A("s_barrier")
        dma_chunk(ci + 4)
    for par in range(2): add64(A, INB(par), S_PST + 4 * par, s(S_T3))
    for k in range(4):
        A(f"s_mov_b32 {s(S_SELM+2*k)}, {0x03030303 << (2*k):#x}")
        A(f"s_mov_b32 {s(S_SELM+2*k+1)}, {0x03030303 << (2*k):#x}")
    A(f"s_lshl_b32 {s(S_FLO)}, {s(S_H)}, 7")
    A("""s_waitcnt vmcnt(0)
    s_barrier""")
    def wo_read(f, reg):
        T, tp = f >> 1, f & 1
        A(f"v_xor_b32 v{VRO+1}, {T*32}, v{VRO}")
        for p4 in range(4):
            off = (32 * tp + 16 * (p4 >> 1) + 2 * (p4 & 1)) * 256
            A(f"ds_read_b64_tr_b16 v[{reg+2*p4}:{reg+2*p4+1}], v{VRO+1} offset:{off}")
    regs = [16, 24, 32, 44] + [56 + 8 * i for i in range(9)]
    PK = VRO + 3
    for k, f in enumerate([13, 14, 15]): wo_read(f, 56 + 8 * k)
    A("s_waitcnt lgkmcnt(0)")
    for k in range(6): A(f"ds_write_b128 v{PK}, v[{56+4*k}:{59+4*k}] offset:{1024*k}")
    A("s_waitcnt lgkmcnt(0)")
    for f in range(13):
        wo_read(f, regs[f])
        if f % 3 == 2: A("s_waitcnt lgkmcnt(4)")
    A("s_waitcnt lgkmcnt(0)")
    A("s_barrier")
    for f in range(2, 13):
        A(f"ds_write_b128 {v(V_WOR)}, v[{regs[f]}:{regs[f]+3}] offset:{f*2048}")
        A(f"ds_write_b128 {v(V_WOR)}, v[{regs[f]+4}:{regs[f]+7}] offset:{f*2048+1024}")
        if f % 4 == 3: A("s_waitcnt lgkmcnt(0)")
    A("s_waitcnt lgkmcnt(0)")
    for k in range(6): A(f"ds_read_b128 v[{56+4*k}:{59+4*k}], v{PK} offset:{1024*k}")
    A("s_waitcnt lgkmcnt(0)")
    for k in range(6): A(f"ds_write_b128 {v(V_WOR)}, v[{56+4*k}:{59+4*k}] offset:{13*2048+1024*k}")
    for r in range(4): A(f"v_mov_b32 v{V_ONES+r}, 0x3f803f80")
    for r in range(V_ZZ, V_X + 2): A(f"v_mov_b32 v{r}, 0")
    A("""s_waitcnt lgkmcnt(0)
    s_barrier""")

def spin_guard(A):
    A(f"s_add_u32 {s(S_SPIN)}, {s(S_SPIN)}, 1")
    A(f"s_cmp_gt_u32 {s(S_SPIN)}, 0x400000")
    A("s_cbranch_scc1 L_end")

NST = 10
TRACE = False
def trace(A, tid_, vt):
    if not TRACE: return
    A("s_memrealtime s[100:101]")
    A("s_waitcnt lgkmcnt(0)")
    A(f"v_mov_b32 v{vt+1}, s100")
    A("s_lshl_b32 s100, s2, 4")
    A(f"s_add_u32 s100, s100, {tid_}")
    A("s_lshl_b32 s100, s100, 2")
    A(f"s_add_u32 s100, s100, {WS_DBG + (2<<20)}")
    A(f"v_mov_b32 v{vt}, s100")
    A(f"global_store_dword v{vt}, v{vt+1}, {s(S_WS,2)}")
EXP = set()
PRM = dict(dA=8, dB=8, dGA=14, dGB=9)
def zero_acc(A):
    A(f"v_mfma_f32_32x32x8_bf16 {v(V_ACC,16)}, {v(V_ZZ,2)}, {v(V_ZZ,2)}, 0")
    A(f"v_mfma_f32_32x32x8_bf16 {v(V_ACC+16,16)}, {v(V_ZZ,2)}, {v(V_ZZ,2)}, 0")

def dma4(par):
    return [f"s_mov_b32 m0, {s(S_KXM0+par)}"] + [f"global_load_lds_dwordx4 {v(V_KXO)}, {s(S_WS,2)} offset:{1024*i}" for i in range(4)] + [f"v_add_u32 {v(V_KXO)}, 0x40000, {v(V_KXO)}"]

def kv_read(A, KP):
    A(f"s_lshl_b32 {s(S_T0)}, {s(S_W)}, 10")
    A(f"v_add_u32 v{KP+4}, {s(S_T0)}, {v(V_TR)}")
    A(f"ds_read_b64_tr_b16 v[{KP}:{KP+1}], v{KP+4}")
    A(f"ds_read_b64_tr_b16 v[{KP+2}:{KP+3}], v{KP+4} offset:256")
    A(f"s_mov_b64 exec, {s(S_MK3,2)}")
    A(f"ds_read_b128 {v(KP,4)}, {v(V_XR)}")
    A("s_mov_b64 exec, -1")

def flag_wait(A, name, vt):
    A(f"s_mov_b32 {s(S_SPIN)}, 0")
    A(f"v_mov_b32 v{vt}, {s(S_FLO)}")
    A.label(name)
    A(f"global_load_dword v{vt+1}, v{vt}, {s(S_FLB,2)} sc1")
    spin_guard(A)
    A(f"""s_waitcnt vmcnt(0)
    v_readfirstlane_b32 {s(S_T0)}, v{vt+1}
    s_cmp_eq_u32 {s(S_T0)}, 1
    s_cbranch_scc0 {name}""")

def load_counters(A, vt, sdst):
    A(f"""v_mbcnt_lo_u32_b32 v{vt}, -1, 0
    v_mbcnt_hi_u32_b32 v{vt}, -1, v{vt}
    v_and_b32 v{vt}, 7, v{vt}
    v_lshlrev_b32 v{vt}, 2, v{vt}
    v_mov_b32 v{vt+1}, {DBG_XCC0}
    v_cmp_eq_u32 vcc, 0, v{vt}
    v_cndmask_b32 v{vt}, v{vt}, v{vt+1}, vcc
    global_load_dword v{vt+1}, v{vt}, {s(S_DBG,2)} sc1
    s_waitcnt vmcnt(0)""")
    for k in range(8): A(f"v_readlane_b32 {s(sdst+k)}, v{vt+1}, {k}")
    A(f"s_add_u32 {s(S_T0)}, {s(sdst)}, {s(sdst+1)}")
    for k in range(2, 8): A(f"s_add_u32 {s(S_T0)}, {s(S_T0)}, {s(sdst+k)}")

FORCE_MODE = None
def decide_mode(A):
    if FORCE_MODE is not None:
        A(f"s_mov_b32 {s(S_MODE)}, {FORCE_MODE}")
        return
    A(f"s_mov_b32 {s(S_SPIN)}, 0")
    A.label("L_rec_md")
    spin_guard(A)
    load_counters(A, 56, 70)
    A(f"""s_mov_b32 {s(S_MODE)}, 0
    s_cmp_ge_u32 s70, 32
    s_cbranch_scc1 L_rec_mdok
    s_mov_b32 {s(S_MODE)}, 1
    s_cmp_ge_u32 {s(S_T0)}, 256
    s_cbranch_scc0 L_rec_md""")
    A.label("L_rec_mdok")

def gen_preloop(A, timing, stamps, n_init=0):
    A.comment("pre-loop")
    trace(A, 1, 56)
    if n_init:
        decide_mode(A)
        A(f"s_mov_b32 {s(S_SPIN)}, 0")
        A.label("L_rec_gi")
        A(f"global_load_dword v56, {v(V_ZZ)}, {s(S_DBG,2)} offset:{DBG_INIT} sc1")
        spin_guard(A)
        A(f"""s_waitcnt vmcnt(0)
        v_readfirstlane_b32 {s(S_T0)}, v56
        s_cmp_ge_u32 {s(S_T0)}, {n_init}
        s_cbranch_scc0 L_rec_gi""")
    flag_wait(A, "L_rec_f0", 56)
    for x in dma4(0): A(x)
    A.label("L_rec_i0")
    A(f"global_load_dword v56, {v(V_ZZ)}, {s(S_DBG,2)} offset:{DBG_RECINIT} sc1")
    spin_guard(A)
    A(f"""s_waitcnt vmcnt(0)
    v_readfirstlane_b32 {s(S_T0)}, v56
    s_cmp_ge_u32 {s(S_T0)}, 32
    s_cbranch_scc0 L_rec_i0""")
    A(f"s_mov_b32 {s(S_STEP)}, 0")
    zero_acc(A)
    A(f"""v_mov_b32 v116, -1
    v_mov_b32 v112, 0
    v_mov_b32 v113, 0
    v_mov_b32 v114, 0
    v_mov_b32 v115, 0""")
    trace(A, 2, 56)
    A("s_barrier")
    if timing:
        A("s_memtime s[66:67]")
        A("s_waitcnt lgkmcnt(0)")
    if stamps:
        for k in range(NST): A(f"s_mov_b32 s{90+k}, 0")

class LT:
    def __init__(self, A): self.A, self.ops, self.done = A, [], 0
    def op(self, name, ins):
        self.ops.append(name); return ins
    def wait(self, name):
        i = len(self.ops) - 1 - self.ops[::-1].index(name)
        if i < self.done: return None
        self.done = i + 1
        return f"s_waitcnt lgkmcnt({min(len(self.ops) - 1 - i, 15)})"

def gen_step(A, k4, mode, dbg, stamps):
    sfx = f"{'s' if mode else 'f'}{k4}"
    par, phase = k4 & 1, ((k4 >> 1) & 1) ^ 1
    def stamp(k):
        if stamps: A(f"s_memtime s[{70+2*k}:{71+2*k}]")
    M = lambda t: v(V_M + 4 * t, 4)
    F = lambda u: v(V_F + 4 * u, 4)
    KXR = lambda j: v(96 + 4 * j, 4) if j < 4 else M(j - 4)
    idx = v(V_IDX)
    lt = LT(A)
    def emit(x):
        if x is None: return
        if isinstance(x, str): A(x)
        elif x[0] == "ds": A(lt.op(x[1], x[2]))
        elif x[0] == "w":
            w = lt.wait(x[1])
            if w: A(w)
    def run(main, fills):
        for k, m in enumerate(main):
            for x in m: emit(x)
            for x in fills.get(k, []): emit(x)
    def post(acc, d0, d1):
        return [f"v_add_f32 v{acc}, v{acc}, v{acc+2}", f"v_add_f32 v{acc+1}, v{acc+1}, v{acc+3}",
                f"v_add_f32 v{acc+4}, v{acc+4}, v{acc+6}", f"v_add_f32 v{acc+5}, v{acc+5}, v{acc+7}",
                f"v_cvt_pk_bf16_f32 v{d0}, v{acc}, v{acc+1}", f"v_cvt_pk_bf16_f32 v{d1}, v{acc+4}, v{acc+5}"]
    mrd = lambda t, tag: ("ds", f"M{tag}{t}", f"ds_read_b128 {M(t)}, {v(V_L16)} offset:{L_MEM+t*1024}")
    kxrd = lambda j: ("ds", f"KX{j}", f"ds_read_b128 {KXR(j)}, {v(V_L16)} offset:{L_KX+par*8192+j*1024}")
    frd = lambda i, tag: ("ds", f"F{tag}{i}", f"ds_read_b64_tr_b16 {v(V_F+2*i,2)}, {v(V_TR)} offset:{(i>>1)*1024+(i&1)*256}")
    slots = [60, 68, 112, 44, 52]
    NS = len(slots)
    def wslot(f): return (V_WO01 + 8 * f) if f < 2 else slots[(f - 2) % NS]
    def wo_ld(f):
        r = wslot(f)
        return [("ds", f"W{f}a", f"ds_read_b128 {v(r,4)}, {v(V_WOR)} offset:{f*2048}"),
                ("ds", f"W{f}", f"ds_read_b128 {v(r+4,4)}, {v(V_WOR)} offset:{f*2048+1024}")]
    smf = lambda acc, T, t, W: f"v_smfmac_f32_16x16x64_bf16 {v(acc+4*T,4)}, {M(t)}, {W(T,t)}, {idx}"
    KP = 112
    A.label(f"L_rec_step_{sfx}")
    stamp(0)
    for t in range(8): emit(mrd(t, "a"))
    if "nokv" not in EXP:
        A(f"global_store_dwordx4 {v(V_KVO)}, {v(KP,4)}, {s(S_KVB,2)} sc1")
    d4 = dma4(par ^ 1) if "nold" not in EXP else [None] * 6
    hk = [f"global_store_dword {v(V_MST)}, v{KP+4}, {s(S_MEMX+2*((k4+1)&3),2)}{mode}", f"v_add_u32 {v(V_KVO)}, 0x20000, {v(V_KVO)}"]
    fl = []
    if k4 == 2: fl.append(f"global_load_dword {v(V_FLAG)}, v{KP+7}, {s(S_FLB,2)} sc1")
    run([[("w", f"Ma{t}"), smf(V_AQ, T, t, WQ)] for t in range(8) for T in range(2)],
        {0: [d4[0]], 1: [d4[1]], 3: [d4[2]], 5: [d4[3]], 7: [d4[4], d4[5]], 8: [kxrd(0)], 9: hk, 10: [kxrd(1)], 11: fl, 12: [kxrd(2)], 14: [kxrd(3)]})
    stamp(1)
    qp = post(V_AQ, V_T, V_T + 1)
    fills = {1: ["s_nop 5"], 2: qp[0:2], 3: qp[2:4], 4: qp[4:6],
             5: [("ds", "QW", f"ds_write2_b32 {v(V_QKW)}, v{V_T}, v{V_T+1} offset0:0 offset1:128")],
             8: [("w", "QW"), "s_barrier", frd(0, "a")],
             9: [frd(1, "a"), frd(2, "a")], 10: [frd(3, "a"), frd(4, "a")], 11: [frd(5, "a"), frd(6, "a")],
             12: [frd(7, "a"), kxrd(4)], 13: [kxrd(5)], 14: [kxrd(6)], 15: [kxrd(7)]}
    if k4 == 2: fills[7] = ["s_waitcnt vmcnt(0)" if False else None]
    run([[smf(V_AK, T, t, WK)] for t in range(8) for T in range(2)], fills)
    stamp(2)
    SX, PX, SM, VXR, OA, LA = 80, 104, 108, 88, 80, 88
    kp = post(V_AK, V_T + 2, V_T + 3)
    main = []
    for kt in range(2):
        for u in range(4):
            d = SX + 4 * kt; j = kt * 4 + u
            main.append([("w", f"Fa{2*u+1}"), ("w", f"KX{j}"),
                         f"v_mfma_f32_16x16x32_bf16 {v(d,4)}, {KXR(j)}, {F(u)}, {'0' if u == 0 else v(d,4)}"])
    zv = [f"v_mov_b64 {v(V_AV+2*k,2)}, 0" for k in range(4)]
    fills = {1: ["s_nop 3"], 2: kp[0:2], 3: kp[2:4], 4: kp[4:6] + [mrd(0, "b")],
             5: [("ds", "KW", f"ds_write2_b32 {v(V_QKW)}, v{V_T+2}, v{V_T+3} offset0:1 offset1:129"), mrd(1, "b")] + zv[:1],
             6: [mrd(2, "b")] + zv[1:3], 7: [mrd(3, "b")] + zv[3:]}
    run(main, fills)
    stamp(3)
    m, t1 = V_T, V_T + 1
    xs = list(range(SX, SX + 8))
    sm = [f"v_max3_f32 v{m}, |v{xs[0]}|, |v{xs[1]}|, |v{xs[2]}|", f"v_max3_f32 v{t1}, |v{xs[3]}|, |v{xs[4]}|, |v{xs[5]}|",
          f"v_max3_f32 v{m}, v{m}, |v{xs[6]}|, |v{xs[7]}|", f"v_max_f32 v{t1}, v{m}, v{t1}",
          f"v_cmp_lt_f32 vcc, 0x42700000, v{t1}", f"v_mov_b32 v{m}, 0",
          f"s_and_b64 vcc, vcc, {s(S_MK3,2)}\ns_cbranch_scc1 L_rec_fx_{sfx}\nL_rec_fxret_{sfx}:"]
    ex = [f"v_exp_f32 v{r}, v{r}" for r in xs]
    cv = [f"v_cvt_pk_bf16_f32 v{PX+k}, v{xs[2*k]}, v{xs[2*k+1]}" for k in range(4)]
    order = [4, 5, 6, 7, 0, 1, 2, 3]
    vm = [([("w", f"Mb{t}")] if t < 4 else []) + [smf(V_AV, T, t, WV)] for t in order for T in range(2)]
    smm = [[("w", f"Fb{2*u+1}"), f"v_mfma_f32_16x16x32_bf16 {v(SM,4)}, {F(u)}, {F(u)}, {'0' if u == 0 else v(SM,4)}"] for u in range(4)]
    main = vm[:9] + smm + vm[9:]
    vx = [("ds", "VX0", f"ds_read_b128 {v(VXR,4)}, {v(V_W2K)} offset:{L_VX+par*8192}"),
          ("ds", "VX1", f"ds_read_b128 {v(VXR+4,4)}, {v(V_W2K)} offset:{L_VX+par*8192+1024}")]
    w2, w3, w4 = wo_ld(2), wo_ld(3), wo_ld(4)
    pm = [f"v_fma_f32 v{SM+2}, v{SM+2}, {s(S_SCALE)}, -v{m}", f"v_fma_f32 v{SM+3}, v{SM+3}, {s(S_SCALE)}, -v{m}",
          f"v_max_f32 v{t1}, v{SM+2}, v{SM+3}", f"v_exp_f32 v{SM}, v{SM+2}", f"v_exp_f32 v{SM+1}, v{SM+3}",
          f"v_cmp_lt_f32 vcc, 0x42800000, v{t1}"]
    fills = {0: [("w", "KW"), "s_barrier", frd(0, "b"), frd(1, "b")], 1: [frd(2, "b"), frd(3, "b")], 2: [frd(4, "b"), frd(5, "b")],
             3: [frd(6, "b"), frd(7, "b")] + sm[0:2], 4: sm[2:4] + [vx[0]], 5: sm[4:6] + [vx[1]], 6: [sm[6], ex[0]], 7: [ex[1], w2[0]], 8: [ex[2], w2[1]],
             9: [ex[3], w3[0]], 10: [ex[4], w3[1]], 11: [ex[5]], 12: [ex[6]], 13: [ex[7], w4[0]], 14: cv[0:2] + [w4[1]], 15: cv[2:4],
             16: pm[0:2], 17: pm[2:4], 18: pm[4:6], 19: []}
    run(main, fills)
    stamp(4)
    emit(("w", "VX1"))
    A(f"v_mfma_f32_16x16x32_bf16 {v(OA,4)}, {v(VXR,4)}, {v(PX,4)}, 0")
    A(f"s_and_b64 vcc, vcc, {s(S_MK3,2)}")
    A(f"v_mfma_f32_16x16x32_bf16 {v(OA+4,4)}, {v(VXR+4,4)}, {v(PX,4)}, 0")
    A(f"v_mfma_f32_16x16x32_bf16 {v(LA,4)}, {v(V_ONES,4)}, {v(PX,4)}, 0")
    vp = post(V_AV, V_X, V_X + 1)
    A(f"s_cbranch_scc1 L_rec_fb_{sfx}")
    A.label(f"L_rec_fbret_{sfx}")
    A(f"v_cvt_pk_bf16_f32 v{V_PA}, v{SM}, v{SM+1}")
    A(f"v_cvt_pk_bf16_f32 v{V_PB+1}, v{SM}, v{SM+1}")
    for x in vp[:4]: A(x)
    A(f"v_mfma_f32_16x16x16_bf16 {v(LA,4)}, {v(V_ONES,2)}, {v(V_PA,2)}, {v(LA,4)}")
    for x in vp[4:]: A(x)
    emit(("ds", "XW", f"ds_write2_b32 {v(V_XW)}, v{V_X}, v{V_X+1} offset0:0 offset1:64"))
    if k4 == 3: A(f"s_cmp_eq_u32 {s(S_STEP)}, 63")
    A(f"v_mfma_f32_16x16x16_bf16 {v(OA,4)}, {v(V_X,2)}, {v(V_PA,2)}, {v(OA,4)}")
    A(f"v_mfma_f32_16x16x16_bf16 {v(OA+4,4)}, {v(V_X,2)}, {v(V_PB,2)}, {v(OA+4,4)}")
    if k4 == 3: A("s_cbranch_scc1 L_rec_last")
    A(f"v_mfma_f32_32x32x8_bf16 {v(V_ACC+16,16)}, {v(V_ZZ,2)}, {v(V_ZZ,2)}, 0")
    for x in wo_ld(5): emit(x)
    A(f"v_rcp_f32 v{t1}, v{LA}")
    for r in range(4): A(f"v_mul_f32 v{OA+r}, v{OA+r}, v{t1}")
    for k in range(2): A(f"v_cvt_pk_bf16_f32 v{V_T+2+k}, v{OA+2*k}, v{OA+2*k+1}")
    emit(("ds", "OW0", f"ds_write_b64 {v(V_OW)}, {v(V_T+2,2)}"))
    for r in range(4, 8): A(f"v_mul_f32 v{OA+r}, v{OA+r}, v{t1}")
    for k in range(2): A(f"v_cvt_pk_bf16_f32 v{V_T+k}, v{OA+4+2*k}, v{OA+5+2*k}")
    emit(("ds", "OW", f"ds_write_b64 {v(V_OW)}, {v(V_T,2)} offset:512"))
    A(f"v_mfma_f32_32x32x8_bf16 {v(V_ACC,16)}, {v(V_ZZ,2)}, {v(V_ZZ,2)}, 0")
    emit(("w", "OW"))
    A("s_barrier")
    stamp(5)
    OF = 120
    emit(("ds", "OF0", f"ds_read_b128 {v(OF,4)}, {v(V_L16)} offset:{L_O}"))
    emit(("ds", "OF1", f"ds_read_b128 {v(OF+4,4)}, {v(V_L16)} offset:{L_O+1024}"))
    for x in wo_ld(6): emit(x)
    def post_tile(T):
        b = V_ACC + 4 * T
        d = (V_T if T < 4 else V_ACC) + (T & 3)
        L = [f"v_add_f32 v{b}, v{b}, v{b+2}", f"v_add_f32 v{b+1}, v{b+1}, v{b+3}", f"v_cvt_pk_bf16_f32 v{d}, v{b}, v{b+1}"]
        if (T & 3) == 0: L.append(f"v_and_or_b32 v{d}, v{d}, -2, {phase}")
        return L
    for f in range(16):
        T, tp = f >> 1, f & 1
        if f < 2: emit(("w", f"OF{f}"))
        else: emit(("w", f"W{f}"))
        A(f"v_smfmac_f32_16x16x64_bf16 {v(V_ACC+4*T,4)}, {v(OF+4*tp,4)}, {v(wslot(f),8)}, {idx}")
        if f >= 2 and f + NS < 16:
            for x in wo_ld(f + NS): emit(x)
        if tp == 1 and T >= 2:
            for x in post_tile(T - 2): A(x)
            if T - 2 == 3:
                A(f"global_store_dwordx4 {v(V_PST)}, {v(V_T,4)}, {s(S_PST+4*par,2)}{mode}")
    for T in (6, 7):
        for x in post_tile(T): A(x)
    A(f"global_store_dwordx4 {v(V_PST)}, {v(V_ACC,4)}, {s(S_PST+4*par+2,2)}{mode}")
    stamp(6)
    RA, SEL, D = 44, 60, 64
    kv_read(A, KP)
    for k in range(4): A(f"v_cndmask_b32 v{SEL+k}, 0, {v(V_SELV)}, {s(S_SELM+2*k,2)}")
    A(f"v_mfma_f32_32x32x8_bf16 {v(V_ACC,16)}, {v(V_ZZ,2)}, {v(V_ZZ,2)}, 0")
    A(f"v_mov_b32 v{KP+4}, -1")
    if k4 == 1:
        A(f"""s_add_u32 {s(S_FLO)}, {s(S_FLO)}, 4096
        s_lshl_b32 {s(S_T0)}, {s(S_H)}, 7
        s_add_u32 {s(S_T0)}, {s(S_T0)}, {15*4096}
        s_min_u32 {s(S_FLO)}, {s(S_FLO)}, {s(S_T0)}
        v_mov_b32 v{KP+7}, {s(S_FLO)}""")
    A("s_waitcnt lgkmcnt(0)")
    A(f"v_min_u32 v{KP}, -2, v{KP}")
    def delay(n):
        for _ in range(n): A("s_nop 3")
    lz = A.uid("Lz")
    A(f"s_cmp_lt_u32 {s(S_W)}, 2")
    A(f"s_cbranch_scc1 {lz}")
    delay(PRM["dB"])
    A.label(lz)
    delay(PRM["dA"])
    A(f"s_mov_b32 {s(S_SPIN)}, 0")
    A.label(f"L_p2_{sfx}")
    if stamps: A("s_add_u32 s99, s99, 1")
    A(f"global_load_dwordx4 {v(RA,4)}, {v(V_INL)}, {s(INB(par),2)} sc1")
    A(f"global_load_dwordx4 {v(RA+4,4)}, {v(V_INL)}, {s(INB(par),2)} offset:2048 sc1")
    spin_guard(A)
    A("s_waitcnt vmcnt(1)")
    A(f"v_mfma_f32_16x16x32_bf16 {v(D,4)}, {v(RA,4)}, {v(SEL,4)}, 0")
    A("s_waitcnt vmcnt(0)")
    A(f"v_mfma_f32_16x16x32_bf16 {v(D,4)}, {v(RA+4,4)}, {v(SEL,4)}, {v(D,4)}")
    A(f"v_and_b32 v68, v{RA}, v{RA+4}" if phase else f"v_or_b32 v68, v{RA}, v{RA+4}")
    A("v_and_b32 v68, 1, v68")
    A(f"v_cmp_ne_u32 vcc, {phase}, v68")
    A(f"s_cbranch_vccnz L_p2_{sfx}")
    stamp(7)
    A(f"""v_permlane32_swap_b32 v{D}, v{D+2}
    v_permlane32_swap_b32 v{D+1}, v{D+3}
    v_add_f32 v{D}, v{D}, v{D+2}
    v_add_f32 v{D+1}, v{D+1}, v{D+3}
    v_mov_b32 v{D+2}, v{D}
    v_mov_b32 v{D+3}, v{D+1}
    v_permlane16_swap_b32 v{D}, v{D+2}
    v_permlane16_swap_b32 v{D+1}, v{D+3}
    v_add_f32 v{D}, v{D}, v{D+2}
    v_add_f32 v{D+1}, v{D+1}, v{D+3}
    v_cvt_pk_bf16_f32 v{D}, v{D}, v{D+1}
    v_min_u32 v{D}, -2, v{D}
    global_store_dword {v(V_MST)}, v{D}, {s(S_MEMX+2*k4,2)}{mode}""")
    stamp(8)
    if k4 == 2:
        A(f"v_readfirstlane_b32 {s(S_FLAG)}, {v(V_FLAG)}")
    lz = A.uid("Lz")
    A(f"s_cmp_ge_u32 {s(S_W)}, 2")
    A(f"s_cbranch_scc1 {lz}")
    delay(PRM["dB"])
    A.label(lz)
    delay(PRM["dGA"])
    mx = s(S_MEMX + 2 * k4, 2)
    A(f"s_mov_b32 {s(S_SPIN)}, 0")
    A.label(f"L_p3_{sfx}")
    if stamps: A("s_add_u32 s99, s99, 1")
    A(f"global_load_dwordx4 {v(RA,4)}, {v(V_W2K)}, {mx} sc1")
    A(f"global_load_dwordx4 {v(RA+4,4)}, {v(V_W2K)}, {mx} offset:1024 sc1")
    spin_guard(A)
    R = RA
    A(f"""s_waitcnt vmcnt(1)
    ds_write_b128 {v(V_W2K)}, {v(RA,4)} offset:{L_MEM}
    v_max3_u32 v68, v{R}, v{R+1}, v{R+2}
    s_waitcnt vmcnt(0)
    ds_write_b128 {v(V_W2K)}, {v(RA+4,4)} offset:{L_MEM+1024}
    v_max3_u32 v69, v{R+3}, v{R+4}, v{R+5}
    v_max3_u32 v68, v68, v{R+6}, v{R+7}
    v_max_u32 v68, v68, v69
    v_cmp_eq_u32 vcc, -1, v68
    s_cbranch_vccnz L_p3_{sfx}""")
    stamp(9)
    if dbg:
        A(f"s_add_u32 {s(S_T0)}, {s(S_STEP)}, 1")
        A(f"s_lshl_b32 {s(S_T0)}, {s(S_T0)}, 13")
        A(f"s_add_u32 {s(S_T0)}, {s(S_T0)}, {WS_DBG}")
        add64(A, S_SRC, S_WS, s(S_T0))
        for R_, o in ((RA, 0), (RA + 4, 1024)):
            A(f"global_store_dwordx4 {v(V_W2K)}, {v(R_,4)}, {s(S_SRC,2)} offset:{o}")
    if k4 == 2:
        A(f"s_cmp_eq_u32 {s(S_FLAG)}, 1")
        A(f"s_cbranch_scc1 L_rec_fok_{sfx}")
        flag_wait(A, f"L_rec_fw_{sfx}", 68)
        A.label(f"L_rec_fok_{sfx}")
    A("s_waitcnt lgkmcnt(0)")
    if stamps:
        for k in range(NST - 1):
            A(f"s_sub_u32 s68, s{72+2*k}, s{70+2*k}")
            A(f"s_add_u32 s{90+k}, s{90+k}, s68")
        if k4 == 3:
            A(f"s_cmp_eq_u32 {s(S_STEP)}, 7")
            A(f"s_cbranch_scc0 L_rec_join_{sfx}")
            for k in range(NST): A(f"s_mov_b32 s{90+k}, 0")
    A.label(f"L_rec_join_{sfx}")
    A(f"s_add_u32 {s(S_STEP)}, {s(S_STEP)}, 1")
    A("s_barrier")
    A(f"s_branch L_rec_next_{sfx}")
    A.label(f"L_rec_fb_{sfx}")
    t2 = V_T + 2
    A(f"""v_mov_b32 v{t2}, v{t1}
    v_permlane16_swap_b32 v{t1}, v{t2}
    v_max_f32 v{t1}, v{t1}, v{t2}
    v_mov_b32 v{t2}, v{t1}
    v_permlane32_swap_b32 v{t1}, v{t2}
    v_max_f32 v{t1}, v{t1}, v{t2}
    v_max_f32 v{t1}, 0, v{t1}
    v_sub_f32 v{SM+2}, v{SM+2}, v{t1}
    v_sub_f32 v{SM+3}, v{SM+3}, v{t1}
    v_exp_f32 v{t2}, -v{t1}
    v_exp_f32 v{SM}, v{SM+2}
    v_exp_f32 v{SM+1}, v{SM+3}
    s_nop 7""")
    for r in range(8): A(f"v_mul_f32 v{OA+r}, v{OA+r}, v{t2}")
    for r in range(4): A(f"v_mul_f32 v{LA+r}, v{LA+r}, v{t2}")
    A("s_nop 1")
    A(f"s_branch L_rec_fbret_{sfx}")
    A.label(f"L_rec_fx_{sfx}")
    A(f"""v_max3_f32 v{m}, v{xs[0]}, v{xs[1]}, v{xs[2]}
    v_max3_f32 v{t1}, v{xs[3]}, v{xs[4]}, v{xs[5]}
    v_max3_f32 v{m}, v{m}, v{xs[6]}, v{xs[7]}
    v_max_f32 v{m}, v{m}, v{t1}
    v_mov_b32 v{t1}, v{m}
    v_permlane16_swap_b32 v{m}, v{t1}
    v_max_f32 v{m}, v{m}, v{t1}
    v_mov_b32 v{t1}, v{m}
    v_permlane32_swap_b32 v{m}, v{t1}
    v_max_f32 v{m}, v{m}, v{t1}""")
    for r in xs: A(f"v_sub_f32 v{r}, v{r}, v{m}")
    A(f"s_branch L_rec_fxret_{sfx}")
    A.label(f"L_rec_next_{sfx}")

def gen_loop(A, dbg=False, timing=False, stamps=False, n_init=0):
    gen_preloop(A, timing, stamps, n_init)
    A(f"s_cmp_eq_u32 {s(S_MODE)}, 0")
    A("s_cbranch_scc0 L_rec_step_s0")
    for mode in ("", " sc1"):
        for k4 in range(4): gen_step(A, k4, mode, dbg, stamps)
        A(f"s_branch L_rec_step_{'s' if mode else 'f'}0")
    A.label("L_rec_last")
    KP = 44
    A("s_waitcnt lgkmcnt(0)")
    kv_read(A, KP)
    A(f"""s_waitcnt lgkmcnt(0)
    v_min_u32 v{KP}, -2, v{KP}
    global_store_dwordx4 {v(V_KVO)}, {v(KP,4)}, {s(S_KVB,2)} sc1
    """)
    trace(A, 3, 56)
    if timing:
        A(f"""s_memtime s[68:69]
        s_waitcnt lgkmcnt(0)
        s_sub_u32 s68, s68, s66
        v_mov_b32 v44, s68
        s_lshl_b32 {s(S_T0)}, {s(S_H)}, 2
        s_add_u32 {s(S_T0)}, {s(S_T0)}, {WS_DBG + (3<<20)}
        v_mov_b32 v45, {s(S_T0)}
        global_store_dword v45, v44, {s(S_WS,2)}""")
    if stamps:
        A(f"""s_lshl_b32 {s(S_T0)}, {s(S_H)}, 2
        s_add_u32 {s(S_T0)}, {s(S_T0)}, {s(S_W)}
        s_lshl_b32 {s(S_T0)}, {s(S_T0)}, 6
        s_add_u32 {s(S_T0)}, {s(S_T0)}, {WS_DBG + (1<<20)}""")
        add64(A, S_SRC, S_WS, s(S_T0))
        for k in range(NST):
            A(f"v_mov_b32 v46, s{90+k}")
            A(f"global_store_dword {v(V_ZZ)}, v46, {s(S_SRC,2)} offset:{4*k}")
    A("s_branch L_end")

HEADER = """.amdgcn_target "amdgcn-amd-amdhsa--gfx950"
.text
.globl {name}
.p2align 8
.type {name},@function
{name}:
"""
FOOTER = """.section .rodata,"a"
.p2align 6
.amdhsa_kernel {name}
  .amdhsa_next_free_vgpr 512
  .amdhsa_next_free_sgpr 102
  .amdhsa_accum_offset 256
  .amdhsa_group_segment_fixed_size 0
  .amdhsa_kernarg_size 128
  .amdhsa_user_sgpr_count 2
  .amdhsa_user_sgpr_kernarg_segment_ptr 1
  .amdhsa_system_sgpr_workgroup_id_x 1
.end_amdhsa_kernel
"""

def gen_standalone(dbg=True, timing=True, mode=0, stamps=False):
    A = Asm(); TB = Tables()
    A(f"""
    s_cmp_ge_u32 s2, 256
    s_cbranch_scc1 L_end
    s_load_dwordx2 {s(S_MEM0,2)}, s[0:1], 8
    s_load_dwordx4 {s(S_WQ,4)}, s[0:1], 16
    s_load_dwordx4 {s(S_WV,4)}, s[0:1], 32
    s_load_dwordx2 {s(S_DBG,2)}, s[0:1], 112
    s_load_dwordx2 {s(S_WS,2)}, s[0:1], 120
    s_getreg_b32 s3, hwreg(HW_REG_XCC_ID)
    s_and_b32 s3, s3, 7
    s_waitcnt lgkmcnt(0)
    s_cmp_eq_u32 s3, 0
    s_cbranch_scc0 L_end
    v_mov_b32 v2, 0
    v_mov_b32 v3, 1
    v_cmp_eq_u32 vcc, 0, v0
    s_and_saveexec_b64 s[4:5], vcc
    s_cbranch_execz L_tk
    global_atomic_add v4, v2, v3, {s(S_DBG,2)} sc0
    s_waitcnt vmcnt(0)
    ds_write_b32 v2, v4
    s_waitcnt lgkmcnt(0)
    L_tk:
    s_mov_b64 exec, -1
    s_barrier
    ds_read_b32 v4, v2
    s_waitcnt lgkmcnt(0)
    v_readfirstlane_b32 {s(S_H)}, v4
    s_barrier
    s_cmp_ge_u32 {s(S_H)}, 32
    s_cbranch_scc1 L_end
    s_mov_b32 {s(S_MODE)}, {mode}
    """)
    gen_prologue(A, TB)
    gen_loop(A, dbg, timing, stamps)
    A.label("L_end")
    A("s_waitcnt vmcnt(0)")
    A("s_endpgm")
    name = "rec_kernel"
    return f"; @launch grid=(256,1,1) block=(256,1,1) lds={LDS_TOTAL}\n" + HEADER.format(name=name) + A.text() + TB.text() + FOOTER.format(name=name)

if __name__ == "__main__":
    open("rec.s", "w").write(gen_standalone())
```

```python
MB = 1 << 20
WS_KX = 0
WS_VX = 16 * MB
WS_Q = 32 * MB
WS_OX = 48 * MB
WS_ST = 64 * MB
WS_KV = 65 * MB
WS_INBOX = 73 * MB
WS_MEMX = 74 * MB
WS_FLAGS = 75 * MB
FL_P1 = 0
FL_P1B = 65536
FL_M1 = 131072
FL_M2 = FL_M1 + 8192
FL_M3 = FL_M2 + 4096
FL_MINI = 147456
FL_TOTAL = 163840
WS_RKEY = 76 * MB
WS_G = WS_RKEY + 8192
WS_IDX = WS_G + 16384
WS_BSEL = WS_IDX + 1024
WS_YP = WS_BSEL + 8192
WS_P2 = 77 * MB
WS_DBG = 80 * MB

L_MEM = 0
L_KX = 8192
L_VX = 24576
L_QK = 40960
L_O = 45056
L_X = 47104
L_WO = 49152
L_STG = 32768
LDS_TOTAL = 163840

def arow(i):
    return 2 * (i >> 2) + (i & 1), (i >> 1) & 1

def dslot(t, half, gA, j):
    return 64 * t + 32 * half + 16 * (j >> 2) + 4 * gA + (j & 3)

def es(u, g, idx):
    return 32 * u + 16 * (g >> 1) + 8 * (idx >> 2) + 4 * (g & 1) + (idx & 3)

def keyslot(g, idx):
    return 16 * (idx >> 2) + 4 * g + (idx & 3)

assert sorted(dslot(t, h, g, j) for t in range(8) for h in range(2) for g in range(4) for j in range(8)) == list(range(512))
assert sorted(es(u, g, i) for u in range(4) for g in range(4) for i in range(8)) == list(range(128))

DBG_XCC = 0
DBG_OVF = 32
DBG_INIT = 68
DBG_XCC0 = 128
DBG_RECINIT = 132
```

```python
from asmlib import *
from layout import *
import gen_rec, gen_p1, gen_p2
from gen_rec import *
NAME = "gated_mix__memory_aug_recurrent_mem_tr__moe_arch_mod__prompt_kernel"

FAKE_XCC = ""
def dispatcher(A, roles):
    A(f"""
    s_cmp_ge_u32 s2, 256
    s_cbranch_scc1 L_end
    s_load_dwordx4 s[4:7], s[0:1], 0
    s_load_dwordx4 {s(S_WQ,4)}, s[0:1], 16
    s_load_dwordx4 {s(S_WV,4)}, s[0:1], 32
    s_load_dwordx2 {s(S_DBG,2)}, s[0:1], 112
    s_load_dwordx2 {s(S_WS,2)}, s[0:1], 120
    s_getreg_b32 s3, hwreg(HW_REG_XCC_ID)
    s_and_b32 s3, s3, 7
    {FAKE_XCC}
    s_lshl_b32 {s(S_T0)}, s3, 2
    s_cmp_eq_u32 s3, 0
    s_cselect_b32 {s(S_T0)}, {DBG_XCC0}, {s(S_T0)}
    v_mov_b32 v2, {s(S_T0)}
    v_mov_b32 v3, 1
    v_mov_b32 v5, 0
    s_waitcnt lgkmcnt(0)
    v_cmp_eq_u32 vcc, 0, v0
    s_and_saveexec_b64 {s(S_SRC,2)}, vcc
    s_cbranch_execz L_tk
    global_atomic_add v4, v2, v3, {s(S_DBG,2)} sc0
    s_waitcnt vmcnt(0)
    ds_write_b32 v5, v4
    s_waitcnt lgkmcnt(0)
    L_tk:
    s_mov_b64 exec, -1
    s_barrier
    ds_read_b32 v4, v5
    s_waitcnt lgkmcnt(0)
    v_readfirstlane_b32 {s(S_T1)}, v4
    s_barrier
    s_cmp_lt_u32 {s(S_T1)}, 32
    s_cbranch_scc1 L_roles
    """)
    A(f"""v_mov_b32 v2, {DBG_OVF}
    v_cmp_eq_u32 vcc, 0, v0
    s_and_saveexec_b64 {s(S_SRC,2)}, vcc
    s_cbranch_execz L_tk2
    global_atomic_add v4, v2, v3, {s(S_DBG,2)} sc0
    s_waitcnt vmcnt(0)
    ds_write_b32 v5, v4
    s_waitcnt lgkmcnt(0)
    L_tk2:
    s_mov_b64 exec, -1
    s_barrier
    ds_read_b32 v4, v5
    s_waitcnt lgkmcnt(0)
    v_readfirstlane_b32 {s(S_T2)}, v4
    s_barrier
    s_mov_b32 {s(S_SPIN)}, 0""")
    A.label("L_ovf_w")
    spin_guard(A)
    load_counters(A, 6, 70)
    A(f"""s_cmp_ge_u32 {s(S_T0)}, 256
    s_cbranch_scc0 L_ovf_w""")
    for x in range(8):
        A(f"""s_min_u32 {s(S_T0)}, s{70+x}, 32
        s_sub_u32 {s(S_T3)}, 32, {s(S_T0)}
        s_mov_b32 s3, {x}
        s_add_u32 {s(S_T1)}, {s(S_T0)}, {s(S_T2)}
        s_cmp_lt_u32 {s(S_T2)}, {s(S_T3)}
        s_cbranch_scc1 L_roles
        s_sub_u32 {s(S_T2)}, {s(S_T2)}, {s(S_T3)}""")
    A("s_branch L_end")
    A.label("L_roles")
    gen_rec.trace(A, 0, 6)
    A(f"s_cmp_eq_u32 s3, 0")
    A(f"s_cbranch_scc1 {'L_role_rec' if 'rec' in roles else 'L_end'}")
    A(f"s_cmp_le_u32 s3, 4")
    A(f"s_cbranch_scc1 {'L_role_p1' if 'p1' in roles else 'L_end'}")
    A(f"s_branch {'L_role_p2' if 'p2' in roles else 'L_end'}")

def gen(roles=("rec", "p1", "p2"), n_init=96, dbg=False, timing=False, stamps=False, name=NAME):
    A = Asm(); TB = Tables()
    dispatcher(A, roles)
    if "p1" in roles:
        A.label("L_role_p1")
        A(f"""s_sub_u32 {s(S_T0)}, s3, 1
        s_lshl_b32 {s(S_T0)}, {s(S_T0)}, 3
        s_and_b32 {s(S_H)}, {s(S_T1)}, 7
        s_add_u32 {s(S_H)}, {s(S_H)}, {s(S_T0)}
        s_lshr_b32 {s(gen_p1.S_TBK)}, {s(S_T1)}, 3""")
        if n_init:
            A(f"""s_cmp_eq_u32 {s(gen_p1.S_TBK)}, 0
            s_cbranch_scc1 L_p1
            s_sub_u32 {s(S_T3)}, {s(gen_p1.S_TBK)}, 1
            s_lshl_b32 {s(S_T3)}, {s(S_T3)}, 5
            s_add_u32 {s(S_T3)}, {s(S_T3)}, {s(S_H)}""")
            gen_p2.gen_init(A, s(S_T3), 96)
        gen_p1.gen_p1(A, TB, n_init)
    if "p2" in roles:
        A.label("L_role_p2")
        A(f"s_sub_u32 {s(gen_p2.S_GRP)}, s3, 5")
        A(f"s_mov_b32 {s(gen_p2.S_TK)}, {s(S_T1)}")
        gen_p2.gen_p2(A, TB, n_init)
    if "rec" in roles:
        A.label("L_role_rec")
        A(f"s_mov_b32 {s(S_H)}, {s(S_T1)}")
        A(f"s_mov_b32 {s(S_MODE)}, 0")
        gen_prologue(A, TB)
        gen_loop(A, dbg, timing, stamps, n_init)
    A.label("L_end")
    A("s_waitcnt vmcnt(0)")
    A("s_endpgm")
    return f"; @launch grid=(256,1,1) block=(256,1,1) lds={LDS_TOTAL}\n" + HEADER.format(name=name) + A.text() + TB.text() + FOOTER.format(name=name)

if __name__ == "__main__":
    open("main.s", "w").write(gen(name="main_kernel"))
    hdr = open("gated_mix__memory_aug_recurrent_mem_tr__moe_arch_mod__prompt.s.ref").read().split("; @launch")[0]
    open("gated_mix__memory_aug_recurrent_mem_tr__moe_arch_mod__prompt.s", "w").write(hdr + gen())
```

```python
from asmlib import *
from layout import *
from gen_rec import add64, f32bits, dec, spin_guard, S_WQ, S_WK, S_WV, S_WS, S_DBG, S_H, S_W, S_SPIN, S_T0, S_T1, S_T2, S_T3, S_SRC, S_TB, LT
import math
import gen_rec
S_X = 4
S_TBK = 22
S_IT = 23
S_C = 24
S_SEG = 25
S_O = 28
ACC = 64
XF = 0
WF = 128
NRING = 8
LEADC = 4
from gen_p2 import wait_counter
from gen_rec import code_prefetch

def gen_p1(A, TB, n_init):
    A.comment("=== phase 1 role ===")
    A.label("L_p1")
    def f_xo(tid):
        w, l = tid >> 6, tid & 63
        return (32 * w + (l & 31)) * 1024 + (l >> 5) * 16
    def f_dma(tid):
        w, l, n, g = dec(tid)
        return (16 * w + g) * 8192 + ((n ^ (g << 2)) * 16)
    def f_tr(ft):
        def f(tid):
            w, l, n, G = dec(tid); r, c = n >> 2, n & 3
            return (8 * (G >> 1) + r) * 256 + ((ft ^ r) * 64) + (G & 1) * 32 + 8 * c
        return f
    def f_ko(tid):
        l = tid & 63; tok, hi = l & 31, l >> 5
        return (tid >> 6) * 32 * 8192 + (tok >> 4) * 4096 + (hi * 16 + (tok & 15)) * 16
    def f_vo(tid):
        l = tid & 63; e, hi = l & 31, l >> 5
        return (tid >> 6) * 32 * 8192 + (e >> 4) * 1024 + (hi * 16 + (e & 15)) * 16
    g0 = TB.add([f_xo, f_dma, f_ko, f_vo])
    g1 = TB.add([f_tr(0), f_tr(1), f_tr(2), f_tr(3)])
    g2 = TB.add([lambda t: (t >> 6) * 32 * 8192 + (t & 63) * 16, lambda t: (t & 31) - 4 * ((t >> 5) & 1),
                 lambda t: (t >> 6) * 32 * 128 + (t & 31) * 4, lambda t: 0])
    V_XO, V_DMA, V_KO, V_VO, V_TR, V_LIN, V_THR, V_STO, V_Z = 4, 5, 6, 7, 8, 12, 13, 14, 15
    V_TRB = 16
    A(f"""v_lshrrev_b32 v1, 6, v0
    v_lshlrev_b32 v2, 4, v0
    s_nop 0
    v_readfirstlane_b32 {s(S_W)}, v1""")
    TB.base(A, S_TB)
    for g, r in [(g0, 4), (g1, 8), (g2, 12)]: TB.load(A, g, r, 2, S_TB, S_SRC)
    A(f"s_mov_b32 {s(S_C)}, {f32bits(128**-0.5 * math.log2(math.e)):#x}")
    A(f"s_mov_b32 {s(S_IT)}, 0")
    A(f"s_lshl_b32 {s(S_T0)}, {s(S_H)}, 8")
    for b in (S_WQ, S_WK, S_WV): add64(A, b, b, s(S_T0))
    code_prefetch(A, "L_p1_task", 6, 26, 21)
    A("s_waitcnt vmcnt(1)")
    gen_rec.trace(A, 1, 32)
    if gen_rec.TRACE:
        A(f"v_mov_b32 v33, {s(S_TBK)}")
        A(f"global_store_dword v32, v33, {s(S_WS,2)} offset:4")

    if n_init:
        def f_md(tid):
            w, l = tid >> 6, tid & 63
            return (128 * w + (l >> 3)) * 8192 + (l & 7) * 16
        def f_mt(tid):
            w, l, n, G = dec(tid); r, c = n >> 2, n & 3
            return (8 * (G >> 1) + r) * 128 + (G & 1) * 32 + 8 * c
        gm = TB.add([f_md, f_mt, lambda t: 0, lambda t: 0])
        TB.load(A, gm, 20, 2, S_TB, S_SRC)
        V_MD, V_MT = 20, 21
        S_MB = 40
        A(f"""s_and_b32 {s(S_T0)}, {s(S_TBK)}, 1
        s_lshl_b32 {s(S_T0)}, {s(S_T0)}, 7
        s_cmp_lt_u32 {s(S_TBK)}, 2
        s_cselect_b32 {s(S_MB)}, {s(S_WK)}, {s(S_WV)}
        s_cselect_b32 {s(S_MB+1)}, {s(S_WK+1)}, {s(S_WV+1)}""")
        add64(A, S_MB, S_MB, s(S_T0))
        A(f"s_lshl_b32 {s(S_T2)}, {s(S_W)}, 14")
        A("s_waitcnt vmcnt(0)")
        for i in range(16):
            A(f"s_add_u32 m0, {s(S_T2)}, {i*1024}")
            A("s_nop 0")
            A(f"global_load_lds_dwordx4 v{V_MD}, {s(S_MB,2)}")
            add64(A, S_MB, S_MB, 8 * 8192)
        for ks in range(32): A(f"global_load_dwordx4 {a(4*ks,4)}, {v(V_XO)}, {s(S_X,2)} offset:{32*ks}")
        add64(A, S_MB, S_X, 131072)
        A("s_waitcnt vmcnt(32)")
        A("s_barrier")
        for ks in range(24): A(f"global_load_dwordx4 {a(128+4*ks,4)}, {v(V_XO)}, {s(S_MB,2)} offset:{32*ks}")
        macc = lambda sg, ft: v(ACC + 32 * sg + 16 * ft, 16)
        for isv in range(2):
            lab = A.uid("Lmi")
            if isv == 0:
                A(f"s_cmp_lt_u32 {s(S_TBK)}, 2")
                A(f"s_cbranch_scc0 L_mini_v")
            else:
                A.label("L_mini_v")
            for sg in range(2):
                if sg == 0:
                    A("s_waitcnt vmcnt(24)")
                    for ks in range(24, 32): A(f"global_load_dwordx4 {a(128+4*ks,4)}, {v(V_XO)}, {s(S_MB,2)} offset:{32*ks}")
                else:
                    A("s_waitcnt vmcnt(0)")
                lt = LT(A)
                seq = [(ks, ft) for ks in range(32) for ft in range(2)]
                def rd(i):
                    ks, ft = seq[i]; r = 32 + 4 * (i % 8)
                    for qd in range(2):
                        A(lt.op(f"r{i}", f"ds_read_b64_tr_b16 {v(r+2*qd,2)}, v{V_MT} offset:{(16*ks+4*qd)*128+ft*64}"))
                for i in range(6): rd(i)
                for i, (ks, ft) in enumerate(seq):
                    if i + 6 < len(seq): rd(i + 6)
                    w_ = lt.wait(f"r{i}")
                    if w_: A(w_)
                    wf, xf = v(32 + 4 * (i % 8), 4), a(128 * sg + 4 * ks, 4)
                    cin = "0" if ks == 0 else macc(sg, ft)
                    if isv == 0: A(f"v_mfma_f32_32x32x16_bf16 {macc(sg,ft)}, {wf}, {xf}, {cin}")
                    else: A(f"v_mfma_f32_32x32x16_bf16 {macc(sg,ft)}, {xf}, {wf}, {cin}")
            A("s_nop 7")
            A("s_nop 3")
            for sg in range(2):
                A(f"""s_add_u32 {s(S_T0)}, {s(S_H)}, {128*sg}
                s_lshl_b32 {s(S_T0)}, {s(S_T0)}, 13
                s_and_b32 {s(S_T1)}, {s(S_TBK)}, 1
                s_lshl_b32 {s(S_T1)}, {s(S_T1)}, {11 if isv == 0 else 12}
                s_add_u32 {s(S_T0)}, {s(S_T0)}, {s(S_T1)}
                s_add_u32 {s(S_T0)}, {s(S_T0)}, {WS_VX if isv else WS_KX}""")
                add64(A, S_MB, S_WS, s(S_T0))
                for ft in range(2):
                    b = ACC + 32 * sg + 16 * ft
                    if isv == 0:
                        for k in range(16): A(f"v_mul_f32 v{b+k}, {s(S_C)}, v{b+k}")
                        for k in range(8): A(f"v_cvt_pk_bf16_f32 v{b+k}, v{b+2*k}, v{b+2*k+1}")
                        for f in range(2): A(f"global_store_dwordx4 {v(V_KO)}, {v(b+4*f,4)}, {s(S_MB,2)} offset:{ft*1024+f*512} sc1")
                    else:
                        for k, q in enumerate((0, 2, 1, 3)):
                            A(f"v_cvt_pk_bf16_f32 v{b+2*k}, v{b+4*q}, v{b+4*q+1}")
                            A(f"v_cvt_pk_bf16_f32 v{b+2*k+1}, v{b+4*q+2}, v{b+4*q+3}")
                        for f in range(2): A(f"global_store_dwordx4 {v(V_VO)}, {v(b+4*f,4)}, {s(S_MB,2)} offset:{ft*2048+f*512} sc1")
            if isv == 0: A("s_branch L_mini_done")
        A.label("L_mini_done")
        A(f"""v_mov_b32 v32, -1
        v_mov_b32 v33, -1
        v_mov_b32 v34, -1
        v_mov_b32 v35, -1
        v_and_b32 v36, 0x3ff, v12
        s_lshl_b32 {s(S_T0)}, {s(S_W)}, 5
        s_add_u32 {s(S_T0)}, {s(S_T0)}, {s(S_H)}
        s_lshl_b32 {s(S_T0)}, {s(S_T0)}, 12
        s_lshl_b32 {s(S_T1)}, {s(S_TBK)}, 10
        s_add_u32 {s(S_T0)}, {s(S_T0)}, {s(S_T1)}
        s_add_u32 {s(S_T0)}, {s(S_T0)}, {WS_KV}""")
        add64(A, S_MB, S_WS, s(S_T0))
        A(f"global_store_dwordx4 v36, v[32:35], {s(S_MB,2)} sc1")
        add64(A, S_MB, S_MB, 128 * 4096)
        A(f"global_store_dwordx4 v36, v[32:35], {s(S_MB,2)} sc1")
        A(f"""s_waitcnt vmcnt(0)
        s_barrier
        s_cmp_eq_u32 {s(S_W)}, 0
        s_cbranch_scc0 L_mini_nf""")
        wait_counter(A, DBG_INIT, n_init, 60, V_Z)
        A(f"""s_lshl_b32 {s(S_T0)}, {s(S_H)}, 2
        s_add_u32 {s(S_T0)}, {s(S_T0)}, {s(S_TBK)}
        s_lshl_b32 {s(S_T0)}, {s(S_T0)}, 7
        s_add_u32 {s(S_T0)}, {s(S_T0)}, {WS_FLAGS+FL_MINI}
        v_mov_b32 v60, {s(S_T0)}
        v_mov_b32 v61, 1
        global_store_dword v60, v61, {s(S_WS,2)} sc1""")
        A.label("L_mini_nf")
        gen_rec.trace(A, 3 + 0, 32) if False else None
    A.label("L_p1_task")
    S_XB = 38
    A(f"s_lshl_b32 {s(S_T0)}, {s(S_TBK)}, 17")
    add64(A, S_XB, S_X, s(S_T0))
    def dma(c):
        buf = c % 3
        L = []
        L.append("\n".join(f"global_load_dwordx4 {a(XF+4*ks,4)}, {v(V_XO)}, {s(S_XB,2)} offset:{32*ks}" for ks in range(4*c, 4*c+4)) + f"\ns_lshl_b32 {s(S_T2)}, {s(S_W)}, 12")
        L.append(f"s_add_u32 {s(S_T2)}, {s(S_T2)}, {buf*49152}")
        for m, b in enumerate((S_WQ, S_WK, S_WV)):
            for i in range(4):
                L.append(f"s_add_u32 {s(S_SRC)}, {s(b)}, {(64*c+4*i)*8192}")
                L.append(f"s_addc_u32 {s(S_SRC+1)}, {s(b+1)}, 0")
                L.append(f"s_add_u32 m0, {s(S_T2)}, {m*16384+i*1024}")
                L.append(f"s_nop 0\nglobal_load_lds_dwordx4 {v(V_DMA)}, {s(S_SRC,2)}" if "nodma" not in gen_rec.EXP else "s_nop 0")
        return L
    for c in range(2):
        for x in dma(c): A(x)
    A(f"""s_lshl_b32 {s(S_T0)}, {s(S_TBK)}, 7
    s_add_u32 {s(S_T0)}, {s(S_T0)}, {s(S_H)}
    s_lshl_b32 {s(S_T1)}, {s(S_T0)}, 13""")
    add64(A, S_O, S_WS, s(S_T1))
    add64(A, S_O + 2, S_O, WS_VX + 4096)
    add64(A, S_O + 4, S_O, WS_Q + 4096)
    add64(A, S_O + 6, S_O, WS_OX + 4096)
    A(f"s_lshl_b32 {s(S_T1)}, {s(S_T0)}, 7")
    A(f"s_add_u32 {s(S_T1)}, {s(S_T1)}, {WS_ST}")
    add64(A, S_O + 8, S_WS, s(S_T1))
    acc = lambda t: v(ACC + 16 * t, 16)
    A(f"""s_lshl_b32 {s(S_T1)}, {s(S_W)}, 5
    s_add_u32 {s(S_T1)}, {s(S_T1)}, {s(S_T0)}
    s_lshl_b32 {s(S_T1)}, {s(S_T1)}, 12
    s_add_u32 {s(S_T1)}, {s(S_T1)}, {WS_KV}""")
    add64(A, S_O + 12, S_WS, s(S_T1))
    for c in range(8):
        buf = c % 3
        for ft in range(4): A(f"v_add_u32 v{V_TRB+ft}, {buf*49152}, v{V_TR+ft}")
        A("s_waitcnt vmcnt(16)" if c < 7 else "s_waitcnt vmcnt(0)")
        A("s_barrier")
        if "ctrace" in gen_rec.EXP:
            ln = A.uid("Lct")
            A(f"s_cmp_eq_u32 {s(S_IT)}, 0")
            A(f"s_cbranch_scc0 {ln}")
            A("s_add_u32 s2, s2, 256")
            gen_rec.trace(A, c, 60)
            A("s_sub_u32 s2, s2, 256")
            A.label(ln)
        if False:
            ln = A.uid("Lld")
            A(f"""s_cmp_eq_u32 {s(S_TBK)}, 0
            s_cbranch_scc0 {ln}
            s_cmp_eq_u32 {s(S_W)}, 3
            s_cbranch_scc0 {ln}""")
            wait_counter(A, DBG_INIT, n_init, 60, V_Z)
            A(f"""s_lshl_b32 {s(S_T0)}, {s(S_H)}, 7
            s_add_u32 {s(S_T0)}, {s(S_T0)}, {WS_FLAGS+FL_P1+64}
            v_mov_b32 v60, {s(S_T0)}
            v_mov_b32 v61, 1
            global_store_dword v60, v61, {s(S_WS,2)} sc1""")
            A.label(ln)
        lt = LT(A)
        seq = [(kk, t) for kk in range(4) for t in range(12)]
        def rd(i):
            kk, t = seq[i]; m, ft = t >> 2, t & 3
            r = WF + 4 * (i % NRING)
            for qd in range(2 if "nord" not in gen_rec.EXP else 0):
                A(lt.op(f"r{i}", f"ds_read_b64_tr_b16 {a(r+2*qd,2)}, v{V_TRB+ft} offset:{m*16384+(16*kk+4*qd)*256}"))
        PRE = NRING - 2
        for i in range(PRE): rd(i)
        dm = dma(c + 2) if c + 2 < 8 else []
        units = [dm[:6]] + [dm[2 + 4 * k: 6 + 4 * k] for k in range(1, 12)] if dm else []
        for i, (kk, t) in enumerate(seq):
            if i + PRE < len(seq): rd(i + PRE)
            w_ = lt.wait(f"r{i}") if "nord" not in gen_rec.EXP else None
            if w_: A(w_)
            ks = 4 * c + kk
            wf, xf = a(WF + 4 * (i % NRING), 4), a(XF + 4 * ks, 4)
            cin = "0" if ks == 0 else acc(t)
            if "nomf" in gen_rec.EXP and ks > 0: pass
            elif t < 8: A(f"v_mfma_f32_32x32x16_bf16 {acc(t)}, {wf}, {xf}, {cin}")
            else: A(f"v_mfma_f32_32x32x16_bf16 {acc(t)}, {xf}, {wf}, {cin}")
            if i % 4 == 1 and units and i // 4 < len(units):
                for x in units[i // 4]: A(x)
    A(f"s_add_u32 {s(S_T3)}, {s(S_IT)}, 8")
    gen_rec.trace(A, s(S_T3), 32)
    A("s_nop 7")
    A("s_nop 3")
    SA, PF = 32, 48
    def packq(b, d):
        for k, q in enumerate((0, 2, 1, 3)):
            A(f"v_cvt_pk_bf16_f32 v{d+2*k}, v{b+4*q}, v{b+4*q+1}")
            A(f"v_cvt_pk_bf16_f32 v{d+2*k+1}, v{b+4*q+2}, v{b+4*q+3}")
    def flag(which, first_wait):
        ln = A.uid("Lp1n")
        A(f"""s_waitcnt vmcnt(0)
        s_barrier
        s_cmp_eq_u32 {s(S_W)}, 0
        s_cbranch_scc0 {ln}""")
        if first_wait:
            A(f"""s_cmp_eq_u32 {s(S_IT)}, 0
            s_cbranch_scc0 L_p1_fl
            s_mov_b32 {s(S_SPIN)}, 0""")
            A.label("L_p1_iw")
            A(f"global_load_dword v60, {v(V_Z)}, {s(S_DBG,2)} offset:{DBG_INIT} sc1")
            spin_guard(A)
            A(f"""s_waitcnt vmcnt(0)
            v_readfirstlane_b32 {s(S_T0)}, v60
            s_cmp_ge_u32 {s(S_T0)}, {n_init}
            s_cbranch_scc0 L_p1_iw""")
            A.label("L_p1_fl")
        A(f"""s_lshl_b32 {s(S_T0)}, {s(S_TBK)}, 5
        s_add_u32 {s(S_T0)}, {s(S_T0)}, {s(S_H)}
        s_lshl_b32 {s(S_T0)}, {s(S_T0)}, 7
        s_add_u32 {s(S_T0)}, {s(S_T0)}, {WS_FLAGS+which}
        v_mov_b32 v60, {s(S_T0)}
        v_mov_b32 v61, 1
        global_store_dword v60, v61, {s(S_WS,2)} sc1""")
        A.label(ln)
    A("""v_mov_b32 v32, -1
    v_mov_b32 v33, -1
    v_mov_b32 v34, -1
    v_mov_b32 v35, -1
    v_and_b32 v36, 0x3ff, v12""")
    if n_init:
        A(f"s_cmp_lt_u32 {s(S_TBK)}, 2")
        A("s_cbranch_scc1 L_p1_nosent")
    for k in range(4): A(f"global_store_dwordx4 v36, v[32:35], {s(S_O+12,2)} offset:{1024*k} sc1")
    A.label("L_p1_nosent")
    for t in range(4):
        b = ACC + 64 + 16 * t
        for k in range(16): A(f"v_mul_f32 v{b+k}, {s(S_C)}, v{b+k}")
        for k in range(8): A(f"v_cvt_pk_bf16_f32 v{b+k}, v{b+2*k}, v{b+2*k+1}")
        for f in range(2):
            A(f"global_store_dwordx4 {v(V_KO)}, {v(b+4*f,4)}, {s(S_O,2)} offset:{t*1024+f*512} sc1")
    for t in range(4):
        b = ACC + 128 + 16 * t
        packq(b, b)
        for f in range(2): A(f"global_store_dwordx4 {v(V_VO)}, {v(b+4*f,4)}, {s(S_O+2,2)} offset:{t*2048+f*512-4096} sc1")
    for t in range(4):
        b = ACC + 16 * t
        for k in range(8): A(f"v_cvt_pk_bf16_f32 v{b+k}, v{b+2*k}, v{b+2*k+1}")
        for f in range(2):
            A(f"v_mfma_f32_32x32x16_bf16 {v(SA,16)}, {v(ACC+64+16*t+4*f,4)}, {v(b+4*f,4)}, {'0' if t == 0 and f == 0 else v(SA,16)}")
    flag(FL_P1, True)
    A(f"s_add_u32 {s(S_T3)}, {s(S_IT)}, 12")
    gen_rec.trace(A, s(S_T3), 60)
    for t in range(4):
        b = ACC + 16 * t
        for f in range(2): A(f"global_store_dwordx4 {v(V_LIN)}, {v(b+4*f,4)}, {s(S_O+4,2)} offset:{(2*t+f)*1024-4096} sc1")
    NEG, m, t1, l = 56, 57, 58, 59
    A(f"v_mov_b32 v{NEG}, 0xf149f2ca")
    for r in range(16):
        key = (r & 3) + 8 * (r >> 2)
        A(f"v_cmp_le_i32 vcc, {key}, {v(V_THR)}")
        A(f"v_cndmask_b32 v{SA+r}, v{NEG}, v{SA+r}, vcc")
    A(f"v_max3_f32 v{m}, v{SA}, v{SA+1}, v{SA+2}")
    for r in range(3, 15, 2): A(f"v_max3_f32 v{m}, v{m}, v{SA+r}, v{SA+r+1}")
    A(f"""v_max_f32 v{m}, v{m}, v{SA+15}
    v_mov_b32 v{t1}, v{m}
    v_permlane32_swap_b32 v{m}, v{t1}
    v_max_f32 v{m}, v{m}, v{t1}""")
    for r in range(16): A(f"v_sub_f32 v{SA+r}, v{SA+r}, v{m}")
    for r in range(16): A(f"v_exp_f32 v{SA+r}, v{SA+r}")
    packq(SA, PF)
    for t in range(4):
        b = ACC + 128 + 16 * t
        for f in range(2):
            A(f"v_mfma_f32_32x32x16_bf16 {acc(t)}, {v(b+4*f,4)}, {v(PF+4*f,4)}, {'0' if f == 0 else acc(t)}")
    A(f"v_add_f32 v{l}, v{SA}, v{SA+1}")
    for r in range(2, 16): A(f"v_add_f32 v{l}, v{l}, v{SA+r}")
    A(f"""v_mov_b32 v{t1}, v{l}
    v_permlane32_swap_b32 v{l}, v{t1}
    v_add_f32 v{l}, v{l}, v{t1}
    v_log_f32 v{t1}, v{l}
    v_rcp_f32 v{l}, v{l}
    v_add_f32 v{t1}, v{t1}, v{m}
    global_store_dword {v(V_STO)}, v{t1}, {s(S_O+8,2)} sc1""")
    for t in range(4):
        b = ACC + 16 * t
        for k in range(16): A(f"v_mul_f32 v{b+k}, v{b+k}, v{l}")
        for k in range(8): A(f"v_cvt_pk_bf16_f32 v{b+k}, v{b+2*k}, v{b+2*k+1}")
        for f in range(2): A(f"global_store_dwordx4 {v(V_LIN)}, {v(b+4*f,4)}, {s(S_O+6,2)} offset:{(2*t+f)*1024-4096} sc1")
    flag(FL_P1B, False)
    A.label("L_p1_next")
    A(f"s_add_u32 {s(S_T3)}, {s(S_IT)}, 4")
    gen_rec.trace(A, s(S_T3), 32)
    A(f"""s_add_u32 {s(S_TBK)}, {s(S_TBK)}, 4
    s_add_u32 {s(S_IT)}, {s(S_IT)}, 1
    s_cmp_lt_u32 {s(S_IT)}, 4
    s_cbranch_scc1 L_p1_task
    s_branch L_end""")
```

```python
from asmlib import *
from layout import *
import gen_rec
from gen_rec import add64, f32bits, dec, spin_guard, S_WO, S_WS, S_DBG, S_H, S_W, S_SPIN, S_T0, S_T1, S_T2, S_T3, S_SRC, S_TB, LT
import math
S_X = 4
S_GRP, S_KS, S_NS, S_TK = 22, 23, 24, 25
S_C = 26
S_SEG = 28
S_PH = 29
S_OUT, S_WR, S_WG, S_WU, S_WD, S_GW = 30, 32, 34, 36, 38, 40
S_IDX = 42
S_RS = 66
S_B0, S_B1, S_B2, S_B3 = 74, 76, 78, 80
S_PAR = 82
S_FIRST = 83
LOG2E = math.log2(math.e)

def wait_counter(A, off, n, vt, vz):
    l, l2 = A.uid("Lwc"), A.uid("Lwc")
    A(f"s_mov_b32 {s(S_SPIN)}, 0")
    A(f"s_branch {l2}")
    A.label(l)
    A("s_sleep 8")
    A.label(l2)
    A(f"global_load_dword v{vt}, v{vz}, {s(S_DBG,2)} offset:{off} sc1")
    spin_guard(A)
    A(f"""s_waitcnt vmcnt(0)
    v_readfirstlane_b32 {s(S_T0)}, v{vt}
    s_cmp_ge_u32 {s(S_T0)}, {n}
    s_cbranch_scc0 {l}""")

def wait_flags(A, vaddr, vt, sleep=2):
    l, l2 = A.uid("Lwf"), A.uid("Lwf")
    A(f"s_mov_b32 {s(S_SPIN)}, 0")
    A(f"s_branch {l2}")
    A.label(l)
    A(f"s_sleep {sleep}")
    A.label(l2)
    A(f"global_load_dword v{vt}, v{vaddr}, {s(S_WS,2)} sc1")
    spin_guard(A)
    A(f"""s_waitcnt vmcnt(0)
    v_cmp_ne_u32 vcc, 1, v{vt}
    s_cbranch_vccnz {l}""")

def set_flag(A, soff, vt):
    ln = A.uid("Lsf")
    A(f"""s_waitcnt vmcnt(0)
    s_barrier
    s_cmp_eq_u32 {s(S_W)}, 0
    s_cbranch_scc0 {ln}
    v_mov_b32 v{vt}, {soff}
    v_mov_b32 v{vt+1}, 1
    global_store_dword v{vt}, v{vt+1}, {s(S_WS,2)} sc1""")
    A.label(ln)

def rbf(A, d, x):
    A(f"v_cvt_pk_bf16_f32 v{d}, v{x}, v{x}")
    A(f"v_and_b32 v{d}, 0xffff0000, v{d}")

def sigmoid(A, d, x):
    A(f"v_mul_f32 v{d}, {f32bits(-LOG2E):#x}, v{x}")
    A(f"v_exp_f32 v{d}, v{d}")
    A(f"v_add_f32 v{d}, 1.0, v{d}")
    A(f"v_rcp_f32 v{d}, v{d}")

def allreduce(A, op, r, t):
    for c in ("quad_perm:[1,0,3,2]", "quad_perm:[2,3,0,1]", "row_ror:4", "row_ror:8"):
        A(f"{op}_dpp v{t}, v{r}, v{r} {c} row_mask:0xf bank_mask:0xf")
        A(f"v_mov_b32 v{r}, v{t}")
    for p in ("v_permlane16_swap_b32", "v_permlane32_swap_b32"):
        A(f"v_mov_b32 v{t}, v{r}")
        A(f"{p} v{r}, v{t}")
        A(f"{op} v{r}, v{r}, v{t}")

def gen_init(A, idx_sgpr, n_wg):
    A.comment("--- init job")
    A(f"""v_lshlrev_b32 v8, 4, v0
    v_mov_b32 v12, 0
    v_mov_b32 v13, 0
    v_mov_b32 v14, 0
    v_mov_b32 v15, 0
    v_mov_b32 v16, -1
    v_mov_b32 v17, -1
    v_mov_b32 v18, -1
    v_mov_b32 v19, -1""")
    for base, units, reg in ((WS_FLAGS, FL_TOTAL // 4096, 12), (WS_P2, 768, 12)):
        l, le = A.uid("Lin"), A.uid("Lin")
        A(f"s_mov_b32 {s(S_T0)}, {idx_sgpr}")
        A.label(l)
        A(f"""s_cmp_ge_u32 {s(S_T0)}, {units}
        s_cbranch_scc1 {le}
        s_lshl_b32 {s(S_T1)}, {s(S_T0)}, 12
        s_add_u32 {s(S_T1)}, {s(S_T1)}, {base}""")
        add64(A, S_SRC, S_WS, s(S_T1))
        A(f"""global_store_dwordx4 v8, {v(reg,4)}, {s(S_SRC,2)} sc1
        s_add_u32 {s(S_T0)}, {s(S_T0)}, {n_wg}
        s_branch {l}""")
        A.label(le)
    ln = A.uid("Lin")
    A(f"""s_waitcnt vmcnt(0)
    s_barrier
    v_cmp_eq_u32 vcc, 0, v0
    s_and_saveexec_b64 {s(S_SRC,2)}, vcc
    s_cbranch_execz {ln}
    v_mov_b32 v16, 1
    global_atomic_add v12, v16, {s(S_DBG,2)} offset:{DBG_INIT}""")
    A.label(ln)
    A("s_mov_b64 exec, -1")

def gen_m1(A, n_init):
    A.comment("--- M1: router/gate")
    A(f"""s_lshl_b32 {s(S_T3)}, {s(S_GRP)}, 5
    s_add_u32 {s(S_T3)}, {s(S_T3)}, {s(S_TK)}
    s_lshl_b32 {s(S_T0)}, {s(S_T3)}, 15
    s_lshl_b32 {s(S_T1)}, {s(S_W)}, 13
    s_add_u32 {s(S_T0)}, {s(S_T0)}, {s(S_T1)}
    s_add_u32 {s(S_T0)}, {s(S_T0)}, 4096""")
    add64(A, S_B0, S_X, s(S_T0))
    A(f"global_load_dwordx4 v[8:11], v2, {s(S_WR,2)}")
    A(f"global_load_dwordx4 v[12:15], v2, {s(S_GW,2)}")
    for k in range(8): A(f"global_load_dwordx4 {v(64+4*k,4)}, v2, {s(S_B0,2)} offset:{1024*k-4096}")
    A("s_waitcnt vmcnt(8)")
    for j in range(4):
        A(f"v_lshlrev_b32 v{16+2*j}, 16, v{8+j}")
        A(f"v_and_b32 v{17+2*j}, 0xffff0000, v{8+j}")
        A(f"v_lshlrev_b32 v{24+2*j}, 16, v{12+j}")
        A(f"v_and_b32 v{25+2*j}, 0xffff0000, v{12+j}")
    RK, GG = 48, 49
    for k in range(8):
        A(f"s_waitcnt vmcnt({7-k})")
        for j in range(4):
            A(f"v_lshlrev_b32 v{32+2*j}, 16, v{64+4*k+j}")
            A(f"v_and_b32 v{33+2*j}, 0xffff0000, v{64+4*k+j}")
        A(f"v_mul_f32 v40, v32, v16")
        for j in range(1, 8): A(f"v_fmac_f32 v40, v{32+j}, v{16+j}")
        for j in range(8): A(f"v_mul_f32 v{32+j}, v{32+j}, v{24+j}")
        for j in range(4): A(f"v_cvt_pk_bf16_f32 v{32+j}, v{32+2*j}, v{33+2*j}")
        A(f"v_dot2_f32_bf16 v41, v32, {s(S_T2)}, 0" if False else "v_mov_b32 v42, 0x3f803f80")
        A("v_dot2_f32_bf16 v41, v32, v42, 0")
        for j in range(1, 4): A(f"v_dot2_f32_bf16 v41, v{32+j}, v42, v41")
        allreduce(A, "v_add_f32", 40, 43)
        allreduce(A, "v_add_f32", 41, 43)
        A(f"v_cmp_eq_u32 vcc, {k}, v1")
        A(f"v_cndmask_b32 v{RK}, v{RK}, v40, vcc")
        A(f"v_cndmask_b32 v{GG}, v{GG}, v41, vcc")
    A(f"""v_cvt_pk_bf16_f32 v50, v{RK}, v{RK}
    v_and_b32 v50, 0xffff0000, v50
    v_ashrrev_i32 v51, 31, v50
    v_or_b32 v51, 0x80000000, v51
    v_xor_b32 v50, v50, v51
    v_and_b32 v50, 0xffff0000, v50
    s_lshl_b32 {s(S_T0)}, {s(S_T3)}, 5
    s_lshl_b32 {s(S_T1)}, {s(S_W)}, 3
    s_add_u32 {s(S_T0)}, {s(S_T0)}, {s(S_T1)}
    v_add_u32 v52, {s(S_T0)}, v1
    v_sub_u32 v53, 0xffff, v52
    v_or_b32 v50, v50, v53""")
    rbf(A, 54, GG)
    sigmoid(A, 55, 54)
    rbf(A, 54, 55)
    A("v_sub_f32 v55, 1.0, v54")
    rbf(A, 55, 55)
    A(f"""v_lshlrev_b32 v56, 2, v52
    v_add_u32 v56, {WS_RKEY}, v56
    v_lshlrev_b32 v57, 3, v52
    v_add_u32 v57, {WS_G}, v57
    s_mov_b64 exec, 0xff
    global_store_dword v56, v50, {s(S_WS,2)} sc1
    global_store_dwordx2 v57, v[54:55], {s(S_WS,2)} sc1
    s_mov_b64 exec, -1""")
    wait_counter(A, DBG_INIT, n_init, 58, 3)
    A(f"s_lshl_b32 {s(S_T1)}, {s(S_T3)}, 7")
    A(f"s_add_u32 {s(S_T1)}, {s(S_T1)}, {WS_FLAGS+FL_M1}")
    set_flag(A, s(S_T1), 58)

def gen_top8(A, n_init):
    A.comment("--- top8")
    wait_counter(A, DBG_INIT, n_init, 58, 3)
    A(f"v_lshlrev_b32 v8, 7, v1")
    A(f"v_add_u32 v8, {WS_FLAGS+FL_M1}, v8")
    wait_flags(A, 8, 9)
    add64(A, S_B0, S_WS, WS_RKEY + 4096)
    K = 64
    for k in range(8): A(f"global_load_dwordx4 {v(K+4*k,4)}, v2, {s(S_B0,2)} offset:{1024*k-4096} sc1")
    A("s_waitcnt vmcnt(0)")
    A(f"s_mov_b32 {s(S_T1)}, 0")
    for rnd in range(8):
        A(f"v_max3_u32 v8, v{K}, v{K+1}, v{K+2}")
        for j in range(3, 31, 2): A(f"v_max3_u32 v8, v8, v{K+j}, v{K+j+1}")
        A(f"v_max_u32 v8, v8, v{K+31}")
        allreduce(A, "v_max_u32", 8, 9)
        A(f"v_readfirstlane_b32 {s(S_T0)}, v8")
        A(f"s_add_u32 {s(S_T1)}, {s(S_T1)}, {s(S_T0)}")
        A(f"s_mov_b32 {s(S_RS+rnd)}, {s(S_T1)}")
        A(f"s_and_b32 {s(S_T2)}, {s(S_T1)}, 0xffff")
        A(f"s_sub_u32 {s(S_T2)}, 0xffff, {s(S_T2)}")
        A(f"s_and_b32 {s(S_IDX+rnd)}, {s(S_T2)}, 2047")
        if rnd < 7:
            for j in range(32): A(f"v_subrev_u32 v{K+j}, {s(S_T0)}, v{K+j}")

def gen_m2(A, TB, n_init):
    A.comment("--- M2: FFN slice fs = tk (64 cols)")
    def f_dg(tid):
        w, l = tid >> 6, tid & 63
        return (128 * w + (l >> 3)) * 3584 + (l & 7) * 16
    def f_trg(tid):
        w, l, n, g = dec(tid); r, c = n >> 2, n & 3
        return (8 * g + r) * 128 + w * 32 + 8 * c
    def f_trd(tid):
        w, l, n, g = dec(tid); r, c = n >> 2, n & 3
        return (8 * g + r) * 1024 + w * 256 + 8 * c
    def f_hw(tid):
        w, l, n, g = dec(tid); return 131072 + n * 128 + (16 * w + 4 * g) * 2
    g0 = TB.add([f_dg, f_trg, f_trd, f_hw])
    def f_hr(tid):
        w, l, n, g = dec(tid); return 131072 + n * 128 + g * 16
    def f_yo(tid):
        w, l, n, g = dec(tid); return (n & 7) * 2048 + (128 * w + 4 * g) * 4
    g1 = TB.add([f_hr, f_yo, lambda t: ((t & 63) >> 4) * 16, lambda t: t & 7])
    A("v_lshlrev_b32 v4, 4, v0")
    TB.load(A, g0, 16, 4, S_TB, S_SRC)
    TB.load(A, g1, 20, 4, S_TB, S_SRC)
    V_DG, V_TRG, V_TRD, V_HW, V_HR, V_YO, V_G16, V_T7 = range(16, 24)
    A(f"s_lshl_b32 {s(S_T0)}, {s(S_TK)}, 7")
    add64(A, S_B0, S_WG, s(S_T0))
    add64(A, S_B1, S_WU, s(S_T0))
    A(f"s_lshl_b32 {s(S_T2)}, {s(S_W)}, 14")
    A("s_waitcnt vmcnt(0)")
    for m, b in enumerate((S_B0, S_B1)):
        for i in range(16):
            A(f"s_add_u32 m0, {s(S_T2)}, {m*65536+i*1024}")
            A(f"s_nop 0")
            A(f"global_load_lds_dwordx4 v{V_DG}, {s(b,2)}")
            add64(A, b, b, 8 * 3584)
    gen_top8(A, n_init)
    A(f"v_mov_b32 v8, {s(S_IDX)}")
    for k in range(1, 8):
        A(f"v_cmp_eq_u32 vcc, {k}, v{V_T7}")
        A(f"v_mov_b32 v9, {s(S_IDX+k)}")
        A(f"v_cndmask_b32 v8, v8, v9, vcc")
    A(f"v_lshl_add_u32 v8, v8, 10, v{V_G16}")
    XB = 64
    for ks in range(16): A(f"global_load_dwordx4 {v(XB+4*ks,4)}, v8, {s(S_X,2)} offset:{64*ks}")
    A("s_waitcnt vmcnt(0)")
    A("s_barrier")
    AG, AU, WFR = 24, 28, 32
    A(f"v_add_u32 v9, 0x10000, v{V_TRG}")
    for ks in range(16):
        for m, (acc, ad) in enumerate(((AG, V_TRG), (AU, 9))):
            r = WFR + 8 * (ks & 1) + 4 * m
            for qd in range(2): A(f"ds_read_b64_tr_b16 {v(r+2*qd,2)}, v{ad} offset:{(32*ks+4*qd)*128}")
        if ks > 0:
            A("s_waitcnt lgkmcnt(4)")
            for m, acc in enumerate((AG, AU)):
                r = WFR + 8 * ((ks - 1) & 1) + 4 * m
                A(f"v_mfma_f32_16x16x32_bf16 {v(acc,4)}, {v(r,4)}, {v(XB+4*(ks-1),4)}, {'0' if ks == 1 else v(acc,4)}")
    A("s_waitcnt lgkmcnt(0)")
    for m, acc in enumerate((AG, AU)):
        A(f"v_mfma_f32_16x16x32_bf16 {v(acc,4)}, {v(WFR+8+4*m,4)}, {v(XB+60,4)}, {v(acc,4)}")
    A("s_barrier")
    A(f"""s_lshl_b32 {s(S_T0)}, {s(S_TK)}, 16
    s_lshl_b32 {s(S_T2)}, {s(S_W)}, 14
    s_add_u32 {s(S_T0)}, {s(S_T0)}, {s(S_T2)}""")
    add64(A, S_B0, S_WD, s(S_T0))
    for i in range(16):
        A(f"s_add_u32 m0, {s(S_T2)}, {i*1024}")
        A("s_nop 0")
        A(f"global_load_lds_dwordx4 v2, {s(S_B0,2)}")
        add64(A, S_B0, S_B0, 1024)
    for r in range(4):
        rbf(A, AG + r, AG + r)
        sigmoid(A, 48, AG + r)
        A(f"v_mul_f32 v{AG+r}, v{AG+r}, v48")
        rbf(A, AG + r, AG + r)
        rbf(A, AU + r, AU + r)
        A(f"v_mul_f32 v{AG+r}, v{AG+r}, v{AU+r}")
    A(f"""v_cvt_pk_bf16_f32 v48, v{AG}, v{AG+1}
    v_cvt_pk_bf16_f32 v49, v{AG+2}, v{AG+3}
    ds_write_b64 v{V_HW}, v[48:49]
    s_waitcnt vmcnt(0) lgkmcnt(0)
    s_barrier
    ds_read_b128 v[52:55], v{V_HR}
    ds_read_b128 v[56:59], v{V_HR} offset:64""")
    A(f"s_mul_i32 {s(S_T0)}, {s(S_TK)}, 16384")
    A(f"s_add_u32 {s(S_T0)}, {s(S_T0)}, {WS_YP}")
    add64(A, S_B0, S_WS, s(S_T0))
    for T in range(8):
        for kk in range(2):
            for qd in range(2): A(f"ds_read_b64_tr_b16 {v(64+8*T+4*kk+2*qd,2)}, v{V_TRD} offset:{(32*kk+4*qd)*1024+T*32}")
        if T % 2 == 1: A("s_waitcnt lgkmcnt(0)")
    for T in range(8):
        for kk in range(2):
            A(f"v_mfma_f32_16x16x32_bf16 {v(128+4*T,4)}, {v(64+8*T+4*kk,4)}, {v(52+4*kk,4)}, {'0' if kk == 0 else v(128+4*T,4)}")
    for T in range(8): A(f"global_store_dwordx4 v{V_YO}, {v(128+4*T,4)}, {s(S_B0,2)} offset:{64*T} sc1")
    A(f"s_lshl_b32 {s(S_T1)}, {s(S_TK)}, 7")
    A(f"s_add_u32 {s(S_T1)}, {s(S_T1)}, {WS_FLAGS+FL_M2}")
    set_flag(A, s(S_T1), 58)

def gen_m3(A, n_init):
    A.comment("--- M3: rows 2*(tk-28), +1")
    gen_top8(A, n_init)
    A(f"v_min_u32 v8, 27, v1")
    A(f"v_lshlrev_b32 v8, 7, v8")
    A(f"v_add_u32 v8, {WS_FLAGS+FL_M2}, v8")
    wait_flags(A, 8, 9)
    A(f"""s_sub_u32 {s(S_T3)}, {s(S_TK)}, 28
    s_lshl_b32 {s(S_T3)}, {s(S_T3)}, 1
    s_lshr_b32 {s(S_T0)}, {s(S_W)}, 1
    s_add_u32 {s(S_T3)}, {s(S_T3)}, {s(S_T0)}
    s_mov_b32 {s(S_T1)}, {s(S_IDX)}
    s_mov_b32 {s(S_T2)}, {s(S_RS)}""")
    for k in range(1, 8):
        A(f"s_cmp_eq_u32 {s(S_T3)}, {k}")
        A(f"s_cselect_b32 {s(S_T1)}, {s(S_IDX+k)}, {s(S_T1)}")
        A(f"s_cselect_b32 {s(S_T2)}, {s(S_RS+k)}, {s(S_T2)}")
    A(f"""s_and_b32 {s(S_T0)}, {s(S_W)}, 1
    s_lshl_b32 {s(S_T0)}, {s(S_T0)}, 10
    v_add_u32 v8, {s(S_T0)}, v2
    v_lshrrev_b32 v9, 1, v8
    s_lshl_b32 {s(S_T0)}, {s(S_T3)}, 11
    s_add_u32 {s(S_T0)}, {s(S_T0)}, {WS_YP}""")
    add64(A, S_B0, S_WS, s(S_T0))
    for f in range(28):
        A(f"global_load_dwordx4 {v(64+4*f,4)}, v8, {s(S_B0,2)} sc1")
        add64(A, S_B0, S_B0, 16384)
    A(f"s_lshl_b32 {s(S_T0)}, {s(S_T1)}, 10")
    add64(A, S_B1, S_X, s(S_T0))
    A(f"global_load_dwordx2 v[10:11], v9, {s(S_B1,2)}")
    A(f"""s_and_b32 {s(S_T2)}, {s(S_T2)}, 0xffff0000
    v_mov_b32 v12, {s(S_T2)}
    v_ashrrev_i32 v13, 31, v12
    v_not_b32 v13, v13
    v_or_b32 v13, 0x80000000, v13
    v_xor_b32 v12, v12, v13
    v_and_b32 v12, 0xffff0000, v12""")
    sigmoid(A, 13, 12)
    rbf(A, 13, 13)
    A("s_waitcnt vmcnt(0)")
    for f in range(1, 28):
        for r in range(4): A(f"v_add_f32 v{64+r}, v{64+r}, v{64+4*f+r}")
    A("""v_lshlrev_b32 v14, 16, v10
    v_and_b32 v15, 0xffff0000, v10
    v_lshlrev_b32 v16, 16, v11
    v_and_b32 v17, 0xffff0000, v11""")
    for r in range(4):
        rbf(A, 64 + r, 64 + r)
        A(f"v_mul_f32 v{64+r}, v{64+r}, v13")
        rbf(A, 64 + r, 64 + r)
        A(f"v_add_f32 v{64+r}, v{64+r}, v{14+r}")
    A(f"""v_cvt_pk_bf16_f32 v10, v64, v65
    v_cvt_pk_bf16_f32 v11, v66, v67
    s_lshl_b32 {s(S_T0)}, {s(S_T3)}, 10
    s_add_u32 {s(S_T0)}, {s(S_T0)}, {WS_BSEL}""")
    add64(A, S_B0, S_WS, s(S_T0))
    A(f"""global_store_dwordx2 v9, v[10:11], {s(S_B0,2)} sc1
    s_lshl_b32 {s(S_T0)}, {s(S_T3)}, 7
    s_add_u32 {s(S_T0)}, {s(S_T0)}, {WS_IDX}
    v_mov_b32 v12, {s(S_T0)}
    v_mov_b32 v13, {s(S_T1)}
    global_store_dword v12, v13, {s(S_WS,2)} sc1
    s_sub_u32 {s(S_T1)}, {s(S_TK)}, 28
    s_lshl_b32 {s(S_T1)}, {s(S_T1)}, 7
    s_add_u32 {s(S_T1)}, {s(S_T1)}, {WS_FLAGS+FL_M3}""")
    set_flag(A, s(S_T1), 58)

def gen_p2(A, TB, n_init):
    A.comment("=== phase 2 role ===")
    A(f"""s_load_dwordx2 {s(S_OUT,2)}, s[0:1], 104
    s_load_dwordx4 {s(S_WR,4)}, s[0:1], 64
    s_load_dwordx4 {s(S_WU,4)}, s[0:1], 80
    s_load_dwordx2 {s(S_GW,2)}, s[0:1], 96
    v_lshrrev_b32 v4, 6, v0
    v_and_b32 v1, 63, v0
    v_lshlrev_b32 v2, 4, v1
    v_mov_b32 v3, 0
    v_readfirstlane_b32 {s(S_W)}, v4
    s_lshr_b32 {s(S_KS)}, {s(S_TK)}, 2
    s_and_b32 {s(S_NS)}, {s(S_TK)}, 3
    s_mov_b32 {s(S_C)}, {f32bits(128**-0.5 * LOG2E):#x}""")
    TB.base(A, S_TB)
    A(f"""s_lshl_b32 {s(S_T3)}, {s(S_GRP)}, 5
    s_add_u32 {s(S_T3)}, {s(S_T3)}, {s(S_TK)}""")
    gen_init(A, s(S_T3), 96)
    A(f"""s_waitcnt lgkmcnt(0)
    s_cmp_eq_u32 {s(S_GRP)}, 2
    s_cbranch_scc1 L_p2_moe""")
    gen_m1(A, n_init)
    A("s_branch L_p2_main")
    A.label("L_p2_moe")
    A(f"s_cmp_ge_u32 {s(S_TK)}, 28")
    A("s_cbranch_scc1 L_p2_m3")
    gen_m2(A, TB, n_init)
    A("s_branch L_p2_main")
    A.label("L_p2_m3")
    gen_m3(A, n_init)
    A.label("L_p2_main")
    gen_rec.trace(A, 1, 8)
    def f_dw(tid):
        w, l, n, g = dec(tid); return g * 1024 + ((n ^ (g << 2)) * 16)
    def f_tr(dt):
        def f(tid):
            w, l, n, G = dec(tid); r, c = n >> 2, n & 3
            return w * 32768 + (4 * (G >> 1) + r) * 256 + ((dt ^ r) * 64) + (G & 1) * 32 + 8 * c
        return f
    def f_k(tid):
        l = tid & 63; return (l >> 5) * 128 + (l & 7) * 16
    def f_v(tid):
        l = tid & 63; return 2048 + (l & 31) * 16
    g0 = TB.add([f_dw, f_k, f_v, lambda t: (t & 31) * 4])
    g1 = TB.add([f_tr(0), f_tr(1), f_tr(2), f_tr(3)])
    g2 = TB.add([lambda t: (t >> 6) * 16384 + (t & 63) * 16, lambda t: (t >> 6) * 4096 + (t & 63) * 16,
                 lambda t: (t & 31) * 1024 + ((t >> 6) & 1) * 16 + ((t >> 5) & 1) * 8, lambda t: (t & 31) * 8])
    V_DW, V_K, V_V, V_ST, V_TR, V_RW, V_RR, V_XO, V_GO = 4, 5, 6, 7, 8, 12, 13, 14, 15
    A("v_lshlrev_b32 v16, 4, v0")
    A("s_barrier")
    for g, r in ((g0, 4), (g1, 8), (g2, 12)): TB.load(A, g, r, 16, S_TB, S_SRC)
    A(f"""s_lshl_b32 {s(S_H)}, {s(S_KS)}, 2
    s_add_u32 {s(S_H)}, {s(S_H)}, {s(S_W)}
    s_lshl_b32 {s(S_T0)}, {s(S_H)}, 17
    s_lshl_b32 {s(S_T1)}, {s(S_NS)}, 8
    s_add_u32 {s(S_T0)}, {s(S_T0)}, {s(S_T1)}""")
    add64(A, S_B0, S_WO, s(S_T0))
    A(f"s_lshl_b32 {s(S_T2)}, {s(S_W)}, 15")
    A("s_waitcnt vmcnt(0)")
    for i in range(32):
        A(f"s_add_u32 m0, {s(S_T2)}, {i*1024}")
        A("s_nop 0")
        A(f"global_load_lds_dwordx4 v{V_DW}, {s(S_B0,2)}")
        add64(A, S_B0, S_B0, 4096)
    A("s_waitcnt vmcnt(0)")
    WOF = lambda dt, k: a((dt * 8 + k) * 4, 4)
    for dt in range(4):
        for k in range(8):
            for qd in range(2):
                A(f"ds_read_b64_tr_b16 {a((dt*8+k)*4+2*qd,2)}, v{V_TR+dt} offset:{(16*k+8*qd)*256}")
            if k % 4 == 3: A("s_waitcnt lgkmcnt(0)")
    wait_counter(A, DBG_INIT, n_init, 16, 3)
    A(f"""v_and_b32 v16, 3, v1
    s_lshl_b32 {s(S_T0)}, {s(S_H)}, 2
    v_add_u32 v16, {s(S_T0)}, v16
    v_lshlrev_b32 v16, 7, v16
    v_add_u32 v16, {WS_FLAGS+FL_MINI}, v16""")
    wait_flags(A, 16, 17, 8)
    A(f"""s_mov_b32 {s(S_SEG)}, {s(S_GRP)}
    s_mov_b32 {s(S_PAR)}, 0
    s_mov_b32 {s(S_PH)}, 1
    s_mov_b32 {s(S_FIRST)}, 1
    s_barrier""")
    QF, OXP, KF, VF, OA, OUT, SA = 128, 32, 64, 96, 128, 192, 112
    A.label("L_p2_seg")
    A(f"""s_lshr_b32 {s(S_T1)}, {s(S_SEG)}, 2
    s_lshl_b32 {s(S_T1)}, {s(S_T1)}, 5
    s_add_u32 {s(S_T1)}, {s(S_T1)}, {s(S_H)}
    s_lshl_b32 {s(S_T1)}, {s(S_T1)}, 7
    s_add_u32 {s(S_T1)}, {s(S_T1)}, {WS_FLAGS+FL_P1B}
    v_mov_b32 v16, {s(S_T1)}""")
    wait_flags(A, 16, 17, 8)
    A(f"""s_lshl_b32 {s(S_T3)}, {s(S_SEG)}, 5
    s_add_u32 {s(S_T3)}, {s(S_T3)}, {s(S_H)}
    s_lshl_b32 {s(S_T0)}, {s(S_T3)}, 13
    s_add_u32 {s(S_T0)}, {s(S_T0)}, {WS_Q+4096}""")
    add64(A, S_B0, S_WS, s(S_T0))
    add64(A, S_B1, S_B0, WS_OX - WS_Q)
    A(f"s_lshl_b32 {s(S_T0)}, {s(S_T3)}, 7")
    A(f"s_add_u32 {s(S_T0)}, {s(S_T0)}, {WS_ST}")
    add64(A, S_B2, S_WS, s(S_T0))
    A(f"s_lshl_b32 {s(S_T0)}, {s(S_T3)}, 12")
    A(f"s_add_u32 {s(S_T0)}, {s(S_T0)}, {WS_KV}")
    add64(A, S_B3, S_WS, s(S_T0))
    for k in range(8): A(f"global_load_dwordx4 {v(OXP+4*k,4)}, v2, {s(S_B1,2)} offset:{1024*k-4096} sc1")
    for k in range(8): A(f"global_load_dwordx4 {a(QF+4*k,4)}, v2, {s(S_B0,2)} offset:{1024*k-4096} sc1")
    LSE = 18
    A(f"global_load_dword v{LSE}, v{V_ST}, {s(S_B2,2)} sc1")
    A("s_waitcnt vmcnt(9)")
    for j in range(32):
        A(f"v_lshlrev_b32 v{OA+2*j}, 16, v{OXP+j}")
        A(f"v_and_b32 v{OA+2*j+1}, 0xffff0000, v{OXP+j}")
    A(f"s_mov_b32 {s(S_SPIN)}, 0")
    A("s_branch L_p2_kv2")
    A.label("L_p2_kv")
    A("s_sleep 4")
    A.label("L_p2_kv2")
    for k in range(8): A(f"global_load_dwordx4 {v(KF+4*k,4)}, v{V_K}, {s(S_B3,2)} offset:{k*256} sc1")
    for et in range(4): A(f"global_load_dwordx4 {v(VF+4*et,4)}, v{V_V}, {s(S_B3,2)} offset:{et*512} sc1")
    spin_guard(A)
    A("s_waitcnt vmcnt(0)")
    A(f"v_max3_u32 v16, v{KF}, v{KF+4}, v{KF+8}")
    for j in range(3, 11, 2): A(f"v_max3_u32 v16, v16, v{KF+4*j}, v{KF+4*j+4}")
    A(f"""v_max_u32 v16, v16, v{KF+44}
    v_cmp_eq_u32 vcc, -1, v16
    s_cbranch_vccnz L_p2_kv""")
    for k in range(8):
        A(f"v_mfma_f32_32x32x16_bf16 {v(SA,16)}, {v(KF+4*k,4)}, {a(QF+4*k,4)}, {'0' if k == 0 else v(SA,16)}")
    A("v_cmp_lt_u32 vcc, 31, v1")
    for et in range(4):
        A(f"v_cndmask_b32 v{VF+4*et}, v{VF+4*et}, v{VF+4*et+2}, vcc")
        A(f"v_cndmask_b32 v{VF+4*et+1}, v{VF+4*et+1}, v{VF+4*et+3}, vcc")
    m, t1, al, l = 19, 20, 21, 22
    for r in range(4): A(f"v_mul_f32 v{SA+r}, {s(S_C)}, v{SA+r}")
    A(f"""v_max3_f32 v{m}, v{SA}, v{SA+1}, v{SA+2}
    v_max3_f32 v{m}, v{m}, v{SA+3}, v{LSE}
    v_mov_b32 v{t1}, v{m}
    v_permlane32_swap_b32 v{m}, v{t1}
    v_max_f32 v{m}, v{m}, v{t1}""")
    for r in range(4): A(f"v_sub_f32 v{SA+r}, v{SA+r}, v{m}")
    A(f"v_sub_f32 v{al}, v{LSE}, v{m}")
    for r in range(4): A(f"v_exp_f32 v{SA+r}, v{SA+r}")
    A(f"""v_exp_f32 v{al}, v{al}
    v_add_f32 v{l}, v{SA}, v{SA+1}
    v_add_f32 v{t1}, v{SA+2}, v{SA+3}
    v_add_f32 v{l}, v{l}, v{t1}
    v_mov_b32 v{t1}, v{l}
    v_permlane32_swap_b32 v{l}, v{t1}
    v_add_f32 v{l}, v{l}, v{t1}
    v_add_f32 v{l}, v{l}, v{al}
    v_rcp_f32 v{l}, v{l}
    s_nop 0
    v_mul_f32 v{al}, v{al}, v{l}""")
    for r in range(4): A(f"v_mul_f32 v{SA+r}, v{SA+r}, v{l}")
    A(f"v_cvt_pk_bf16_f32 v24, v{SA}, v{SA+1}")
    A(f"v_cvt_pk_bf16_f32 v25, v{SA+2}, v{SA+3}")
    for et in range(4):
        for j in range(16): A(f"v_mul_f32 v{OA+16*et+j}, v{OA+16*et+j}, v{al}")
        A(f"v_mfma_f32_32x32x8_bf16 {v(OA+16*et,16)}, {v(VF+4*et,2)}, v[24:25], {v(OA+16*et,16)}")
    for et in range(4):
        for j in range(8): A(f"v_cvt_pk_bf16_f32 v{OXP+8*et+j}, v{OA+16*et+2*j}, v{OA+16*et+2*j+1}")
        for f in range(2):
            k = 2 * et + f
            for dt in range(4):
                A(f"v_mfma_f32_32x32x16_bf16 {v(OUT+16*dt,16)}, {WOF(dt,k)}, {v(OXP+4*k,4)}, {'0' if k == 0 else v(OUT+16*dt,16)}")
    for dt in range(4):
        for j in range(4): A(f"ds_write_b128 v{V_RW}, {v(OUT+16*dt+4*j,4)} offset:{dt*4096+j*1024}")
    A(f"""s_lshl_b32 {s(S_T0)}, {s(S_GRP)}, 1
    s_add_u32 {s(S_T0)}, {s(S_T0)}, {s(S_PAR)}
    s_lshl_b32 {s(S_T0)}, {s(S_T0)}, 2
    s_add_u32 {s(S_T0)}, {s(S_T0)}, {s(S_NS)}
    s_lshl_b32 {s(S_T0)}, {s(S_T0)}, 17
    s_add_u32 {s(S_T0)}, {s(S_T0)}, {WS_P2}
    s_lshl_b32 {s(S_T1)}, {s(S_W)}, 15
    s_lshl_b32 {s(S_T2)}, {s(S_KS)}, 11
    s_add_u32 {s(S_T1)}, {s(S_T1)}, {s(S_T2)}
    s_add_u32 {s(S_T1)}, {s(S_T1)}, {s(S_T0)}""")
    add64(A, S_B0, S_WS, s(S_T1))
    add64(A, S_B1, S_B0, 16384)
    A(f"""s_lshl_b32 {s(S_T1)}, {s(S_KS)}, 14
    s_lshl_b32 {s(S_T2)}, {s(S_W)}, 10
    s_add_u32 {s(S_T1)}, {s(S_T1)}, {s(S_T2)}
    s_add_u32 {s(S_T1)}, {s(S_T1)}, {s(S_T0)}""")
    add64(A, S_B2, S_WS, s(S_T1))
    A("s_waitcnt lgkmcnt(0)")
    A("s_barrier")
    for sw in range(4):
        for j in range(4): A(f"ds_read_b128 {v(64+16*sw+4*j,4)}, v{V_RR} offset:{sw*16384+j*1024}")
    A("s_waitcnt lgkmcnt(8)")
    for r in range(16): A(f"v_add_f32 v{64+r}, v{64+r}, v{80+r}")
    A("s_waitcnt lgkmcnt(0)")
    for r in range(16): A(f"v_add_f32 v{96+r}, v{96+r}, v{112+r}")
    A("s_barrier")
    for j in range(4):
        for r in range(4): A(f"v_add_f32 v{64+4*j+r}, v{64+4*j+r}, v{96+4*j+r}")
        A(f"v_and_or_b32 v{64+4*j}, v{64+4*j}, -2, {s(S_PH)}")
        A(f"global_store_dwordx4 v2, {v(64+4*j,4)}, {s(S_B0 if j < 2 else S_B1,2)} offset:{(j&1)*1024} sc1")
    A(f"s_cmp_ge_u32 {s(S_W)}, 2")
    A("s_cbranch_scc1 L_p2_next")
    A(f"s_cmp_eq_u32 {s(S_FIRST)}, 0")
    A("s_cbranch_scc1 L_p2_nf")
    A(f"""v_and_b32 v16, 3, v1
    v_lshlrev_b32 v16, 7, v16
    v_add_u32 v16, {WS_FLAGS+FL_M3}, v16""")
    wait_flags(A, 16, 17, 8)
    A(f"""v_and_b32 v16, 7, v1
    v_lshlrev_b32 v16, 7, v16
    v_add_u32 v16, {WS_IDX}, v16
    global_load_dword v17, v16, {s(S_WS,2)} sc1
    s_waitcnt vmcnt(0)""")
    for k in range(8): A(f"v_readlane_b32 {s(S_IDX+k)}, v17, {k}")
    A.label("L_p2_nf")
    A(f"""s_lshl_b32 {s(S_T0)}, {s(S_SEG)}, 15
    s_lshl_b32 {s(S_T1)}, {s(S_NS)}, 8
    s_lshl_b32 {s(S_T2)}, {s(S_KS)}, 5
    s_add_u32 {s(S_T1)}, {s(S_T1)}, {s(S_T2)}
    s_add_u32 {s(S_T0)}, {s(S_T0)}, {s(S_T1)}""")
    add64(A, S_B0, S_X, s(S_T0))
    add64(A, S_B1, S_OUT, s(S_T0))
    A(f"s_lshl_b32 {s(S_T0)}, {s(S_SEG)}, 8")
    A(f"s_add_u32 {s(S_T0)}, {s(S_T0)}, {WS_G}")
    add64(A, S_B3, S_WS, s(S_T0))
    A(f"global_load_dwordx2 v[26:27], v{V_XO}, {s(S_B0,2)}")
    A(f"global_load_dwordx2 v[28:29], v{V_GO}, {s(S_B3,2)} sc1")
    A(f"""s_lshl_b32 {s(S_T0)}, {s(S_SEG)}, 5
    v_and_b32 v16, 31, v1
    v_add_u32 v16, {s(S_T0)}, v16
    v_and_b32 v17, 0x3ff, v{V_XO}
    s_add_u32 {s(S_T1)}, {s(S_T1)}, {WS_BSEL}
    v_add_u32 v17, {s(S_T1)}, v17
    s_waitcnt vmcnt(0)""")
    for k in range(8):
        lk = A.uid("Lsel")
        A(f"v_cmp_eq_u32 vcc, {s(S_IDX+k)}, v16")
        A(f"s_cbranch_vccz {lk}")
        A(f"""s_mov_b64 exec, vcc
        v_add_u32 v23, {k*1024}, v17
        global_load_dwordx2 v[26:27], v23, {s(S_WS,2)} sc1
        s_waitcnt vmcnt(0)
        s_mov_b64 exec, -1""")
        A.label(lk)
    A("""v_lshlrev_b32 v96, 16, v26
    v_and_b32 v97, 0xffff0000, v26
    v_lshlrev_b32 v98, 16, v27
    v_and_b32 v99, 0xffff0000, v27""")
    for r in range(4):
        A(f"v_mul_f32 v{96+r}, v{96+r}, v29")
        rbf(A, 96 + r, 96 + r)
    add64(A, S_B3, S_B2, 8192)
    A(f"s_mov_b32 {s(S_SPIN)}, 0")
    A.label("L_p2_fp")
    for src in range(8):
        A(f"global_load_dwordx4 {v(64+4*src,4)}, v2, {s(S_B2 if src < 2 else S_B3,2)} offset:{src*2048 - (0 if src < 2 else 8192)} sc1" if src < 6 else
          f"global_load_dwordx4 {v(64+4*src,4)}, v30, {s(S_B3,2)} offset:{(src-6)*2048} sc1")
        if src == 0: A("v_add_u32 v30, 4096, v2")
    spin_guard(A)
    A("s_waitcnt vmcnt(0)")
    A(f"v_xor_b32 v16, {s(S_PH)}, v64")
    for src in range(1, 8):
        A(f"v_xor_b32 v17, {s(S_PH)}, v{64+4*src}")
        A("v_or_b32 v16, v16, v17")
    A("""v_and_b32 v16, 1, v16
    v_cmp_ne_u32 vcc, 0, v16
    s_cbranch_vccnz L_p2_fp""")
    for src in range(1, 8):
        for r in range(4): A(f"v_add_f32 v{64+r}, v{64+r}, v{64+4*src+r}")
    for r in range(4):
        rbf(A, 64 + r, 64 + r)
        A(f"v_mul_f32 v{64+r}, v{64+r}, v28")
        rbf(A, 64 + r, 64 + r)
        A(f"v_add_f32 v{64+r}, v{64+r}, v{96+r}")
    A(f"""v_cvt_pk_bf16_f32 v26, v64, v65
    v_cvt_pk_bf16_f32 v27, v66, v67
    global_store_dwordx2 v{V_XO}, v[26:27], {s(S_B1,2)}""")
    A.label("L_p2_next")
    A(f"""s_mov_b32 {s(S_FIRST)}, 0
    s_xor_b32 {s(S_PAR)}, {s(S_PAR)}, 1
    s_xor_b32 {s(S_T0)}, {s(S_PAR)}, 1
    s_xor_b32 {s(S_PH)}, {s(S_PH)}, {s(S_T0)}
    s_add_u32 {s(S_SEG)}, {s(S_SEG)}, 3
    s_cmp_lt_u32 {s(S_SEG)}, 64
    s_cbranch_scc1 L_p2_seg""")
    gen_rec.trace(A, 2, 8)
    A("s_branch L_end")
```

```python
from asmlib import *
from layout import *
import math, struct

def f32bits(x): return struct.unpack("<I", struct.pack("<f", x))[0]

S_MEM0, S_WQ, S_WK, S_WV, S_WO, S_WS, S_DBG = 6, 8, 10, 12, 14, 16, 18
S_H, S_W, S_STEP, S_MODE = 20, 21, 22, 23
S_SCALE, S_SEL10, S_SEL01, S_SPIN = 24, 25, 26, 27
S_PST = 28
S_MEMX = 40
S_WS4 = 48
S_KVB = 50
S_FLB = 52
S_T0, S_T1, S_T2, S_T3 = 54, 55, 56, 57
S_KXM0 = 58
S_MK3 = 60
S_SRC = 64
S_TB = 62
S_INB = 4
def INB(par): return 36 + 2 * par
S_SELM = 8
S_FLO = 4
S_FLAG = 5
(V_L16, V_IDX, V_QKW, V_TR,
 V_TRW, V_OW, V_PST, V_MST,
 V_GATH, V_KVO, V_XR, V_WOR,
 V_W2K, V_XW, V_SELV, V_KXO) = range(16)
V_INL = V_GATH
V_FLAG = V_TRW
V_WO01 = 16
V_ONES = 32
V_ZZ = 36
V_PA = 38
V_PB = 40
V_X = 42
V_M = 44
V_AQ, V_AK, V_AV = 80, 88, 96
V_ACC = 80
V_F = 112
V_T = 76
V_WV = 128

def WQ(T, t): return a((T * 8 + t) * 8, 8)
def WK(T, t): return a(128 + (T * 8 + t) * 8, 8)
def WV(T, t): return v(V_WV + (T * 8 + t) * 8, 8)

def add64(A, d, b, off):
    A(f"s_add_u32 {s(d)}, {s(b)}, {off}")
    A(f"s_addc_u32 {s(d+1)}, {s(b+1)}, 0")

class Tables:
    def __init__(self): self.groups = []
    def add(self, fns, nthreads=256):
        assert len(fns) == 4
        self.groups.append([[int(f(t)) & 0xffffffff for f in fns] for t in range(nthreads)])
        return len(self.groups) - 1
    def text(self):
        out = [".p2align 8", "L_tables:"]
        for g in self.groups:
            for row in g: out.append("  .long " + ", ".join("%#x" % x for x in row))
        return "\n".join(out) + "\n"
    def base(self, A, sreg):
        l = A.uid("Lpc")
        A(f"s_getpc_b64 {s(sreg,2)}")
        A.label(l)
        A(f"s_add_u32 {s(sreg)}, {s(sreg)}, L_tables-{l}")
        A(f"s_addc_u32 {s(sreg+1)}, {s(sreg+1)}, 0")
    def load(self, A, g, vdst, vtid16, sreg, stmp):
        add64(A, stmp, sreg, g * 4096)
        A(f"global_load_dwordx4 {v(vdst,4)}, {v(vtid16)}, {s(stmp,2)}")

def code_prefetch(A, label, shift, vdst, vt):
    l = A.uid("Lpc")
    A(f"s_getpc_b64 {s(S_SRC,2)}")
    A.label(l)
    A(f"s_add_u32 {s(S_SRC)}, {s(S_SRC)}, {label}-{l}")
    A(f"s_addc_u32 {s(S_SRC+1)}, {s(S_SRC+1)}, 0")
    A(f"v_lshlrev_b32 v{vt}, 7, v0")
    A(f"global_load_dword v{vdst}, v{vt}, {s(S_SRC,2)}")

def dec(tid):
    w, l = tid >> 6, tid & 63
    return w, l, l & 15, l >> 4

def gen_prologue(A, TB):
    A.comment("=== recurrence prologue; s20 = head ===")
    def f_qkw(tid):
        w, l, n, g = dec(tid); return L_QK + (32 * w + n) * 32 + g * 8
    def f_tr(tid):
        w, l, n, g = dec(tid); r, c = n >> 2, n & 3
        return L_QK + es(0, g, r) * 32 + c * 8
    def f_ow(tid):
        w, l, n, g = dec(tid)
        if n & 2: return L_MEM + l * 8
        return L_O + (w & 1) * 1024 + ((g >> 1) * 16 + n + 2 * (w >> 1)) * 16 + (g & 1) * 8
    def f_pst(tid):
        w, l, n, g = dec(tid); return (w * 8 + (n >> 3) * 4 + g) * 4096 + (n & 7) * 16
    def f_mst(tid):
        w, l, n, g = dec(tid); j, b5 = l & 7, l >> 5; c, qq = j >> 1, j & 1
        return (w >> 1) * 1024 + (w & 1) * 256 + (2 * (c >> 1) + qq) * 16 + ((c & 1) * 2 + b5) * 4
    def f_kvo(tid):
        w, l, n, g = dec(tid); key = 2 * (n >> 2) + (n & 1)
        if n & 2: return w * 512 + g * 128 + key * 16
        return 2048 + (32 * w + g * 8 + key) * 16
    def f_xr(tid):
        w, l, n, g = dec(tid); key = 2 * (n >> 2) + (n & 1)
        return L_X + (32 * w + g * 8 + key) * 16
    def f_gath(tid):
        w, l, n, g = dec(tid)
        return (w >> 1) * 0x20000 + (l >> 2) * 128 + (w & 1) * 64 + (l & 3) * 16
    def f_xw(tid):
        w, l, n, g = dec(tid); return L_X + (32 * w + n) * 16 + g * 4
    g0 = TB.add([lambda t: (t & 63) * 16, lambda t: 0xeeee if t & 2 else 0x4444, f_qkw, f_tr])
    g1 = TB.add([lambda t: f_tr(t) + (t >> 6) * 1024, f_ow, f_pst, f_mst])
    def f_kxo(tid):
        w, l, n, g = dec(tid); return (w >> 1) * WS_VX + (w & 1) * 4096 + l * 16
    g2 = TB.add([f_gath, f_kvo, f_xr, lambda t: L_WO + (t >> 6) * 28672 + (t & 63) * 16 - 4096])
    g2b = TB.add([lambda t: (t >> 6) * 2048 + (t & 63) * 16, f_xw, lambda t: 0x3f800000 if t & 1 else 0x3f80, f_kxo])
    fq = lambda d: (d & 1) | (((d >> 4) & 3) << 1)
    fo = lambda e: (e & 1) | (((e >> 2) & 1) << 1) | (((e >> 6) & 1) << 2)
    def f_dq(hi):
        def f(tid):
            w, l, n, g = dec(tid); row = 32 * w + 16 * hi + g
            return g * 8192 + ((n ^ (fq(row) << 1)) * 16)
        return f
    def f_do(odd):
        def f(tid):
            w, l, n, g = dec(tid); row = 32 * w + 4 * odd + g
            return g * 1024 + ((n ^ (fo(row) << 1)) * 16)
        return f
    g3 = TB.add([f_dq(0), f_dq(1), f_do(0), f_do(1)])
    def f_rq(T, hi):
        def f(tid):
            w, l, n, gB = dec(tid); r, c = n >> 2, n & 3
            row = 32 * (r >> 1) + 16 * (gB & 1) + 4 * (gB >> 1) + (r & 1)
            return L_STG + hi * 65536 + row * 256 + ((2 * w + T) ^ fq(row)) * 32 + 8 * c
        return f
    g4 = TB.add([f_rq(0, 0), f_rq(1, 0), f_rq(0, 1), f_rq(1, 1)])
    def f_ro(tid):
        w, l, n, gB = dec(tid); r, c = n >> 2, n & 3
        row = 64 * (r >> 1) + 8 * (gB >> 1) + 4 * (gB & 1) + (r & 1)
        return L_STG + w * 32768 + row * 256 + fo(row) * 32 + 8 * c
    def f_m0(tid):
        l, jj = tid >> 2, tid & 3
        q, half = arow(l & 15)
        return q * 1024 + dslot(0, half, l >> 4, 2 * jj) * 2
    g5 = TB.add([f_ro, f_m0, lambda t: L_MEM + t * 4, lambda t: L_KX + (t >> 6) * 6144 + (t & 63) * 16])
    VD, VR, VRO = 44, 48, 52
    A(f"""
    v_lshrrev_b32 v1, 6, v0
    v_lshlrev_b32 v76, 4, v0
    s_nop 0
    v_readfirstlane_b32 {s(S_W)}, v1
    """)
    code_prefetch(A, "L_rec_step_f0", 0, 78, 77)
    TB.base(A, S_TB)
    for g, r in [(g0, 0), (g1, 4), (g2, 8), (g2b, 12), (g3, VD), (g4, VR), (g5, VRO)]:
        TB.load(A, g, r, 76, S_TB, S_SRC)
    A(f"""
    s_mov_b32 {s(S_SCALE)}, {f32bits(128**-0.5 * math.log2(math.e)):#x}
    s_mov_b32 {s(S_SEL10)}, 0x00003f80
    s_mov_b32 {s(S_SEL01)}, 0x3f800000
    s_mov_b32 {s(S_MK3)}, 0x33333333
    s_mov_b32 {s(S_MK3+1)}, 0x33333333
    """)
    for r in range(V_ZZ, V_X + 2): A(f"v_mov_b32 v{r}, 0")
    for par in range(2):
        for z in range(2):
            add64(A, S_PST + 4 * par + 2 * z, S_WS, WS_INBOX + par * 0x40000 + z * 0x20000)
    for r in range(4): add64(A, S_MEMX + 2 * r, S_WS, WS_MEMX + r * 8192)
    add64(A, S_WS4, S_WS, 4096)
    add64(A, S_KVB, S_WS, WS_KV - 0x20000)
    add64(A, S_FLB, S_WS, WS_FLAGS)
    A(f"""s_and_b32 {s(S_T0)}, {s(S_W)}, 1
    s_lshr_b32 {s(S_T1)}, {s(S_W)}, 1
    s_mul_i32 {s(S_T1)}, {s(S_T1)}, {L_VX-L_KX}
    s_lshl_b32 {s(S_T2)}, {s(S_T0)}, 12
    s_add_u32 {s(S_T1)}, {s(S_T1)}, {s(S_T2)}
    s_add_u32 {s(S_KXM0)}, {s(S_T1)}, {L_KX}
    s_add_u32 {s(S_KXM0+1)}, {s(S_T1)}, {L_KX+8192}
    s_lshl_b32 {s(S_T3)}, {s(S_H)}, 12
    s_waitcnt vmcnt(0)
    v_lshrrev_b32 v56, 12, {v(V_PST)}
    v_add_u32 v56, {s(S_H)}, v56
    v_and_b32 v56, 31, v56
    v_lshl_add_u32 {v(V_PST)}, v56, 7, {v(V_PST)}
    s_lshr_b32 {s(S_T0)}, {s(S_H)}, 3
    s_lshl_b32 {s(S_T0)}, {s(S_T0)}, 11
    s_bfe_u32 {s(S_T1)}, {s(S_H)}, 0x10002
    s_lshl_b32 {s(S_T1)}, {s(S_T1)}, 9
    s_add_u32 {s(S_T0)}, {s(S_T0)}, {s(S_T1)}
    s_and_b32 {s(S_T1)}, {s(S_H)}, 3
    s_lshl_b32 {s(S_T1)}, {s(S_T1)}, 6
    s_add_u32 {s(S_T0)}, {s(S_T0)}, {s(S_T1)}
    v_add_u32 {v(V_MST)}, {s(S_T0)}, {v(V_MST)}
    s_lshl_b32 {s(S_T0)}, {s(S_H)}, 12
    v_add_u32 {v(V_KVO)}, {s(S_T0)}, {v(V_KVO)}
    s_lshl_b32 {s(S_T0)}, {s(S_H)}, 13
    v_add_u32 {v(V_KXO)}, {s(S_T0)}, {v(V_KXO)}
    v_mov_b32 v56, 0
    v_mov_b32 v57, 0
    v_mov_b32 v58, 0
    v_mov_b32 v59, 0
    v_mov_b32 v60, -1
    v_add_u32 v61, {s(S_T3)}, v76
    """)
    for pz in range(4):
        A(f"global_store_dwordx4 v61, v[56:59], {s(S_PST+2*pz,2)} sc1")
    for r in range(4):
        A(f"global_store_dword {v(V_MST)}, v60, {s(S_MEMX+2*r,2)} sc1")
    A("s_waitcnt vmcnt(0)")
    mats = [S_WK, S_WQ, S_WV]
    def dma_chunk(ci):
        slot = ci % 4
        if ci < 12:
            base, c = mats[ci // 4], ci % 4
            A(f"s_lshl_b32 {s(S_T0)}, {s(S_W)}, 18")
            A(f"s_lshl_b32 {s(S_T1)}, {s(S_H)}, 8")
            A(f"s_add_u32 {s(S_T0)}, {s(S_T0)}, {s(S_T1)}")
            A(f"s_add_u32 {s(S_T0)}, {s(S_T0)}, {128*c*8192}")
            step = 4 * 8192
            vo = lambda i: VD + (i >> 2)
        else:
            base, c = S_WO, ci - 12
            A(f"s_lshl_b32 {s(S_T0)}, {s(S_W)}, 15")
            A(f"s_lshl_b32 {s(S_T1)}, {s(S_H)}, 17")
            A(f"s_add_u32 {s(S_T0)}, {s(S_T0)}, {s(S_T1)}")
            A(f"s_add_u32 {s(S_T0)}, {s(S_T0)}, {c*256}")
            step = 4 * 1024
            vo = lambda i: VD + 2 + (i & 1)
        add64(A, S_SRC, base, s(S_T0))
        A(f"s_lshl_b32 {s(S_T2)}, {s(S_W)}, 13")
        A(f"s_add_u32 {s(S_T2)}, {s(S_T2)}, {L_STG + slot*32768}")
        for i in range(8):
            A(f"s_mov_b32 m0, {s(S_T2)}")
            A(f"s_add_u32 {s(S_T2)}, {s(S_T2)}, 1024")
            A(f"global_load_lds_dwordx4 v{vo(i)}, {s(S_SRC,2)}")
            if i < 7: add64(A, S_SRC, S_SRC, step)
    for ci in range(4): dma_chunk(ci)
    for t in range(8):
        A(f"global_load_ushort v{60+2*t}, v{VRO+1}, {s(S_MEM0,2)} offset:{128*t}")
        A(f"global_load_ushort v{61+2*t}, v{VRO+1}, {s(S_MEM0,2)} offset:{128*t+2}")
    for ci in range(12):
        slot = ci % 4
        A("s_waitcnt vmcnt(40)" if ci < 4 else "s_waitcnt vmcnt(24)")
        A("s_barrier")
        if ci == 0:
            A(f"""s_cmp_eq_u32 {s(S_W)}, 0
            s_cbranch_scc0 L_rec_noinc
            v_mov_b32 v56, 1
            s_mov_b64 exec, 1
            global_atomic_add {v(V_ZZ)}, v56, {s(S_DBG,2)} offset:{DBG_RECINIT}
            s_mov_b64 exec, -1
            L_rec_noinc:""")
        W = [WK, WQ, WV][ci // 4]
        c = ci % 4
        lend = A.uid("Lwv")
        for wv in range(4):
            lnx = A.uid("Lwv")
            if wv < 3:
                A(f"s_cmp_eq_u32 {s(S_W)}, {wv}")
                A(f"s_cbranch_scc0 {lnx}")
            for tt in range(2):
                t = 2 * (c ^ wv) + tt
                for T in range(2):
                    wreg = W(T, t)
                    kind, lo = wreg[0], int(wreg[2:].split(":")[0])
                    for p4 in range(4):
                        off = (2 * (p4 & 1) + 8 * (p4 >> 1) + 64 * tt) * 256 + (slot & 1) * 32768
                        A(f"ds_read_b64_tr_b16 {kind}[{lo+2*p4}:{lo+2*p4+1}], v{VR + T + 2*(slot>>1)} offset:{off}")
            if wv < 3:
                A(f"s_branch {lend}")
                A.label(lnx)
        A.label(lend)
        if ci == 4:
            for t in range(8):
                A(f"v_lshl_or_b32 v{60+2*t}, v{61+2*t}, 16, v{60+2*t}")
                A(f"ds_write_b32 v{VRO+2}, v{60+2*t} offset:{1024*t}")
        A("s_waitcnt lgkmcnt(0)")
        A("s_barrier")
        dma_chunk(ci + 4)
    for par in range(2): add64(A, INB(par), S_PST + 4 * par, s(S_T3))
    for k in range(4):
        A(f"s_mov_b32 {s(S_SELM+2*k)}, {0x03030303 << (2*k):#x}")
        A(f"s_mov_b32 {s(S_SELM+2*k+1)}, {0x03030303 << (2*k):#x}")
    A(f"s_lshl_b32 {s(S_FLO)}, {s(S_H)}, 7")
    A("""s_waitcnt vmcnt(0)
    s_barrier""")
    def wo_read(f, reg):
        T, tp = f >> 1, f & 1
        A(f"v_xor_b32 v{VRO+1}, {T*32}, v{VRO}")
        for p4 in range(4):
            off = (32 * tp + 16 * (p4 >> 1) + 2 * (p4 & 1)) * 256
            A(f"ds_read_b64_tr_b16 v[{reg+2*p4}:{reg+2*p4+1}], v{VRO+1} offset:{off}")
    regs = [16, 24, 32, 44] + [56 + 8 * i for i in range(9)]
    PK = VRO + 3
    for k, f in enumerate([13, 14, 15]): wo_read(f, 56 + 8 * k)
    A("s_waitcnt lgkmcnt(0)")
    for k in range(6): A(f"ds_write_b128 v{PK}, v[{56+4*k}:{59+4*k}] offset:{1024*k}")
    A("s_waitcnt lgkmcnt(0)")
    for f in range(13):
        wo_read(f, regs[f])
        if f % 3 == 2: A("s_waitcnt lgkmcnt(4)")
    A("s_waitcnt lgkmcnt(0)")
    A("s_barrier")
    for f in range(2, 13):
        A(f"ds_write_b128 {v(V_WOR)}, v[{regs[f]}:{regs[f]+3}] offset:{f*2048}")
        A(f"ds_write_b128 {v(V_WOR)}, v[{regs[f]+4}:{regs[f]+7}] offset:{f*2048+1024}")
        if f % 4 == 3: A("s_waitcnt lgkmcnt(0)")
    A("s_waitcnt lgkmcnt(0)")
    for k in range(6): A(f"ds_read_b128 v[{56+4*k}:{59+4*k}], v{PK} offset:{1024*k}")
    A("s_waitcnt lgkmcnt(0)")
    for k in range(6): A(f"ds_write_b128 {v(V_WOR)}, v[{56+4*k}:{59+4*k}] offset:{13*2048+1024*k}")
    for r in range(4): A(f"v_mov_b32 v{V_ONES+r}, 0x3f803f80")
    for r in range(V_ZZ, V_X + 2): A(f"v_mov_b32 v{r}, 0")
    A("""s_waitcnt lgkmcnt(0)
    s_barrier""")

def spin_guard(A):
    A(f"s_add_u32 {s(S_SPIN)}, {s(S_SPIN)}, 1")
    A(f"s_cmp_gt_u32 {s(S_SPIN)}, 0x400000")
    A("s_cbranch_scc1 L_end")

NST = 10
TRACE = False
MINI = True
def trace(A, tid_, vt):
    if not TRACE: return
    A("s_memrealtime s[100:101]")
    A("s_waitcnt lgkmcnt(0)")
    A(f"v_mov_b32 v{vt+1}, s100")
    A("s_lshl_b32 s100, s2, 4")
    A(f"s_add_u32 s100, s100, {tid_}")
    A("s_lshl_b32 s100, s100, 2")
    A(f"s_add_u32 s100, s100, {WS_DBG + (2<<20)}")
    A(f"v_mov_b32 v{vt}, s100")
    A(f"global_store_dword v{vt}, v{vt+1}, {s(S_WS,2)}")
EXP = set()
PRM = dict(dA=6, dB=10, dGA=11, dGB=9, ne=2)
def zero_acc(A):
    A(f"v_mfma_f32_32x32x8_bf16 {v(V_ACC,16)}, {v(V_ZZ,2)}, {v(V_ZZ,2)}, 0")
    A(f"v_mfma_f32_32x32x8_bf16 {v(V_ACC+16,16)}, {v(V_ZZ,2)}, {v(V_ZZ,2)}, 0")

def dma4(par):
    return [f"s_mov_b32 m0, {s(S_KXM0+par)}"] + [f"global_load_lds_dwordx4 {v(V_KXO)}, {s(S_WS,2)} offset:{1024*i}" for i in range(4)] + [f"v_add_u32 {v(V_KXO)}, 0x40000, {v(V_KXO)}"]

def kv_read(A, KP):
    A(f"s_lshl_b32 {s(S_T0)}, {s(S_W)}, 10")
    A(f"v_add_u32 v{KP+4}, {s(S_T0)}, {v(V_TR)}")
    A(f"ds_read_b64_tr_b16 v[{KP}:{KP+1}], v{KP+4}")
    A(f"ds_read_b64_tr_b16 v[{KP+2}:{KP+3}], v{KP+4} offset:256")
    A(f"s_mov_b64 exec, {s(S_MK3,2)}")
    A(f"ds_read_b128 {v(KP,4)}, {v(V_XR)}")
    A("s_mov_b64 exec, -1")

def flag_wait(A, name, vt):
    A(f"s_mov_b32 {s(S_SPIN)}, 0")
    A(f"v_mov_b32 v{vt}, {s(S_FLO)}")
    A.label(name)
    A(f"global_load_dword v{vt+1}, v{vt}, {s(S_FLB,2)} sc1")
    spin_guard(A)
    A(f"""s_waitcnt vmcnt(0)
    v_readfirstlane_b32 {s(S_T0)}, v{vt+1}
    s_cmp_eq_u32 {s(S_T0)}, 1
    s_cbranch_scc0 {name}""")

def load_counters(A, vt, sdst):
    A(f"""v_mbcnt_lo_u32_b32 v{vt}, -1, 0
    v_mbcnt_hi_u32_b32 v{vt}, -1, v{vt}
    v_and_b32 v{vt}, 7, v{vt}
    v_lshlrev_b32 v{vt}, 2, v{vt}
    v_mov_b32 v{vt+1}, {DBG_XCC0}
    v_cmp_eq_u32 vcc, 0, v{vt}
    v_cndmask_b32 v{vt}, v{vt}, v{vt+1}, vcc
    global_load_dword v{vt+1}, v{vt}, {s(S_DBG,2)} sc1
    s_waitcnt vmcnt(0)""")
    for k in range(8): A(f"v_readlane_b32 {s(sdst+k)}, v{vt+1}, {k}")
    A(f"s_add_u32 {s(S_T0)}, {s(sdst)}, {s(sdst+1)}")
    for k in range(2, 8): A(f"s_add_u32 {s(S_T0)}, {s(S_T0)}, {s(sdst+k)}")

FORCE_MODE = None
def decide_mode(A):
    if FORCE_MODE is not None:
        A(f"s_mov_b32 {s(S_MODE)}, {FORCE_MODE}")
        return
    A(f"s_mov_b32 {s(S_SPIN)}, 0")
    A.label("L_rec_md")
    spin_guard(A)
    load_counters(A, 56, 70)
    A(f"""s_mov_b32 {s(S_MODE)}, 0
    s_cmp_ge_u32 s70, 32
    s_cbranch_scc1 L_rec_mdok
    s_mov_b32 {s(S_MODE)}, 1
    s_cmp_ge_u32 {s(S_T0)}, 256
    s_cbranch_scc0 L_rec_md""")
    A.label("L_rec_mdok")

def gen_preloop(A, timing, stamps, n_init=0):
    A.comment("pre-loop")
    trace(A, 1, 56)
    if n_init:
        decide_mode(A)
        A(f"s_mov_b32 {s(S_SPIN)}, 0")
        A.label("L_rec_gi")
        A(f"global_load_dword v56, {v(V_ZZ)}, {s(S_DBG,2)} offset:{DBG_INIT} sc1")
        spin_guard(A)
        A(f"""s_waitcnt vmcnt(0)
        v_readfirstlane_b32 {s(S_T0)}, v56
        s_cmp_ge_u32 {s(S_T0)}, {n_init}
        s_cbranch_scc0 L_rec_gi""")
    if n_init:
        A(f"""v_and_b32 v56, 3, {v(V_INL)}
        v_lshrrev_b32 v56, 4, {v(V_L16)}
        v_and_b32 v56, 3, v56
        s_lshl_b32 {s(S_T0)}, {s(S_H)}, 2
        v_add_u32 v56, {s(S_T0)}, v56
        v_lshlrev_b32 v56, 7, v56
        v_add_u32 v56, {FL_MINI}, v56
        s_mov_b32 {s(S_SPIN)}, 0""")
        A.label("L_rec_f0")
        A(f"global_load_dword v57, v56, {s(S_FLB,2)} sc1")
        spin_guard(A)
        A(f"""s_waitcnt vmcnt(0)
        v_cmp_ne_u32 vcc, 1, v57
        s_cbranch_vccnz L_rec_f0""")
    else:
        flag_wait(A, "L_rec_f0", 56)
    for x in dma4(0): A(x)
    A.label("L_rec_i0")
    A(f"global_load_dword v56, {v(V_ZZ)}, {s(S_DBG,2)} offset:{DBG_RECINIT} sc1")
    spin_guard(A)
    A(f"""s_waitcnt vmcnt(0)
    v_readfirstlane_b32 {s(S_T0)}, v56
    s_cmp_ge_u32 {s(S_T0)}, 32
    s_cbranch_scc0 L_rec_i0""")
    A(f"s_mov_b32 {s(S_STEP)}, 0")
    zero_acc(A)
    A(f"""v_mov_b32 v116, -1
    v_mov_b32 v112, 0
    v_mov_b32 v113, 0
    v_mov_b32 v114, 0
    v_mov_b32 v115, 0""")
    A(f"ds_read_b128 {v(V_M,4)}, {v(V_W2K)} offset:{L_MEM}")
    A(f"ds_read_b128 {v(V_M+4,4)}, {v(V_W2K)} offset:{L_MEM+1024}")
    for P in range(1, 4): A(f"v_xor_b32 v{V_T+P-1}, {P*2048}, {v(V_W2K)}")
    A("s_waitcnt lgkmcnt(0)")
    trace(A, 2, 56)
    A("s_barrier")
    if timing:
        A("s_memtime s[66:67]")
        A("s_waitcnt lgkmcnt(0)")
    if stamps:
        for k in range(NST): A(f"s_mov_b32 s{90+k}, 0")

class LT:
    def __init__(self, A): self.A, self.ops, self.done = A, [], 0
    def op(self, name, ins):
        self.ops.append(name); return ins
    def wait(self, name):
        i = len(self.ops) - 1 - self.ops[::-1].index(name)
        if i < self.done: return None
        self.done = i + 1
        return f"s_waitcnt lgkmcnt({min(len(self.ops) - 1 - i, 15)})"

def gen_step(A, k4, mode, dbg, stamps):
    sfx = f"{'s' if mode else 'f'}{k4}"
    par, phase = k4 & 1, ((k4 >> 1) & 1) ^ 1
    def stamp(k):
        if stamps: A(f"s_memtime s[{70+2*k}:{71+2*k}]")
    M = lambda t: v(V_M + 4 * t, 4)
    F = lambda u: v(V_F + 4 * u, 4)
    KXR = lambda j: [v(88,4), v(92,4), v(104,4), v(108,4)][j] if j < 4 else M(j - 4)
    idx = v(V_IDX)
    lt = LT(A)
    def emit(x):
        if x is None: return
        if isinstance(x, str): A(x)
        elif x[0] == "ds": A(lt.op(x[1], x[2]))
        elif x[0] == "w":
            w = lt.wait(x[1])
            if w: A(w)
    def run(main, fills):
        for k, m in enumerate(main):
            for x in m: emit(x)
            for x in fills.get(k, []): emit(x)
    def post(acc, d0, d1):
        return [f"v_add_f32 v{acc}, v{acc}, v{acc+2}", f"v_add_f32 v{acc+1}, v{acc+1}, v{acc+3}",
                f"v_add_f32 v{acc+4}, v{acc+4}, v{acc+6}", f"v_add_f32 v{acc+5}, v{acc+5}, v{acc+7}",
                f"v_cvt_pk_bf16_f32 v{d0}, v{acc}, v{acc+1}", f"v_cvt_pk_bf16_f32 v{d1}, v{acc+4}, v{acc+5}"]
    mrd = lambda t, tag: ("ds", f"M{tag}{t}", f"ds_read_b128 {M(t)}, v{V_T+(t>>1)-1} offset:{L_MEM+(t&1)*1024}")
    kxrd = lambda j: ("ds", f"KX{j}", f"ds_read_b128 {KXR(j)}, {v(V_L16)} offset:{L_KX+par*8192+j*1024}")
    frd = lambda i, tag: ("ds", f"F{tag}{i}", f"ds_read_b64_tr_b16 {v(V_F+2*i,2)}, {v(V_TR)} offset:{(i>>1)*1024+(i&1)*256}")
    slots = [44, 52, 60, 68, 112]
    NS = len(slots)
    def wslot(f): return (V_WO01 + 8 * f) if f < 2 else slots[(f - 2) % NS]
    def wo_ld(f):
        r = wslot(f)
        return [("ds", f"W{f}a", f"ds_read_b128 {v(r,4)}, {v(V_WOR)} offset:{f*2048}"),
                ("ds", f"W{f}", f"ds_read_b128 {v(r+4,4)}, {v(V_WOR)} offset:{f*2048+1024}")]
    smf = lambda acc, T, t, W: f"v_smfmac_f32_16x16x64_bf16 {v(acc+4*T,4)}, {M(t)}, {W(T,t)}, {idx}"
    KP = 112
    A.label(f"L_rec_step_{sfx}")
    if TRACE and k4 == 0:
        lt_ = A.uid("Ltr")
        A(f"s_and_b32 {s(S_T0)}, {s(S_STEP)}, 7")
        A(f"s_cmp_eq_u32 {s(S_T0)}, 0")
        A(f"s_cbranch_scc0 {lt_}")
        A(f"s_lshr_b32 {s(S_T0)}, {s(S_STEP)}, 3")
        A(f"s_add_u32 {s(S_T0)}, {s(S_T0)}, 4")
        trace(A, s(S_T0), 68)
        A("s_memtime s[100:101]")
        A("s_waitcnt lgkmcnt(0)")
        A("v_mov_b32 v69, s100")
        A(f"v_add_u32 v68, 0x10000, v68")
        A(f"global_store_dword v68, v69, {s(S_WS,2)}")
        A.label(lt_)
    stamp(0)
    d4 = dma4(par ^ 1) if "nold" not in EXP else [None] * 6
    hk = [f"global_store_dword {v(V_MST)}, v{KP+4}, {s(S_MEMX+2*((k4+1)&3),2)}{mode}", f"v_add_u32 {v(V_KVO)}, 0x20000, {v(V_KVO)}"]
    fl = []
    if k4 == 2: fl.append(f"global_load_dword {v(V_FLAG)}, v{KP+7}, {s(S_FLB,2)} sc1")
    kvst = f"global_store_dwordx4 {v(V_KVO)}, {v(KP,4)}, {s(S_KVB,2)} sc1"
    NE = PRM["ne"]
    early = [[smf(V_AK, T, t, WK)] for t in range(2) for T in range(2)] + [[smf(V_AQ, T, t, WQ)] for t in range(2) for T in range(2)]
    run(early, {NE: ["s_waitcnt lgkmcnt(0)", "s_barrier"] + [mrd(t, "a") for t in range(2, 8)] + [kvst]})
    run([[("w", f"Ma{t}"), smf(V_AK, T, t, WK)] for t in range(2, 8) for T in range(2)],
        {0: [d4[0]], 1: [d4[1]], 3: [d4[2]], 5: [d4[3]], 7: [d4[4], d4[5]], 8: hk, 9: fl + [kxrd(2)], 11: [kxrd(3)]})
    stamp(1)
    kp = post(V_AK, V_T + 2, V_T + 3)
    fills = {7: kp[0:2], 8: kp[2:4], 9: kp[4:6],
             10: [("ds", "KW", f"ds_write2_b32 {v(V_QKW)}, v{V_T+2}, v{V_T+3} offset0:1 offset1:129"), kxrd(0)],
             11: [kxrd(1)]}
    run([[smf(V_AQ, T, t, WQ)] for t in range(2, 8) for T in range(2)], fills)
    stamp(2)
    SX, PX, SM, OA, LA = 80, 104, 88, 80, 112
    VXR = (108, 92)
    qp = post(V_AQ, V_T, V_T + 1)
    fills = {1: [kxrd(4), "s_nop 4"] + qp + [("ds", "QW", f"ds_write2_b32 {v(V_QKW)}, v{V_T}, v{V_T+1} offset0:0 offset1:128")],
             3: [kxrd(5)], 5: [kxrd(6), ("w", "QW"), "s_barrier", frd(0, "a"), frd(1, "a"), frd(2, "a")],
             6: [frd(3, "a"), frd(4, "a"), frd(5, "a")], 7: [frd(6, "a"), frd(7, "a"), kxrd(7)]}
    run([[smf(V_AV, T, t, WV)] for t in range(6) for T in range(2)], fills)
    stamp(3)
    def sxm(kt):
        L = []
        for u in range(4):
            d = SX + 4 * kt; j = kt * 4 + u
            L.append([("w", f"Fa{2*u+1}"), ("w", f"KX{j}"),
                      f"v_mfma_f32_16x16x32_bf16 {v(d,4)}, {KXR(j)}, {F(u)}, {'0' if u == 0 else v(d,4)}"])
        return L
    smm = [[f"v_mfma_f32_16x16x32_bf16 {v(SM,4)}, {F(u)}, {F(u)}, {'0' if u == 0 else v(SM,4)}"] for u in range(4)]
    m, t1 = V_T, V_T + 1
    xs = list(range(SX, SX + 8))
    sm = [f"v_max3_f32 v{m}, |v{xs[0]}|, |v{xs[1]}|, |v{xs[2]}|", f"v_max3_f32 v{t1}, |v{xs[3]}|, |v{xs[4]}|, |v{xs[5]}|",
          f"v_max3_f32 v{m}, v{m}, |v{xs[6]}|, |v{xs[7]}|", f"v_max_f32 v{t1}, v{m}, v{t1}",
          f"v_cmp_lt_f32 vcc, 0x42700000, v{t1}", f"v_mov_b32 v{m}, 0",
          f"s_and_b64 vcc, vcc, {s(S_MK3,2)}\ns_cbranch_scc1 L_rec_fx_{sfx}\nL_rec_fxret_{sfx}:"]
    ex = [f"v_exp_f32 v{r}, v{r}" for r in xs]
    cv = [f"v_cvt_pk_bf16_f32 v{PX+k}, v{xs[2*k]}, v{xs[2*k+1]}" for k in range(4)]
    vx = [("ds", "VX0", f"ds_read_b128 {v(VXR[0],4)}, {v(V_W2K)} offset:{L_VX+par*8192}"),
          ("ds", "VX1", f"ds_read_b128 {v(VXR[1],4)}, {v(V_W2K)} offset:{L_VX+par*8192+1024}")]
    w2, w3, w4, w5 = wo_ld(2), wo_ld(3), wo_ld(4), wo_ld(5)
    pm = [f"v_fma_f32 v{SM+2}, v{SM+2}, {s(S_SCALE)}, -v{m}", f"v_fma_f32 v{SM+3}, v{SM+3}, {s(S_SCALE)}, -v{m}",
          f"v_max_f32 v{t1}, v{SM+2}, v{SM+3}", f"v_exp_f32 v{SM}, v{SM+2}", f"v_exp_f32 v{SM+1}, v{SM+3}",
          f"v_cmp_lt_f32 vcc, 0x42800000, v{t1}"]
    vb = [[smf(V_AV, T, t, WV)] for t in range(6, 8) for T in range(2)]
    vp = post(V_AV, V_X, V_X + 1)
    main = sxm(0) + smm + sxm(1) + vb
    fills = {0: [w4[0]], 1: [w4[1]], 3: [vx[0], vx[1]], 9: [w2[0]], 10: [w2[1]], 11: [w3[0], w3[1]], 15: w5 + ["s_nop 1"]}
    run(main, fills)
    stamp(4)
    for x in sm + ex[0:8] + cv[0:4] + pm: emit(x)
    if k4 == 3: A(f"s_cmp_eq_u32 {s(S_STEP)}, 63\ns_cselect_b32 {s(S_T1)}, 1, 0")
    emit(("w", "VX1"))
    A(f"v_mfma_f32_16x16x32_bf16 {v(LA,4)}, {v(V_ONES,4)}, {v(PX,4)}, 0")
    A(f"s_and_b64 vcc, vcc, {s(S_MK3,2)}")
    for x in vp[:2]: A(x)
    A(f"v_mfma_f32_16x16x32_bf16 {v(OA,4)}, {v(VXR[0],4)}, {v(PX,4)}, 0")
    for x in vp[2:4]: A(x)
    A(f"v_mfma_f32_16x16x32_bf16 {v(OA+4,4)}, {v(VXR[1],4)}, {v(PX,4)}, 0")
    A(f"s_cbranch_scc1 L_rec_fb_{sfx}")
    A.label(f"L_rec_fbret_{sfx}")
    A(f"v_cvt_pk_bf16_f32 v{V_PA}, v{SM}, v{SM+1}")
    A(f"v_cvt_pk_bf16_f32 v{V_PB+1}, v{SM}, v{SM+1}")
    for x in vp[4:]: A(x)
    A(f"v_mfma_f32_16x16x16_bf16 {v(LA,4)}, {v(V_ONES,2)}, {v(V_PA,2)}, {v(LA,4)}")
    emit(("ds", "XW", f"ds_write2_b32 {v(V_XW)}, v{V_X}, v{V_X+1} offset0:0 offset1:64"))
    if k4 == 3: A(f"s_cmp_eq_u32 {s(S_T1)}, 1")
    A(f"v_mfma_f32_16x16x16_bf16 {v(OA,4)}, {v(V_X,2)}, {v(V_PA,2)}, {v(OA,4)}")
    A(f"v_mfma_f32_16x16x16_bf16 {v(OA+4,4)}, {v(V_X,2)}, {v(V_PB,2)}, {v(OA+4,4)}")
    if k4 == 3: A("s_cbranch_scc1 L_rec_last")
    for k in range(4): A(f"v_mov_b64 {v(96+2*k,2)}, 0")
    A(f"v_rcp_f32 v{t1}, v{LA}")
    for x in wo_ld(6): emit(x)
    for r in range(4): A(f"v_mul_f32 v{OA+r}, v{OA+r}, v{t1}")
    for k in range(2): A(f"v_cvt_pk_bf16_f32 v{V_T+2+k}, v{OA+2*k}, v{OA+2*k+1}")
    emit(("ds", "OW0", f"ds_write_b64 {v(V_OW)}, {v(V_T+2,2)}"))
    for r in range(4, 8): A(f"v_mul_f32 v{OA+r}, v{OA+r}, v{t1}")
    for k in range(2): A(f"v_cvt_pk_bf16_f32 v{V_T+k}, v{OA+4+2*k}, v{OA+5+2*k}")
    emit(("ds", "OW", f"ds_write_b64 {v(V_OW)}, {v(V_T,2)} offset:512"))
    A(f"v_mfma_f32_32x32x8_bf16 {v(V_ACC,16)}, {v(V_ZZ,2)}, {v(V_ZZ,2)}, 0")
    for k in range(4): A(f"v_mov_b64 {v(104+2*k,2)}, 0")
    emit(("w", "OW"))
    A("s_barrier")
    stamp(5)
    OF = 120
    emit(("ds", "OF0", f"ds_read_b128 {v(OF,4)}, {v(V_L16)} offset:{L_O}"))
    emit(("ds", "OF1", f"ds_read_b128 {v(OF+4,4)}, {v(V_L16)} offset:{L_O+1024}"))
    def post_tile(T):
        b = V_ACC + 4 * T
        d = (V_T if T < 4 else V_ACC) + (T & 3)
        L = [f"v_add_f32 v{b}, v{b}, v{b+2}", f"v_add_f32 v{b+1}, v{b+1}, v{b+3}", f"v_cvt_pk_bf16_f32 v{d}, v{b}, v{b+1}"]
        if (T & 3) == 0: L.append(f"v_and_or_b32 v{d}, v{d}, -2, {phase}")
        return L
    for f in range(16):
        T, tp = f >> 1, f & 1
        if f < 2: emit(("w", f"OF{f}"))
        else: emit(("w", f"W{f}"))
        A(f"v_smfmac_f32_16x16x64_bf16 {v(V_ACC+4*T,4)}, {v(OF+4*tp,4)}, {v(wslot(f),8)}, {idx}")
        if f >= 2 and f + NS < 16:
            for x in wo_ld(f + NS): emit(x)
        if tp == 1 and T >= 2:
            for x in post_tile(T - 2): A(x)
            if T - 2 == 3:
                A(f"global_store_dwordx4 {v(V_PST)}, {v(V_T,4)}, {s(S_PST+4*par,2)}{mode}")
    for T in (6, 7):
        for x in post_tile(T): A(x)
    A(f"global_store_dwordx4 {v(V_PST)}, {v(V_ACC,4)}, {s(S_PST+4*par+2,2)}{mode}")
    if "ack" in EXP:
        stamp(5)
        A("s_waitcnt vmcnt(0)")
    stamp(6)
    RA, SEL, D = 44, 60, 64
    kv_read(A, KP)
    for k in range(4): A(f"v_cndmask_b32 v{SEL+k}, 0, {v(V_SELV)}, {s(S_SELM+2*k,2)}")
    zero_acc(A)
    A(f"v_mov_b32 v{KP+4}, -1")
    if k4 == 1:
        A(f"""s_add_u32 {s(S_FLO)}, {s(S_FLO)}, 4096
        s_lshl_b32 {s(S_T0)}, {s(S_H)}, 7
        s_add_u32 {s(S_T0)}, {s(S_T0)}, {15*4096}
        s_min_u32 {s(S_FLO)}, {s(S_FLO)}, {s(S_T0)}
        v_mov_b32 v{KP+7}, {s(S_FLO)}""")
    A("s_waitcnt lgkmcnt(0)")
    A(f"v_min_u32 v{KP}, -2, v{KP}")
    def delay(n):
        for _ in range(n): A("s_nop 3")
    lz = A.uid("Lz")
    A(f"s_cmp_lt_u32 {s(S_W)}, 2")
    A(f"s_cbranch_scc1 {lz}")
    delay(PRM["dB"])
    A.label(lz)
    delay(PRM["dA"])
    A(f"s_mov_b32 {s(S_SPIN)}, 0")
    A.label(f"L_p2_{sfx}")
    if stamps: A("s_add_u32 s99, s99, 1")
    A(f"global_load_dwordx4 {v(RA,4)}, {v(V_INL)}, {s(INB(par),2)} sc1")
    A(f"global_load_dwordx4 {v(RA+4,4)}, {v(V_INL)}, {s(INB(par),2)} offset:2048 sc1")
    spin_guard(A)
    A("s_waitcnt vmcnt(1)")
    A(f"v_mfma_f32_16x16x32_bf16 {v(D,4)}, {v(RA,4)}, {v(SEL,4)}, 0")
    A("s_waitcnt vmcnt(0)")
    A(f"v_mfma_f32_16x16x32_bf16 {v(D,4)}, {v(RA+4,4)}, {v(SEL,4)}, {v(D,4)}")
    A(f"v_and_b32 v68, v{RA}, v{RA+4}" if phase else f"v_or_b32 v68, v{RA}, v{RA+4}")
    A("v_and_b32 v68, 1, v68")
    A(f"v_cmp_ne_u32 vcc, {phase}, v68")
    A(f"s_cbranch_vccnz L_p2_{sfx}")
    stamp(7)
    A(f"""v_permlane32_swap_b32 v{D}, v{D+2}
    v_permlane32_swap_b32 v{D+1}, v{D+3}
    v_add_f32 v{D}, v{D}, v{D+2}
    v_add_f32 v{D+1}, v{D+1}, v{D+3}
    v_mov_b32 v{D+2}, v{D}
    v_mov_b32 v{D+3}, v{D+1}
    v_permlane16_swap_b32 v{D}, v{D+2}
    v_permlane16_swap_b32 v{D+1}, v{D+3}
    v_add_f32 v{D}, v{D}, v{D+2}
    v_add_f32 v{D+1}, v{D+1}, v{D+3}
    v_cvt_pk_bf16_f32 v{D}, v{D}, v{D+1}
    v_min_u32 v{D}, -2, v{D}
    global_store_dword {v(V_MST)}, v{D}, {s(S_MEMX+2*k4,2)}{mode}""")
    if "ack2" in EXP:
        stamp(7)
        A("s_waitcnt vmcnt(0)")
    stamp(8)
    if k4 == 2:
        A(f"v_readfirstlane_b32 {s(S_FLAG)}, {v(V_FLAG)}")
    for P in range(1, 4): A(f"v_xor_b32 v{V_T+P-1}, {P*2048}, {v(V_W2K)}")
    lz = A.uid("Lz")
    A(f"s_cmp_ge_u32 {s(S_W)}, 2")
    A(f"s_cbranch_scc1 {lz}")
    delay(PRM["dB"])
    A.label(lz)
    delay(PRM["dGA"])
    mx = s(S_MEMX + 2 * k4, 2)
    A(f"s_mov_b32 {s(S_SPIN)}, 0")
    A.label(f"L_p3_{sfx}")
    if stamps: A("s_add_u32 s99, s99, 1")
    A(f"global_load_dwordx4 {v(RA,4)}, {v(V_W2K)}, {mx} sc1")
    A(f"global_load_dwordx4 {v(RA+4,4)}, {v(V_W2K)}, {mx} offset:1024 sc1")
    spin_guard(A)
    R = RA
    A(f"""s_waitcnt vmcnt(1)
    ds_write_b128 {v(V_W2K)}, {v(RA,4)} offset:{L_MEM}
    v_max3_u32 v68, v{R}, v{R+1}, v{R+2}
    s_waitcnt vmcnt(0)
    ds_write_b128 {v(V_W2K)}, {v(RA+4,4)} offset:{L_MEM+1024}
    v_max3_u32 v69, v{R+3}, v{R+4}, v{R+5}
    v_max3_u32 v68, v68, v{R+6}, v{R+7}
    v_max_u32 v68, v68, v69
    v_cmp_eq_u32 vcc, -1, v68
    s_cbranch_vccnz L_p3_{sfx}""")
    stamp(9)
    if dbg:
        A(f"s_add_u32 {s(S_T0)}, {s(S_STEP)}, 1")
        A(f"s_lshl_b32 {s(S_T0)}, {s(S_T0)}, 13")
        A(f"s_add_u32 {s(S_T0)}, {s(S_T0)}, {WS_DBG}")
        add64(A, S_SRC, S_WS, s(S_T0))
        for R_, o in ((RA, 0), (RA + 4, 1024)):
            A(f"global_store_dwordx4 {v(V_W2K)}, {v(R_,4)}, {s(S_SRC,2)} offset:{o}")
    if k4 == 2:
        A(f"s_cmp_eq_u32 {s(S_FLAG)}, 1")
        A(f"s_cbranch_scc1 L_rec_fok_{sfx}")
        if MINI:
            A(f"s_cmp_eq_u32 {s(S_STEP)}, 2")
            A(f"s_cbranch_scc1 L_rec_fok_{sfx}")
        flag_wait(A, f"L_rec_fw_{sfx}", 68)
        A.label(f"L_rec_fok_{sfx}")
    if stamps:
        A("s_waitcnt lgkmcnt(0)")
        for k in range(NST - 1):
            A(f"s_sub_u32 s68, s{72+2*k}, s{70+2*k}")
            A(f"s_add_u32 s{90+k}, s{90+k}, s68")
        if k4 == 3:
            A(f"s_cmp_eq_u32 {s(S_STEP)}, 7")
            A(f"s_cbranch_scc0 L_rec_join_{sfx}")
            for k in range(NST): A(f"s_mov_b32 s{90+k}, 0")
    A.label(f"L_rec_join_{sfx}")
    A(f"s_add_u32 {s(S_STEP)}, {s(S_STEP)}, 1")
    def ool():
        A.label(f"L_rec_fb_{sfx}")
        t2 = V_T + 2
        A(f"""v_mov_b32 v{t2}, v{t1}
        v_permlane16_swap_b32 v{t1}, v{t2}
        v_max_f32 v{t1}, v{t1}, v{t2}
        v_mov_b32 v{t2}, v{t1}
        v_permlane32_swap_b32 v{t1}, v{t2}
        v_max_f32 v{t1}, v{t1}, v{t2}
        v_max_f32 v{t1}, 0, v{t1}
        v_sub_f32 v{SM+2}, v{SM+2}, v{t1}
        v_sub_f32 v{SM+3}, v{SM+3}, v{t1}
        v_exp_f32 v{t2}, -v{t1}
        v_exp_f32 v{SM}, v{SM+2}
        v_exp_f32 v{SM+1}, v{SM+3}
        s_nop 7""")
        for r in range(8): A(f"v_mul_f32 v{OA+r}, v{OA+r}, v{t2}")
        for r in range(4): A(f"v_mul_f32 v{LA+r}, v{LA+r}, v{t2}")
        A("s_nop 1")
        A(f"s_branch L_rec_fbret_{sfx}")
        A.label(f"L_rec_fx_{sfx}")
        A(f"""v_max3_f32 v{m}, v{xs[0]}, v{xs[1]}, v{xs[2]}
        v_max3_f32 v{t1}, v{xs[3]}, v{xs[4]}, v{xs[5]}
        v_max3_f32 v{m}, v{m}, v{xs[6]}, v{xs[7]}
        v_max_f32 v{m}, v{m}, v{t1}
        v_mov_b32 v{t1}, v{m}
        v_permlane16_swap_b32 v{m}, v{t1}
        v_max_f32 v{m}, v{m}, v{t1}
        v_mov_b32 v{t1}, v{m}
        v_permlane32_swap_b32 v{m}, v{t1}
        v_max_f32 v{m}, v{m}, v{t1}""")
        for r in xs: A(f"v_sub_f32 v{r}, v{r}, v{m}")
        A(f"s_branch L_rec_fxret_{sfx}")
    return ool

def gen_loop(A, dbg=False, timing=False, stamps=False, n_init=0):
    gen_preloop(A, timing, stamps, n_init)
    A(f"s_cmp_eq_u32 {s(S_MODE)}, 0")
    A("s_cbranch_scc0 L_rec_step_s0")
    for mode in ("", " sc1"):
        ools = [gen_step(A, k4, mode, dbg, stamps) for k4 in range(4)]
        A(f"s_branch L_rec_step_{'s' if mode else 'f'}0")
        for o in ools: o()
    A.label("L_rec_last")
    KP = 44
    A("s_waitcnt lgkmcnt(0)")
    kv_read(A, KP)
    A(f"""s_waitcnt lgkmcnt(0)
    v_min_u32 v{KP}, -2, v{KP}
    global_store_dwordx4 {v(V_KVO)}, {v(KP,4)}, {s(S_KVB,2)} sc1
    """)
    trace(A, 3, 56)
    if timing:
        A(f"""s_memtime s[68:69]
        s_waitcnt lgkmcnt(0)
        s_sub_u32 s68, s68, s66
        v_mov_b32 v44, s68
        s_lshl_b32 {s(S_T0)}, {s(S_H)}, 2
        s_add_u32 {s(S_T0)}, {s(S_T0)}, {WS_DBG + (3<<20)}
        v_mov_b32 v45, {s(S_T0)}
        global_store_dword v45, v44, {s(S_WS,2)}""")
    if stamps:
        A(f"""s_lshl_b32 {s(S_T0)}, {s(S_H)}, 2
        s_add_u32 {s(S_T0)}, {s(S_T0)}, {s(S_W)}
        s_lshl_b32 {s(S_T0)}, {s(S_T0)}, 6
        s_add_u32 {s(S_T0)}, {s(S_T0)}, {WS_DBG + (1<<20)}""")
        add64(A, S_SRC, S_WS, s(S_T0))
        for k in range(NST):
            A(f"v_mov_b32 v46, s{90+k}")
            A(f"global_store_dword {v(V_ZZ)}, v46, {s(S_SRC,2)} offset:{4*k}")
    A("s_branch L_end")

HEADER = """.amdgcn_target "amdgcn-amd-amdhsa--gfx950"
.text
.globl {name}
.p2align 8
.type {name},@function
{name}:
"""
FOOTER = """.section .rodata,"a"
.p2align 6
.amdhsa_kernel {name}
  .amdhsa_next_free_vgpr 512
  .amdhsa_next_free_sgpr 102
  .amdhsa_accum_offset 256
  .amdhsa_group_segment_fixed_size 0
  .amdhsa_kernarg_size 128
  .amdhsa_user_sgpr_count 2
  .amdhsa_user_sgpr_kernarg_segment_ptr 1
  .amdhsa_system_sgpr_workgroup_id_x 1
.end_amdhsa_kernel
"""

def gen_standalone(dbg=True, timing=True, mode=0, stamps=False):
    A = Asm(); TB = Tables()
    A(f"""
    s_cmp_ge_u32 s2, 256
    s_cbranch_scc1 L_end
    s_load_dwordx2 {s(S_MEM0,2)}, s[0:1], 8
    s_load_dwordx4 {s(S_WQ,4)}, s[0:1], 16
    s_load_dwordx4 {s(S_WV,4)}, s[0:1], 32
    s_load_dwordx2 {s(S_DBG,2)}, s[0:1], 112
    s_load_dwordx2 {s(S_WS,2)}, s[0:1], 120
    s_getreg_b32 s3, hwreg(HW_REG_XCC_ID)
    s_and_b32 s3, s3, 7
    s_waitcnt lgkmcnt(0)
    s_cmp_eq_u32 s3, 0
    s_cbranch_scc0 L_end
    v_mov_b32 v2, 0
    v_mov_b32 v3, 1
    v_cmp_eq_u32 vcc, 0, v0
    s_and_saveexec_b64 s[4:5], vcc
    s_cbranch_execz L_tk
    global_atomic_add v4, v2, v3, {s(S_DBG,2)} sc0
    s_waitcnt vmcnt(0)
    ds_write_b32 v2, v4
    s_waitcnt lgkmcnt(0)
    L_tk:
    s_mov_b64 exec, -1
    s_barrier
    ds_read_b32 v4, v2
    s_waitcnt lgkmcnt(0)
    v_readfirstlane_b32 {s(S_H)}, v4
    s_barrier
    s_cmp_ge_u32 {s(S_H)}, 32
    s_cbranch_scc1 L_end
    s_mov_b32 {s(S_MODE)}, {mode}
    """)
    gen_prologue(A, TB)
    gen_loop(A, dbg, timing, stamps)
    A.label("L_end")
    A("s_waitcnt vmcnt(0)")
    A("s_endpgm")
    name = "rec_kernel"
    return f"; @launch grid=(256,1,1) block=(256,1,1) lds={LDS_TOTAL}\n" + HEADER.format(name=name) + A.text() + TB.text() + FOOTER.format(name=name)

if __name__ == "__main__":
    open("rec.s", "w").write(gen_standalone())
```

```python
from asmlib import *
from layout import *
import gen_rec, gen_p1, gen_p2
from gen_rec import *
NAME = "gated_mix__memory_aug_recurrent_mem_tr__moe_arch_mod__prompt_kernel"

FAKE_XCC = ""
def dispatcher(A, roles):
    A(f"""
    s_cmp_ge_u32 s2, 256
    s_cbranch_scc1 L_end
    s_load_dwordx4 s[4:7], s[0:1], 0
    s_load_dwordx4 {s(S_WQ,4)}, s[0:1], 16
    s_load_dwordx4 {s(S_WV,4)}, s[0:1], 32
    s_load_dwordx2 {s(S_DBG,2)}, s[0:1], 112
    s_load_dwordx2 {s(S_WS,2)}, s[0:1], 120
    s_getreg_b32 s3, hwreg(HW_REG_XCC_ID)
    s_and_b32 s3, s3, 7
    {FAKE_XCC}
    s_lshl_b32 {s(S_T0)}, s3, 2
    s_cmp_eq_u32 s3, 0
    s_cselect_b32 {s(S_T0)}, {DBG_XCC0}, {s(S_T0)}
    v_mov_b32 v2, {s(S_T0)}
    v_mov_b32 v3, 1
    v_mov_b32 v5, 0
    s_waitcnt lgkmcnt(0)
    v_cmp_eq_u32 vcc, 0, v0
    s_and_saveexec_b64 {s(S_SRC,2)}, vcc
    s_cbranch_execz L_tk
    global_atomic_add v4, v2, v3, {s(S_DBG,2)} sc0
    s_waitcnt vmcnt(0)
    ds_write_b32 v5, v4
    s_waitcnt lgkmcnt(0)
    L_tk:
    s_mov_b64 exec, -1
    s_barrier
    ds_read_b32 v4, v5
    s_waitcnt lgkmcnt(0)
    v_readfirstlane_b32 {s(S_T1)}, v4
    s_barrier
    s_cmp_lt_u32 {s(S_T1)}, 32
    s_cbranch_scc1 L_roles
    """)
    A(f"""v_mov_b32 v2, {DBG_OVF}
    v_cmp_eq_u32 vcc, 0, v0
    s_and_saveexec_b64 {s(S_SRC,2)}, vcc
    s_cbranch_execz L_tk2
    global_atomic_add v4, v2, v3, {s(S_DBG,2)} sc0
    s_waitcnt vmcnt(0)
    ds_write_b32 v5, v4
    s_waitcnt lgkmcnt(0)
    L_tk2:
    s_mov_b64 exec, -1
    s_barrier
    ds_read_b32 v4, v5
    s_waitcnt lgkmcnt(0)
    v_readfirstlane_b32 {s(S_T2)}, v4
    s_barrier
    s_mov_b32 {s(S_SPIN)}, 0""")
    A.label("L_ovf_w")
    spin_guard(A)
    load_counters(A, 6, 70)
    A(f"""s_cmp_ge_u32 {s(S_T0)}, 256
    s_cbranch_scc0 L_ovf_w""")
    for x in range(8):
        A(f"""s_min_u32 {s(S_T0)}, s{70+x}, 32
        s_sub_u32 {s(S_T3)}, 32, {s(S_T0)}
        s_mov_b32 s3, {x}
        s_add_u32 {s(S_T1)}, {s(S_T0)}, {s(S_T2)}
        s_cmp_lt_u32 {s(S_T2)}, {s(S_T3)}
        s_cbranch_scc1 L_roles
        s_sub_u32 {s(S_T2)}, {s(S_T2)}, {s(S_T3)}""")
    A("s_branch L_end")
    A.label("L_roles")
    gen_rec.trace(A, 0, 6)
    A(f"s_cmp_eq_u32 s3, 0")
    A(f"s_cbranch_scc1 {'L_role_rec' if 'rec' in roles else 'L_end'}")
    A(f"s_cmp_le_u32 s3, 4")
    A(f"s_cbranch_scc1 {'L_role_p1' if 'p1' in roles else 'L_end'}")
    A(f"s_branch {'L_role_p2' if 'p2' in roles else 'L_end'}")

def gen(roles=("rec", "p1", "p2"), n_init=96, dbg=False, timing=False, stamps=False, name=NAME):
    A = Asm(); TB = Tables()
    dispatcher(A, roles)
    if "p1" in roles:
        A.label("L_role_p1")
        for _ in range(gen_rec.PRM.get("slp1", 0)): A("s_sleep 32")
        A(f"""s_sub_u32 {s(S_T0)}, s3, 1
        s_lshl_b32 {s(S_T0)}, {s(S_T0)}, 3
        s_and_b32 {s(S_H)}, {s(S_T1)}, 7
        s_add_u32 {s(S_H)}, {s(S_H)}, {s(S_T0)}
        s_lshr_b32 {s(gen_p1.S_TBK)}, {s(S_T1)}, 3""")
        gen_p1.gen_p1(A, TB, n_init)
    if "p2" in roles:
        A.label("L_role_p2")
        for _ in range(gen_rec.PRM.get("slp2", 0)): A("s_sleep 32")
        A(f"s_sub_u32 {s(gen_p2.S_GRP)}, s3, 5")
        A(f"s_mov_b32 {s(gen_p2.S_TK)}, {s(S_T1)}")
        gen_p2.gen_p2(A, TB, n_init)
    if "rec" in roles:
        A.label("L_role_rec")
        A(f"s_mov_b32 {s(S_H)}, {s(S_T1)}")
        A(f"s_mov_b32 {s(S_MODE)}, 0")
        gen_prologue(A, TB)
        gen_loop(A, dbg, timing, stamps, n_init)
    A.label("L_end")
    A("s_waitcnt vmcnt(0)")
    A("s_endpgm")
    return f"; @launch grid=(256,1,1) block=(256,1,1) lds={LDS_TOTAL}\n" + HEADER.format(name=name) + A.text() + TB.text() + FOOTER.format(name=name)

if __name__ == "__main__":
    open("main.s", "w").write(gen(name="main_kernel"))
    hdr = open("gated_mix__memory_aug_recurrent_mem_tr__moe_arch_mod__prompt.s.ref").read().split("; @launch")[0]
    open("gated_mix__memory_aug_recurrent_mem_tr__moe_arch_mod__prompt.s", "w").write(hdr + gen())
```

```python
from asmlib import *
from layout import *
import gen_rec
from gen_rec import add64, f32bits, dec, spin_guard, S_WO, S_WS, S_DBG, S_H, S_W, S_SPIN, S_T0, S_T1, S_T2, S_T3, S_SRC, S_TB, LT
import math
S_X = 4
S_GRP, S_KS, S_NS, S_TK = 22, 23, 24, 25
S_C = 26
S_SEG = 28
S_PH = 29
S_OUT, S_WR, S_WG, S_WU, S_WD, S_GW = 30, 32, 34, 36, 38, 40
S_IDX = 42
S_RS = 66
S_B0, S_B1, S_B2, S_B3 = 74, 76, 78, 80
S_PAR = 82
S_FIRST = 83
LOG2E = math.log2(math.e)

def wait_counter(A, off, n, vt, vz):
    l, l2 = A.uid("Lwc"), A.uid("Lwc")
    A(f"s_mov_b32 {s(S_SPIN)}, 0")
    A(f"s_branch {l2}")
    A.label(l)
    A("s_sleep 8")
    A.label(l2)
    A(f"global_load_dword v{vt}, v{vz}, {s(S_DBG,2)} offset:{off} sc1")
    spin_guard(A)
    A(f"""s_waitcnt vmcnt(0)
    v_readfirstlane_b32 {s(S_T0)}, v{vt}
    s_cmp_ge_u32 {s(S_T0)}, {n}
    s_cbranch_scc0 {l}""")

def wait_flags(A, vaddr, vt, sleep=2):
    l, l2 = A.uid("Lwf"), A.uid("Lwf")
    A(f"s_mov_b32 {s(S_SPIN)}, 0")
    A(f"s_branch {l2}")
    A.label(l)
    A(f"s_sleep {sleep}")
    A.label(l2)
    A(f"global_load_dword v{vt}, v{vaddr}, {s(S_WS,2)} sc1")
    spin_guard(A)
    A(f"""s_waitcnt vmcnt(0)
    v_cmp_ne_u32 vcc, 1, v{vt}
    s_cbranch_vccnz {l}""")

def set_flag(A, soff, vt):
    ln = A.uid("Lsf")
    A(f"""s_waitcnt vmcnt(0)
    s_barrier
    s_cmp_eq_u32 {s(S_W)}, 0
    s_cbranch_scc0 {ln}
    v_mov_b32 v{vt}, {soff}
    v_mov_b32 v{vt+1}, 1
    global_store_dword v{vt}, v{vt+1}, {s(S_WS,2)} sc1""")
    A.label(ln)

def rbf(A, d, x):
    A(f"v_cvt_pk_bf16_f32 v{d}, v{x}, v{x}")
    A(f"v_and_b32 v{d}, 0xffff0000, v{d}")

def sigmoid(A, d, x):
    A(f"v_mul_f32 v{d}, {f32bits(-LOG2E):#x}, v{x}")
    A(f"v_exp_f32 v{d}, v{d}")
    A(f"v_add_f32 v{d}, 1.0, v{d}")
    A(f"v_rcp_f32 v{d}, v{d}")

def allreduce(A, op, r, t):
    for c in ("quad_perm:[1,0,3,2]", "quad_perm:[2,3,0,1]", "row_ror:4", "row_ror:8"):
        A(f"{op}_dpp v{t}, v{r}, v{r} {c} row_mask:0xf bank_mask:0xf")
        A(f"v_mov_b32 v{r}, v{t}")
    for p in ("v_permlane16_swap_b32", "v_permlane32_swap_b32"):
        A(f"v_mov_b32 v{t}, v{r}")
        A(f"{p} v{r}, v{t}")
        A(f"{op} v{r}, v{r}, v{t}")

def gen_init(A, idx_sgpr, n_wg):
    A.comment("--- init job")
    A(f"""v_lshlrev_b32 v8, 4, v0
    v_mov_b32 v12, 0
    v_mov_b32 v13, 0
    v_mov_b32 v14, 0
    v_mov_b32 v15, 0
    v_mov_b32 v16, -1
    v_mov_b32 v17, -1
    v_mov_b32 v18, -1
    v_mov_b32 v19, -1""")
    for base, units, reg in ((WS_FLAGS, FL_TOTAL // 4096, 12), (WS_P2, 768, 12)):
        l, le = A.uid("Lin"), A.uid("Lin")
        A(f"s_mov_b32 {s(S_T0)}, {idx_sgpr}")
        A.label(l)
        A(f"""s_cmp_ge_u32 {s(S_T0)}, {units}
        s_cbranch_scc1 {le}
        s_lshl_b32 {s(S_T1)}, {s(S_T0)}, 12
        s_add_u32 {s(S_T1)}, {s(S_T1)}, {base}""")
        add64(A, S_SRC, S_WS, s(S_T1))
        A(f"""global_store_dwordx4 v8, {v(reg,4)}, {s(S_SRC,2)} sc1
        s_add_u32 {s(S_T0)}, {s(S_T0)}, {n_wg}
        s_branch {l}""")
        A.label(le)
    ln = A.uid("Lin")
    A(f"""s_waitcnt vmcnt(0)
    s_barrier
    v_cmp_eq_u32 vcc, 0, v0
    s_and_saveexec_b64 {s(S_SRC,2)}, vcc
    s_cbranch_execz {ln}
    v_mov_b32 v16, 1
    global_atomic_add v12, v16, {s(S_DBG,2)} offset:{DBG_INIT}""")
    A.label(ln)
    A("s_mov_b64 exec, -1")

def gen_m1(A, n_init):
    A.comment("--- M1: router/gate")
    A(f"""s_lshl_b32 {s(S_T3)}, {s(S_GRP)}, 5
    s_add_u32 {s(S_T3)}, {s(S_T3)}, {s(S_TK)}
    s_lshl_b32 {s(S_T0)}, {s(S_T3)}, 15
    s_lshl_b32 {s(S_T1)}, {s(S_W)}, 13
    s_add_u32 {s(S_T0)}, {s(S_T0)}, {s(S_T1)}
    s_add_u32 {s(S_T0)}, {s(S_T0)}, 4096""")
    add64(A, S_B0, S_X, s(S_T0))
    A(f"global_load_dwordx4 v[8:11], v2, {s(S_WR,2)}")
    A(f"global_load_dwordx4 v[12:15], v2, {s(S_GW,2)}")
    for k in range(8): A(f"global_load_dwordx4 {v(64+4*k,4)}, v2, {s(S_B0,2)} offset:{1024*k-4096}")
    A("s_waitcnt vmcnt(8)")
    for j in range(4):
        A(f"v_lshlrev_b32 v{16+2*j}, 16, v{8+j}")
        A(f"v_and_b32 v{17+2*j}, 0xffff0000, v{8+j}")
        A(f"v_lshlrev_b32 v{24+2*j}, 16, v{12+j}")
        A(f"v_and_b32 v{25+2*j}, 0xffff0000, v{12+j}")
    RK, GG = 48, 49
    for k in range(8):
        A(f"s_waitcnt vmcnt({7-k})")
        for j in range(4):
            A(f"v_lshlrev_b32 v{32+2*j}, 16, v{64+4*k+j}")
            A(f"v_and_b32 v{33+2*j}, 0xffff0000, v{64+4*k+j}")
        A(f"v_mul_f32 v40, v32, v16")
        for j in range(1, 8): A(f"v_fmac_f32 v40, v{32+j}, v{16+j}")
        for j in range(8): A(f"v_mul_f32 v{32+j}, v{32+j}, v{24+j}")
        for j in range(4): A(f"v_cvt_pk_bf16_f32 v{32+j}, v{32+2*j}, v{33+2*j}")
        A(f"v_dot2_f32_bf16 v41, v32, {s(S_T2)}, 0" if False else "v_mov_b32 v42, 0x3f803f80")
        A("v_dot2_f32_bf16 v41, v32, v42, 0")
        for j in range(1, 4): A(f"v_dot2_f32_bf16 v41, v{32+j}, v42, v41")
        allreduce(A, "v_add_f32", 40, 43)
        allreduce(A, "v_add_f32", 41, 43)
        A(f"v_cmp_eq_u32 vcc, {k}, v1")
        A(f"v_cndmask_b32 v{RK}, v{RK}, v40, vcc")
        A(f"v_cndmask_b32 v{GG}, v{GG}, v41, vcc")
    A(f"""v_cvt_pk_bf16_f32 v50, v{RK}, v{RK}
    v_and_b32 v50, 0xffff0000, v50
    v_ashrrev_i32 v51, 31, v50
    v_or_b32 v51, 0x80000000, v51
    v_xor_b32 v50, v50, v51
    v_and_b32 v50, 0xffff0000, v50
    s_lshl_b32 {s(S_T0)}, {s(S_T3)}, 5
    s_lshl_b32 {s(S_T1)}, {s(S_W)}, 3
    s_add_u32 {s(S_T0)}, {s(S_T0)}, {s(S_T1)}
    v_add_u32 v52, {s(S_T0)}, v1
    v_sub_u32 v53, 0xffff, v52
    v_or_b32 v50, v50, v53""")
    rbf(A, 54, GG)
    sigmoid(A, 55, 54)
    rbf(A, 54, 55)
    A("v_sub_f32 v55, 1.0, v54")
    rbf(A, 55, 55)
    A(f"""v_lshlrev_b32 v56, 2, v52
    v_add_u32 v56, {WS_RKEY}, v56
    v_lshlrev_b32 v57, 3, v52
    v_add_u32 v57, {WS_G}, v57
    s_mov_b64 exec, 0xff
    global_store_dword v56, v50, {s(S_WS,2)} sc1
    global_store_dwordx2 v57, v[54:55], {s(S_WS,2)} sc1
    s_mov_b64 exec, -1""")
    wait_counter(A, DBG_INIT, n_init, 58, 3)
    A(f"s_lshl_b32 {s(S_T1)}, {s(S_T3)}, 7")
    A(f"s_add_u32 {s(S_T1)}, {s(S_T1)}, {WS_FLAGS+FL_M1}")
    set_flag(A, s(S_T1), 58)

def gen_top8(A, n_init):
    A.comment("--- top8")
    wait_counter(A, DBG_INIT, n_init, 58, 3)
    A(f"v_lshlrev_b32 v8, 7, v1")
    A(f"v_add_u32 v8, {WS_FLAGS+FL_M1}, v8")
    wait_flags(A, 8, 9)
    add64(A, S_B0, S_WS, WS_RKEY + 4096)
    K = 64
    for k in range(8): A(f"global_load_dwordx4 {v(K+4*k,4)}, v2, {s(S_B0,2)} offset:{1024*k-4096} sc1")
    A("s_waitcnt vmcnt(0)")
    A(f"s_mov_b32 {s(S_T1)}, 0")
    for rnd in range(8):
        A(f"v_max3_u32 v8, v{K}, v{K+1}, v{K+2}")
        for j in range(3, 31, 2): A(f"v_max3_u32 v8, v8, v{K+j}, v{K+j+1}")
        A(f"v_max_u32 v8, v8, v{K+31}")
        allreduce(A, "v_max_u32", 8, 9)
        A(f"v_readfirstlane_b32 {s(S_T0)}, v8")
        A(f"s_add_u32 {s(S_T1)}, {s(S_T1)}, {s(S_T0)}")
        A(f"s_mov_b32 {s(S_RS+rnd)}, {s(S_T1)}")
        A(f"s_and_b32 {s(S_T2)}, {s(S_T1)}, 0xffff")
        A(f"s_sub_u32 {s(S_T2)}, 0xffff, {s(S_T2)}")
        A(f"s_and_b32 {s(S_IDX+rnd)}, {s(S_T2)}, 2047")
        if rnd < 7:
            for j in range(32): A(f"v_subrev_u32 v{K+j}, {s(S_T0)}, v{K+j}")

def gen_m2(A, TB, n_init):
    A.comment("--- M2: FFN slice fs = tk (64 cols)")
    def f_dg(tid):
        w, l = tid >> 6, tid & 63
        return (128 * w + (l >> 3)) * 3584 + (l & 7) * 16
    def f_trg(tid):
        w, l, n, g = dec(tid); r, c = n >> 2, n & 3
        return (8 * g + r) * 128 + w * 32 + 8 * c
    def f_trd(tid):
        w, l, n, g = dec(tid); r, c = n >> 2, n & 3
        return (8 * g + r) * 1024 + w * 256 + 8 * c
    def f_hw(tid):
        w, l, n, g = dec(tid); return 131072 + n * 128 + (16 * w + 4 * g) * 2
    g0 = TB.add([f_dg, f_trg, f_trd, f_hw])
    def f_hr(tid):
        w, l, n, g = dec(tid); return 131072 + n * 128 + g * 16
    def f_yo(tid):
        w, l, n, g = dec(tid); return (n & 7) * 2048 + (128 * w + 4 * g) * 4
    g1 = TB.add([f_hr, f_yo, lambda t: ((t & 63) >> 4) * 16, lambda t: t & 7])
    A("v_lshlrev_b32 v4, 4, v0")
    TB.load(A, g0, 16, 4, S_TB, S_SRC)
    TB.load(A, g1, 20, 4, S_TB, S_SRC)
    V_DG, V_TRG, V_TRD, V_HW, V_HR, V_YO, V_G16, V_T7 = range(16, 24)
    A(f"s_lshl_b32 {s(S_T0)}, {s(S_TK)}, 7")
    add64(A, S_B0, S_WG, s(S_T0))
    add64(A, S_B1, S_WU, s(S_T0))
    A(f"s_lshl_b32 {s(S_T2)}, {s(S_W)}, 14")
    A("s_waitcnt vmcnt(0)")
    for m, b in enumerate((S_B0, S_B1)):
        for i in range(16):
            A(f"s_add_u32 m0, {s(S_T2)}, {m*65536+i*1024}")
            A(f"s_nop 0")
            A(f"global_load_lds_dwordx4 v{V_DG}, {s(b,2)}")
            add64(A, b, b, 8 * 3584)
    gen_top8(A, n_init)
    A(f"v_mov_b32 v8, {s(S_IDX)}")
    for k in range(1, 8):
        A(f"v_cmp_eq_u32 vcc, {k}, v{V_T7}")
        A(f"v_mov_b32 v9, {s(S_IDX+k)}")
        A(f"v_cndmask_b32 v8, v8, v9, vcc")
    A(f"v_lshl_add_u32 v8, v8, 10, v{V_G16}")
    XB = 64
    for ks in range(16): A(f"global_load_dwordx4 {v(XB+4*ks,4)}, v8, {s(S_X,2)} offset:{64*ks}")
    A("s_waitcnt vmcnt(0)")
    A("s_barrier")
    AG, AU, WFR = 24, 28, 32
    A(f"v_add_u32 v9, 0x10000, v{V_TRG}")
    for ks in range(16):
        for m, (acc, ad) in enumerate(((AG, V_TRG), (AU, 9))):
            r = WFR + 8 * (ks & 1) + 4 * m
            for qd in range(2): A(f"ds_read_b64_tr_b16 {v(r+2*qd,2)}, v{ad} offset:{(32*ks+4*qd)*128}")
        if ks > 0:
            A("s_waitcnt lgkmcnt(4)")
            for m, acc in enumerate((AG, AU)):
                r = WFR + 8 * ((ks - 1) & 1) + 4 * m
                A(f"v_mfma_f32_16x16x32_bf16 {v(acc,4)}, {v(r,4)}, {v(XB+4*(ks-1),4)}, {'0' if ks == 1 else v(acc,4)}")
    A("s_waitcnt lgkmcnt(0)")
    for m, acc in enumerate((AG, AU)):
        A(f"v_mfma_f32_16x16x32_bf16 {v(acc,4)}, {v(WFR+8+4*m,4)}, {v(XB+60,4)}, {v(acc,4)}")
    A("s_barrier")
    A(f"""s_lshl_b32 {s(S_T0)}, {s(S_TK)}, 16
    s_lshl_b32 {s(S_T2)}, {s(S_W)}, 14
    s_add_u32 {s(S_T0)}, {s(S_T0)}, {s(S_T2)}""")
    add64(A, S_B0, S_WD, s(S_T0))
    for i in range(16):
        A(f"s_add_u32 m0, {s(S_T2)}, {i*1024}")
        A("s_nop 0")
        A(f"global_load_lds_dwordx4 v2, {s(S_B0,2)}")
        add64(A, S_B0, S_B0, 1024)
    for r in range(4):
        rbf(A, AG + r, AG + r)
        sigmoid(A, 48, AG + r)
        A(f"v_mul_f32 v{AG+r}, v{AG+r}, v48")
        rbf(A, AG + r, AG + r)
        rbf(A, AU + r, AU + r)
        A(f"v_mul_f32 v{AG+r}, v{AG+r}, v{AU+r}")
    A(f"""v_cvt_pk_bf16_f32 v48, v{AG}, v{AG+1}
    v_cvt_pk_bf16_f32 v49, v{AG+2}, v{AG+3}
    ds_write_b64 v{V_HW}, v[48:49]
    s_waitcnt vmcnt(0) lgkmcnt(0)
    s_barrier
    ds_read_b128 v[52:55], v{V_HR}
    ds_read_b128 v[56:59], v{V_HR} offset:64""")
    A(f"s_mul_i32 {s(S_T0)}, {s(S_TK)}, 16384")
    A(f"s_add_u32 {s(S_T0)}, {s(S_T0)}, {WS_YP}")
    add64(A, S_B0, S_WS, s(S_T0))
    for T in range(8):
        for kk in range(2):
            for qd in range(2): A(f"ds_read_b64_tr_b16 {v(64+8*T+4*kk+2*qd,2)}, v{V_TRD} offset:{(32*kk+4*qd)*1024+T*32}")
        if T % 2 == 1: A("s_waitcnt lgkmcnt(0)")
    for T in range(8):
        for kk in range(2):
            A(f"v_mfma_f32_16x16x32_bf16 {v(128+4*T,4)}, {v(64+8*T+4*kk,4)}, {v(52+4*kk,4)}, {'0' if kk == 0 else v(128+4*T,4)}")
    for T in range(8): A(f"global_store_dwordx4 v{V_YO}, {v(128+4*T,4)}, {s(S_B0,2)} offset:{64*T} sc1")
    A(f"s_lshl_b32 {s(S_T1)}, {s(S_TK)}, 7")
    A(f"s_add_u32 {s(S_T1)}, {s(S_T1)}, {WS_FLAGS+FL_M2}")
    set_flag(A, s(S_T1), 58)

def gen_m3(A, n_init):
    A.comment("--- M3: rows 2*(tk-28), +1")
    gen_top8(A, n_init)
    A(f"v_min_u32 v8, 27, v1")
    A(f"v_lshlrev_b32 v8, 7, v8")
    A(f"v_add_u32 v8, {WS_FLAGS+FL_M2}, v8")
    wait_flags(A, 8, 9)
    A(f"""s_sub_u32 {s(S_T3)}, {s(S_TK)}, 28
    s_lshl_b32 {s(S_T3)}, {s(S_T3)}, 1
    s_lshr_b32 {s(S_T0)}, {s(S_W)}, 1
    s_add_u32 {s(S_T3)}, {s(S_T3)}, {s(S_T0)}
    s_mov_b32 {s(S_T1)}, {s(S_IDX)}
    s_mov_b32 {s(S_T2)}, {s(S_RS)}""")
    for k in range(1, 8):
        A(f"s_cmp_eq_u32 {s(S_T3)}, {k}")
        A(f"s_cselect_b32 {s(S_T1)}, {s(S_IDX+k)}, {s(S_T1)}")
        A(f"s_cselect_b32 {s(S_T2)}, {s(S_RS+k)}, {s(S_T2)}")
    A(f"""s_and_b32 {s(S_T0)}, {s(S_W)}, 1
    s_lshl_b32 {s(S_T0)}, {s(S_T0)}, 10
    v_add_u32 v8, {s(S_T0)}, v2
    v_lshrrev_b32 v9, 1, v8
    s_lshl_b32 {s(S_T0)}, {s(S_T3)}, 11
    s_add_u32 {s(S_T0)}, {s(S_T0)}, {WS_YP}""")
    add64(A, S_B0, S_WS, s(S_T0))
    for f in range(28):
        A(f"global_load_dwordx4 {v(64+4*f,4)}, v8, {s(S_B0,2)} sc1")
        add64(A, S_B0, S_B0, 16384)
    A(f"s_lshl_b32 {s(S_T0)}, {s(S_T1)}, 10")
    add64(A, S_B1, S_X, s(S_T0))
    A(f"global_load_dwordx2 v[10:11], v9, {s(S_B1,2)}")
    A(f"""s_and_b32 {s(S_T2)}, {s(S_T2)}, 0xffff0000
    v_mov_b32 v12, {s(S_T2)}
    v_ashrrev_i32 v13, 31, v12
    v_not_b32 v13, v13
    v_or_b32 v13, 0x80000000, v13
    v_xor_b32 v12, v12, v13
    v_and_b32 v12, 0xffff0000, v12""")
    sigmoid(A, 13, 12)
    rbf(A, 13, 13)
    A("s_waitcnt vmcnt(0)")
    for f in range(1, 28):
        for r in range(4): A(f"v_add_f32 v{64+r}, v{64+r}, v{64+4*f+r}")
    A("""v_lshlrev_b32 v14, 16, v10
    v_and_b32 v15, 0xffff0000, v10
    v_lshlrev_b32 v16, 16, v11
    v_and_b32 v17, 0xffff0000, v11""")
    for r in range(4):
        rbf(A, 64 + r, 64 + r)
        A(f"v_mul_f32 v{64+r}, v{64+r}, v13")
        rbf(A, 64 + r, 64 + r)
        A(f"v_add_f32 v{64+r}, v{64+r}, v{14+r}")
    A(f"""v_cvt_pk_bf16_f32 v10, v64, v65
    v_cvt_pk_bf16_f32 v11, v66, v67
    s_lshl_b32 {s(S_T0)}, {s(S_T3)}, 10
    s_add_u32 {s(S_T0)}, {s(S_T0)}, {WS_BSEL}""")
    add64(A, S_B0, S_WS, s(S_T0))
    A(f"""global_store_dwordx2 v9, v[10:11], {s(S_B0,2)} sc1
    s_lshl_b32 {s(S_T0)}, {s(S_T3)}, 7
    s_add_u32 {s(S_T0)}, {s(S_T0)}, {WS_IDX}
    v_mov_b32 v12, {s(S_T0)}
    v_mov_b32 v13, {s(S_T1)}
    global_store_dword v12, v13, {s(S_WS,2)} sc1
    s_sub_u32 {s(S_T1)}, {s(S_TK)}, 28
    s_lshl_b32 {s(S_T1)}, {s(S_T1)}, 7
    s_add_u32 {s(S_T1)}, {s(S_T1)}, {WS_FLAGS+FL_M3}""")
    set_flag(A, s(S_T1), 58)

def gen_p2(A, TB, n_init):
    A.comment("=== phase 2 role ===")
    A(f"""s_load_dwordx2 {s(S_OUT,2)}, s[0:1], 104
    s_load_dwordx4 {s(S_WR,4)}, s[0:1], 64
    s_load_dwordx4 {s(S_WU,4)}, s[0:1], 80
    s_load_dwordx2 {s(S_GW,2)}, s[0:1], 96
    v_lshrrev_b32 v4, 6, v0
    v_and_b32 v1, 63, v0
    v_lshlrev_b32 v2, 4, v1
    v_mov_b32 v3, 0
    v_readfirstlane_b32 {s(S_W)}, v4
    s_lshr_b32 {s(S_KS)}, {s(S_TK)}, 2
    s_and_b32 {s(S_NS)}, {s(S_TK)}, 3
    s_mov_b32 {s(S_C)}, {f32bits(128**-0.5 * LOG2E):#x}""")
    TB.base(A, S_TB)
    A(f"""s_lshl_b32 {s(S_T3)}, {s(S_GRP)}, 5
    s_add_u32 {s(S_T3)}, {s(S_T3)}, {s(S_TK)}""")
    gen_init(A, s(S_T3), 96)
    A(f"""s_waitcnt lgkmcnt(0)
    s_cmp_eq_u32 {s(S_GRP)}, 2
    s_cbranch_scc1 L_p2_moe""")
    gen_m1(A, n_init)
    A("s_branch L_p2_main")
    A.label("L_p2_moe")
    A(f"s_cmp_ge_u32 {s(S_TK)}, 28")
    A("s_cbranch_scc1 L_p2_m3")
    gen_m2(A, TB, n_init)
    A("s_branch L_p2_main")
    A.label("L_p2_m3")
    gen_m3(A, n_init)
    A.label("L_p2_main")
    gen_rec.trace(A, 1, 8)
    def f_dw(tid):
        w, l, n, g = dec(tid); return g * 1024 + ((n ^ (g << 2)) * 16)
    def f_tr(dt):
        def f(tid):
            w, l, n, G = dec(tid); r, c = n >> 2, n & 3
            return w * 32768 + (4 * (G >> 1) + r) * 256 + ((dt ^ r) * 64) + (G & 1) * 32 + 8 * c
        return f
    def f_k(tid):
        l = tid & 63; key = l & 7; return ((l >> 5) * 16 + 4 * (key >> 1) + 2 + (key & 1)) * 16
    def f_v(tid):
        l = tid & 63; e = l & 31; key = e & 7; return ((e >> 3) * 16 + 4 * (key >> 1) + (key & 1)) * 16
    g0 = TB.add([f_dw, f_k, f_v, lambda t: (t & 31) * 4])
    g1 = TB.add([f_tr(0), f_tr(1), f_tr(2), f_tr(3)])
    g2 = TB.add([lambda t: (t >> 6) * 16384 + (t & 63) * 16, lambda t: (t >> 6) * 4096 + (t & 63) * 16,
                 lambda t: (t & 31) * 1024 + ((t >> 6) & 1) * 16 + ((t >> 5) & 1) * 8, lambda t: (t & 31) * 8])
    V_DW, V_K, V_V, V_ST, V_TR, V_RW, V_RR, V_XO, V_GO = 4, 5, 6, 7, 8, 12, 13, 14, 15
    A("v_lshlrev_b32 v16, 4, v0")
    A("s_barrier")
    for g, r in ((g0, 4), (g1, 8), (g2, 12)): TB.load(A, g, r, 16, S_TB, S_SRC)
    A(f"""s_lshl_b32 {s(S_H)}, {s(S_KS)}, 2
    s_add_u32 {s(S_H)}, {s(S_H)}, {s(S_W)}
    s_lshl_b32 {s(S_T0)}, {s(S_H)}, 17
    s_lshl_b32 {s(S_T1)}, {s(S_NS)}, 8
    s_add_u32 {s(S_T0)}, {s(S_T0)}, {s(S_T1)}""")
    add64(A, S_B0, S_WO, s(S_T0))
    A(f"s_lshl_b32 {s(S_T2)}, {s(S_W)}, 15")
    A("s_waitcnt vmcnt(0)")
    for i in range(32):
        A(f"s_add_u32 m0, {s(S_T2)}, {i*1024}")
        A("s_nop 0")
        A(f"global_load_lds_dwordx4 v{V_DW}, {s(S_B0,2)}")
        add64(A, S_B0, S_B0, 4096)
    A("s_waitcnt vmcnt(0)")
    WOF = lambda dt, k: a((dt * 8 + k) * 4, 4)
    for dt in range(4):
        for k in range(8):
            for qd in range(2):
                A(f"ds_read_b64_tr_b16 {a((dt*8+k)*4+2*qd,2)}, v{V_TR+dt} offset:{(16*k+8*qd)*256}")
            if k % 4 == 3: A("s_waitcnt lgkmcnt(0)")
    wait_counter(A, DBG_INIT, n_init, 16, 3)
    A(f"""v_and_b32 v16, 3, v1
    s_lshl_b32 {s(S_T0)}, {s(S_H)}, 2
    v_add_u32 v16, {s(S_T0)}, v16
    v_lshlrev_b32 v16, 7, v16
    v_add_u32 v16, {WS_FLAGS+FL_MINI}, v16""")
    wait_flags(A, 16, 17, 8)
    A(f"""s_mov_b32 {s(S_SEG)}, {s(S_GRP)}
    s_mov_b32 {s(S_PAR)}, 0
    s_mov_b32 {s(S_PH)}, 1
    s_mov_b32 {s(S_FIRST)}, 1
    s_barrier""")
    QF, OXP, KF, VF, OA, OUT, SA = 128, 32, 64, 96, 128, 192, 112
    A.label("L_p2_seg")
    A(f"""s_lshr_b32 {s(S_T1)}, {s(S_SEG)}, 2
    s_lshl_b32 {s(S_T1)}, {s(S_T1)}, 5
    s_add_u32 {s(S_T1)}, {s(S_T1)}, {s(S_H)}
    s_lshl_b32 {s(S_T1)}, {s(S_T1)}, 7
    s_add_u32 {s(S_T1)}, {s(S_T1)}, {WS_FLAGS+FL_P1B}
    v_mov_b32 v16, {s(S_T1)}""")
    wait_flags(A, 16, 17, 8)
    A(f"""s_lshl_b32 {s(S_T3)}, {s(S_SEG)}, 5
    s_add_u32 {s(S_T3)}, {s(S_T3)}, {s(S_H)}
    s_lshl_b32 {s(S_T0)}, {s(S_T3)}, 13
    s_add_u32 {s(S_T0)}, {s(S_T0)}, {WS_Q+4096}""")
    add64(A, S_B0, S_WS, s(S_T0))
    add64(A, S_B1, S_B0, WS_OX - WS_Q)
    A(f"s_lshl_b32 {s(S_T0)}, {s(S_T3)}, 7")
    A(f"s_add_u32 {s(S_T0)}, {s(S_T0)}, {WS_ST}")
    add64(A, S_B2, S_WS, s(S_T0))
    A(f"s_lshl_b32 {s(S_T0)}, {s(S_T3)}, 12")
    A(f"s_add_u32 {s(S_T0)}, {s(S_T0)}, {WS_KV}")
    add64(A, S_B3, S_WS, s(S_T0))
    for k in range(8): A(f"global_load_dwordx4 {v(OXP+4*k,4)}, v2, {s(S_B1,2)} offset:{1024*k-4096} sc1")
    for k in range(8): A(f"global_load_dwordx4 {a(QF+4*k,4)}, v2, {s(S_B0,2)} offset:{1024*k-4096} sc1")
    LSE = 18
    A(f"global_load_dword v{LSE}, v{V_ST}, {s(S_B2,2)} sc1")
    A("s_waitcnt vmcnt(9)")
    for j in range(32):
        A(f"v_lshlrev_b32 v{OA+2*j}, 16, v{OXP+j}")
        A(f"v_and_b32 v{OA+2*j+1}, 0xffff0000, v{OXP+j}")
    A(f"s_mov_b32 {s(S_SPIN)}, 0")
    A("s_branch L_p2_kv2")
    A.label("L_p2_kv")
    A("s_sleep 4")
    A.label("L_p2_kv2")
    for k in range(8): A(f"global_load_dwordx4 {v(KF+4*k,4)}, v{V_K}, {s(S_B3,2)} offset:{k*512} sc1")
    for et in range(4): A(f"global_load_dwordx4 {v(VF+4*et,4)}, v{V_V}, {s(S_B3,2)} offset:{et*1024} sc1")
    spin_guard(A)
    A("s_waitcnt vmcnt(0)")
    A(f"v_max3_u32 v16, v{KF}, v{KF+4}, v{KF+8}")
    for j in range(3, 11, 2): A(f"v_max3_u32 v16, v16, v{KF+4*j}, v{KF+4*j+4}")
    A(f"""v_max_u32 v16, v16, v{KF+44}
    v_cmp_eq_u32 vcc, -1, v16
    s_cbranch_vccnz L_p2_kv""")
    for k in range(8):
        A(f"v_mfma_f32_32x32x16_bf16 {v(SA,16)}, {v(KF+4*k,4)}, {a(QF+4*k,4)}, {'0' if k == 0 else v(SA,16)}")
    A("v_cmp_lt_u32 vcc, 31, v1")
    for et in range(4):
        A(f"v_cndmask_b32 v{VF+4*et}, v{VF+4*et}, v{VF+4*et+2}, vcc")
        A(f"v_cndmask_b32 v{VF+4*et+1}, v{VF+4*et+1}, v{VF+4*et+3}, vcc")
    m, t1, al, l = 19, 20, 21, 22
    for r in range(4): A(f"v_mul_f32 v{SA+r}, {s(S_C)}, v{SA+r}")
    A(f"""v_max3_f32 v{m}, v{SA}, v{SA+1}, v{SA+2}
    v_max3_f32 v{m}, v{m}, v{SA+3}, v{LSE}
    v_mov_b32 v{t1}, v{m}
    v_permlane32_swap_b32 v{m}, v{t1}
    v_max_f32 v{m}, v{m}, v{t1}""")
    for r in range(4): A(f"v_sub_f32 v{SA+r}, v{SA+r}, v{m}")
    A(f"v_sub_f32 v{al}, v{LSE}, v{m}")
    for r in range(4): A(f"v_exp_f32 v{SA+r}, v{SA+r}")
    A(f"""v_exp_f32 v{al}, v{al}
    v_add_f32 v{l}, v{SA}, v{SA+1}
    v_add_f32 v{t1}, v{SA+2}, v{SA+3}
    v_add_f32 v{l}, v{l}, v{t1}
    v_mov_b32 v{t1}, v{l}
    v_permlane32_swap_b32 v{l}, v{t1}
    v_add_f32 v{l}, v{l}, v{t1}
    v_add_f32 v{l}, v{l}, v{al}
    v_rcp_f32 v{l}, v{l}
    s_nop 0
    v_mul_f32 v{al}, v{al}, v{l}""")
    for r in range(4): A(f"v_mul_f32 v{SA+r}, v{SA+r}, v{l}")
    A(f"v_cvt_pk_bf16_f32 v24, v{SA}, v{SA+1}")
    A(f"v_cvt_pk_bf16_f32 v25, v{SA+2}, v{SA+3}")
    for et in range(4):
        for j in range(16): A(f"v_mul_f32 v{OA+16*et+j}, v{OA+16*et+j}, v{al}")
        A(f"v_mfma_f32_32x32x8_bf16 {v(OA+16*et,16)}, {v(VF+4*et,2)}, v[24:25], {v(OA+16*et,16)}")
    for et in range(4):
        for j in range(8): A(f"v_cvt_pk_bf16_f32 v{OXP+8*et+j}, v{OA+16*et+2*j}, v{OA+16*et+2*j+1}")
        for f in range(2):
            k = 2 * et + f
            for dt in range(4):
                A(f"v_mfma_f32_32x32x16_bf16 {v(OUT+16*dt,16)}, {WOF(dt,k)}, {v(OXP+4*k,4)}, {'0' if k == 0 else v(OUT+16*dt,16)}")
    for dt in range(4):
        for j in range(4): A(f"ds_write_b128 v{V_RW}, {v(OUT+16*dt+4*j,4)} offset:{dt*4096+j*1024}")
    A(f"""s_lshl_b32 {s(S_T0)}, {s(S_GRP)}, 1
    s_add_u32 {s(S_T0)}, {s(S_T0)}, {s(S_PAR)}
    s_lshl_b32 {s(S_T0)}, {s(S_T0)}, 2
    s_add_u32 {s(S_T0)}, {s(S_T0)}, {s(S_NS)}
    s_lshl_b32 {s(S_T0)}, {s(S_T0)}, 17
    s_add_u32 {s(S_T0)}, {s(S_T0)}, {WS_P2}
    s_lshl_b32 {s(S_T1)}, {s(S_W)}, 15
    s_lshl_b32 {s(S_T2)}, {s(S_KS)}, 11
    s_add_u32 {s(S_T1)}, {s(S_T1)}, {s(S_T2)}
    s_add_u32 {s(S_T1)}, {s(S_T1)}, {s(S_T0)}""")
    add64(A, S_B0, S_WS, s(S_T1))
    add64(A, S_B1, S_B0, 16384)
    A(f"""s_lshl_b32 {s(S_T1)}, {s(S_KS)}, 14
    s_lshl_b32 {s(S_T2)}, {s(S_W)}, 10
    s_add_u32 {s(S_T1)}, {s(S_T1)}, {s(S_T2)}
    s_add_u32 {s(S_T1)}, {s(S_T1)}, {s(S_T0)}""")
    add64(A, S_B2, S_WS, s(S_T1))
    A("s_waitcnt lgkmcnt(0)")
    A("s_barrier")
    for sw in range(4):
        for j in range(4): A(f"ds_read_b128 {v(64+16*sw+4*j,4)}, v{V_RR} offset:{sw*16384+j*1024}")
    A("s_waitcnt lgkmcnt(8)")
    for r in range(16): A(f"v_add_f32 v{64+r}, v{64+r}, v{80+r}")
    A("s_waitcnt lgkmcnt(0)")
    for r in range(16): A(f"v_add_f32 v{96+r}, v{96+r}, v{112+r}")
    A("s_barrier")
    for j in range(4):
        for r in range(4): A(f"v_add_f32 v{64+4*j+r}, v{64+4*j+r}, v{96+4*j+r}")
        A(f"v_and_or_b32 v{64+4*j}, v{64+4*j}, -2, {s(S_PH)}")
        A(f"global_store_dwordx4 v2, {v(64+4*j,4)}, {s(S_B0 if j < 2 else S_B1,2)} offset:{(j&1)*1024} sc1")
    A(f"s_cmp_ge_u32 {s(S_W)}, 2")
    A("s_cbranch_scc1 L_p2_next")
    A(f"s_cmp_eq_u32 {s(S_FIRST)}, 0")
    A("s_cbranch_scc1 L_p2_nf")
    A(f"""v_and_b32 v16, 3, v1
    v_lshlrev_b32 v16, 7, v16
    v_add_u32 v16, {WS_FLAGS+FL_M3}, v16""")
    wait_flags(A, 16, 17, 8)
    A(f"""v_and_b32 v16, 7, v1
    v_lshlrev_b32 v16, 7, v16
    v_add_u32 v16, {WS_IDX}, v16
    global_load_dword v17, v16, {s(S_WS,2)} sc1
    s_waitcnt vmcnt(0)""")
    for k in range(8): A(f"v_readlane_b32 {s(S_IDX+k)}, v17, {k}")
    A.label("L_p2_nf")
    A(f"""s_lshl_b32 {s(S_T0)}, {s(S_SEG)}, 15
    s_lshl_b32 {s(S_T1)}, {s(S_NS)}, 8
    s_lshl_b32 {s(S_T2)}, {s(S_KS)}, 5
    s_add_u32 {s(S_T1)}, {s(S_T1)}, {s(S_T2)}
    s_add_u32 {s(S_T0)}, {s(S_T0)}, {s(S_T1)}""")
    add64(A, S_B0, S_X, s(S_T0))
    add64(A, S_B1, S_OUT, s(S_T0))
    A(f"s_lshl_b32 {s(S_T0)}, {s(S_SEG)}, 8")
    A(f"s_add_u32 {s(S_T0)}, {s(S_T0)}, {WS_G}")
    add64(A, S_B3, S_WS, s(S_T0))
    A(f"global_load_dwordx2 v[26:27], v{V_XO}, {s(S_B0,2)}")
    A(f"global_load_dwordx2 v[28:29], v{V_GO}, {s(S_B3,2)} sc1")
    A(f"""s_lshl_b32 {s(S_T0)}, {s(S_SEG)}, 5
    v_and_b32 v16, 31, v1
    v_add_u32 v16, {s(S_T0)}, v16
    v_and_b32 v17, 0x3ff, v{V_XO}
    s_add_u32 {s(S_T1)}, {s(S_T1)}, {WS_BSEL}
    v_add_u32 v17, {s(S_T1)}, v17
    s_waitcnt vmcnt(0)""")
    for k in range(8):
        lk = A.uid("Lsel")
        A(f"v_cmp_eq_u32 vcc, {s(S_IDX+k)}, v16")
        A(f"s_cbranch_vccz {lk}")
        A(f"""s_mov_b64 exec, vcc
        v_add_u32 v23, {k*1024}, v17
        global_load_dwordx2 v[26:27], v23, {s(S_WS,2)} sc1
        s_waitcnt vmcnt(0)
        s_mov_b64 exec, -1""")
        A.label(lk)
    A("""v_lshlrev_b32 v96, 16, v26
    v_and_b32 v97, 0xffff0000, v26
    v_lshlrev_b32 v98, 16, v27
    v_and_b32 v99, 0xffff0000, v27""")
    for r in range(4):
        A(f"v_mul_f32 v{96+r}, v{96+r}, v29")
        rbf(A, 96 + r, 96 + r)
    add64(A, S_B3, S_B2, 8192)
    A(f"s_mov_b32 {s(S_SPIN)}, 0")
    A.label("L_p2_fp")
    for src in range(8):
        A(f"global_load_dwordx4 {v(64+4*src,4)}, v2, {s(S_B2 if src < 2 else S_B3,2)} offset:{src*2048 - (0 if src < 2 else 8192)} sc1" if src < 6 else
          f"global_load_dwordx4 {v(64+4*src,4)}, v30, {s(S_B3,2)} offset:{(src-6)*2048} sc1")
        if src == 0: A("v_add_u32 v30, 4096, v2")
    spin_guard(A)
    A("s_waitcnt vmcnt(0)")
    A(f"v_xor_b32 v16, {s(S_PH)}, v64")
    for src in range(1, 8):
        A(f"v_xor_b32 v17, {s(S_PH)}, v{64+4*src}")
        A("v_or_b32 v16, v16, v17")
    A("""v_and_b32 v16, 1, v16
    v_cmp_ne_u32 vcc, 0, v16
    s_cbranch_vccnz L_p2_fp""")
    for src in range(1, 8):
        for r in range(4): A(f"v_add_f32 v{64+r}, v{64+r}, v{64+4*src+r}")
    for r in range(4):
        rbf(A, 64 + r, 64 + r)
        A(f"v_mul_f32 v{64+r}, v{64+r}, v28")
        rbf(A, 64 + r, 64 + r)
        A(f"v_add_f32 v{64+r}, v{64+r}, v{96+r}")
    A(f"""v_cvt_pk_bf16_f32 v26, v64, v65
    v_cvt_pk_bf16_f32 v27, v66, v67
    global_store_dwordx2 v{V_XO}, v[26:27], {s(S_B1,2)}""")
    A.label("L_p2_next")
    A(f"""s_mov_b32 {s(S_FIRST)}, 0
    s_xor_b32 {s(S_PAR)}, {s(S_PAR)}, 1
    s_xor_b32 {s(S_T0)}, {s(S_PAR)}, 1
    s_xor_b32 {s(S_PH)}, {s(S_PH)}, {s(S_T0)}
    s_add_u32 {s(S_SEG)}, {s(S_SEG)}, 3
    s_cmp_lt_u32 {s(S_SEG)}, 64
    s_cbranch_scc1 L_p2_seg""")
    gen_rec.trace(A, 2, 8)
    A("s_branch L_end")
```

```python
from asmlib import *
from layout import *
import math, struct

def f32bits(x): return struct.unpack("<I", struct.pack("<f", x))[0]

S_MEM0, S_WQ, S_WK, S_WV, S_WO, S_WS, S_DBG = 6, 8, 10, 12, 14, 16, 18
S_H, S_W, S_STEP, S_MODE = 20, 21, 22, 23
S_SCALE, S_SEL10, S_SEL01, S_SPIN = 24, 25, 26, 27
S_PST = 28
S_MEMX = 40
S_WS4 = 48
S_KVB = 50
S_FLB = 52
S_T0, S_T1, S_T2, S_T3 = 54, 55, 56, 57
S_KXM0 = 58
S_MK3 = 60
S_SRC = 64
S_TB = 62
S_INB = 4
def INB(par): return 36 + 2 * par
S_SELM = 8
S_MEX = 48
S_FLO = 4
S_FLAG = 5
(V_L16, V_IDX, V_QKW, V_TR,
 V_TRW, V_OW, V_PST, V_MST,
 V_GATH, V_KVO, V_XR, V_WOR,
 V_W2K, V_XW, V_SELV, V_KXO) = range(16)
V_INL = V_GATH
V_FLAG = V_TRW
V_WO01 = 16
V_ONES = 32
V_ZZ = 36
V_PA = 38
V_PB = 40
V_X = 42
V_M = 44
V_AQ, V_AK, V_AV = 80, 88, 96
V_ACC = 80
V_F = 112
V_T = 76
V_WV = 128

def WQ(T, t): return a((T * 8 + t) * 8, 8)
def WK(T, t): return a(128 + (T * 8 + t) * 8, 8)
def WV(T, t): return v(V_WV + (T * 8 + t) * 8, 8)

def add64(A, d, b, off):
    A(f"s_add_u32 {s(d)}, {s(b)}, {off}")
    A(f"s_addc_u32 {s(d+1)}, {s(b+1)}, 0")

class Tables:
    def __init__(self): self.groups = []
    def add(self, fns, nthreads=256):
        assert len(fns) == 4
        self.groups.append([[int(f(t)) & 0xffffffff for f in fns] for t in range(nthreads)])
        return len(self.groups) - 1
    def text(self):
        out = [".p2align 8", "L_tables:"]
        for g in self.groups:
            for row in g: out.append("  .long " + ", ".join("%#x" % x for x in row))
        return "\n".join(out) + "\n"
    def base(self, A, sreg):
        l = A.uid("Lpc")
        A(f"s_getpc_b64 {s(sreg,2)}")
        A.label(l)
        A(f"s_add_u32 {s(sreg)}, {s(sreg)}, L_tables-{l}")
        A(f"s_addc_u32 {s(sreg+1)}, {s(sreg+1)}, 0")
    def load(self, A, g, vdst, vtid16, sreg, stmp):
        add64(A, stmp, sreg, g * 4096)
        A(f"global_load_dwordx4 {v(vdst,4)}, {v(vtid16)}, {s(stmp,2)}")

def code_prefetch(A, label, shift, vdst, vt):
    l = A.uid("Lpc")
    A(f"s_getpc_b64 {s(S_SRC,2)}")
    A.label(l)
    A(f"s_add_u32 {s(S_SRC)}, {s(S_SRC)}, {label}-{l}")
    A(f"s_addc_u32 {s(S_SRC+1)}, {s(S_SRC+1)}, 0")
    A(f"v_lshlrev_b32 v{vt}, 7, v0")
    A(f"global_load_dword v{vdst}, v{vt}, {s(S_SRC,2)}")

def dec(tid):
    w, l = tid >> 6, tid & 63
    return w, l, l & 15, l >> 4

def gen_prologue(A, TB):
    A.comment("=== recurrence prologue; s20 = head ===")
    def f_qkw(tid):
        w, l, n, g = dec(tid); return L_QK + (32 * w + n) * 32 + g * 8
    def f_tr(tid):
        w, l, n, g = dec(tid); r, c = n >> 2, n & 3
        return L_QK + es(0, g, r) * 32 + c * 8
    def f_ow(tid):
        w, l, n, g = dec(tid)
        if n & 2: return L_MEM + l * 8
        return L_O + (w & 1) * 1024 + ((g >> 1) * 16 + n + 2 * (w >> 1)) * 16 + (g & 1) * 8
    def f_pst(tid):
        w, l, n, g = dec(tid)
        if "in64" in EXP: return (w * 8 + (n >> 3) * 4 + g) * 4096 + ((n >> 2) & 1) * 2048 + (n & 3) * 16
        return (w * 8 + (n >> 3) * 4 + g) * 4096 + (n & 7) * 16
    def f_mst(tid):
        w, l, n, g = dec(tid); j, b5 = l & 7, l >> 5; c, qq = j >> 1, j & 1
        return (w >> 1) * 1024 + (w & 1) * 256 + (2 * (c >> 1) + qq) * 16 + ((c & 1) * 2 + b5) * 4
    def f_kvo(tid):
        return tid * 16
    def f_xr(tid):
        w, l, n, g = dec(tid); key = 2 * (n >> 2) + (n & 1)
        return L_X + (32 * w + g * 8 + key) * 16
    def f_gath(tid):
        w, l, n, g = dec(tid)
        if "in64" in EXP: return (w >> 1) * 0x20000 + (w & 1) * 2048 + l * 16
        return (w >> 1) * 0x20000 + (l >> 2) * 128 + (w & 1) * 64 + (l & 3) * 16
    def f_xw(tid):
        w, l, n, g = dec(tid); return L_X + (32 * w + n) * 16 + g * 4
    g0 = TB.add([lambda t: (t & 63) * 16, lambda t: 0xeeee if t & 2 else 0x4444, f_qkw, f_tr])
    g1 = TB.add([lambda t: f_tr(t) + (t >> 6) * 1024, f_ow, f_pst, f_mst])
    def f_kxo(tid):
        w, l, n, g = dec(tid); return (w >> 1) * WS_VX + (w & 1) * 4096 + l * 16
    g2 = TB.add([f_gath, f_kvo, f_xr, lambda t: L_WO + (t >> 6) * 28672 + (t & 63) * 16 - 4096])
    g2b = TB.add([lambda t: (t >> 6) * 2048 + (t & 63) * 16, f_xw, lambda t: 0x3f800000 if t & 1 else 0x3f80, f_kxo])
    fq = lambda d: (d & 1) | (((d >> 4) & 3) << 1)
    fo = lambda e: (e & 1) | (((e >> 2) & 1) << 1) | (((e >> 6) & 1) << 2)
    def f_dq(hi):
        def f(tid):
            w, l, n, g = dec(tid); row = 32 * w + 16 * hi + g
            return g * 8192 + ((n ^ (fq(row) << 1)) * 16)
        return f
    def f_do(odd):
        def f(tid):
            w, l, n, g = dec(tid); row = 32 * w + 4 * odd + g
            return g * 1024 + ((n ^ (fo(row) << 1)) * 16)
        return f
    g3 = TB.add([f_dq(0), f_dq(1), f_do(0), f_do(1)])
    def f_rq(T, hi):
        def f(tid):
            w, l, n, gB = dec(tid); r, c = n >> 2, n & 3
            row = 32 * (r >> 1) + 16 * (gB & 1) + 4 * (gB >> 1) + (r & 1)
            return L_STG + hi * 65536 + row * 256 + ((2 * w + T) ^ fq(row)) * 32 + 8 * c
        return f
    g4 = TB.add([f_rq(0, 0), f_rq(1, 0), f_rq(0, 1), f_rq(1, 1)])
    def f_ro(tid):
        w, l, n, gB = dec(tid); r, c = n >> 2, n & 3
        row = 64 * (r >> 1) + 8 * (gB >> 1) + 4 * (gB & 1) + (r & 1)
        return L_STG + w * 32768 + row * 256 + fo(row) * 32 + 8 * c
    def f_m0(tid):
        l, jj = tid >> 2, tid & 3
        q, half = arow(l & 15)
        return q * 1024 + dslot(0, half, l >> 4, 2 * jj) * 2
    g5 = TB.add([f_ro, f_m0, lambda t: L_MEM + t * 4, lambda t: L_KX + (t >> 6) * 6144 + (t & 63) * 16])
    VD, VR, VRO = 44, 48, 52
    A(f"""
    v_lshrrev_b32 v1, 6, v0
    v_lshlrev_b32 v76, 4, v0
    s_nop 0
    v_readfirstlane_b32 {s(S_W)}, v1
    """)
    code_prefetch(A, "L_rec_step_f0", 0, 78, 77)
    TB.base(A, S_TB)
    for g, r in [(g0, 0), (g1, 4), (g2, 8), (g2b, 12), (g3, VD), (g4, VR), (g5, VRO)]:
        TB.load(A, g, r, 76, S_TB, S_SRC)
    A(f"""v_bfe_u32 v82, v76, 8, 2
    v_bfe_u32 v83, v76, 4, 4
    v_and_b32 v84, 1, v82
    s_and_b32 {s(S_T0)}, {s(S_W)}, 1
    s_lshl_b32 {s(S_T0)}, {s(S_T0)}, 2
    v_or_b32 v84, {s(S_T0)}, v84
    v_lshlrev_b32 v84, 1, v84
    v_xor_b32 v83, v83, v84
    v_lshlrev_b32 v83, 4, v83
    v_lshl_add_u32 v80, v82, 13, v83
    v_xor_b32 v81, 64, v80""")
    mats = [S_WK, S_WQ, S_WV]
    def dma_chunk(ci):
        slot = ci % 4
        if ci < 12:
            base, c = mats[ci // 4], ci % 4
            A(f"s_lshl_b32 {s(S_T0)}, {s(S_W)}, 18")
            A(f"s_lshl_b32 {s(S_T1)}, {s(S_H)}, 8")
            A(f"s_add_u32 {s(S_T0)}, {s(S_T0)}, {s(S_T1)}")
            A(f"s_add_u32 {s(S_T0)}, {s(S_T0)}, {128*c*8192}")
            step = 4 * 8192
            vo = lambda i: 80 + (i >> 2)
        else:
            base, c = S_WO, ci - 12
            A(f"s_lshl_b32 {s(S_T0)}, {s(S_W)}, 15")
            A(f"s_lshl_b32 {s(S_T1)}, {s(S_H)}, 17")
            A(f"s_add_u32 {s(S_T0)}, {s(S_T0)}, {s(S_T1)}")
            A(f"s_add_u32 {s(S_T0)}, {s(S_T0)}, {c*256}")
            step = 4 * 1024
            vo = lambda i: VD + 2 + (i & 1)
        add64(A, S_SRC, base, s(S_T0))
        A(f"s_lshl_b32 {s(S_T2)}, {s(S_W)}, 13")
        A(f"s_add_u32 {s(S_T2)}, {s(S_T2)}, {L_STG + slot*32768}")
        for i in range(8):
            A(f"s_mov_b32 m0, {s(S_T2)}")
            A(f"s_add_u32 {s(S_T2)}, {s(S_T2)}, 1024")
            A(f"global_load_lds_dwordx4 v{vo(i)}, {s(S_SRC,2)}")
            if i < 7: add64(A, S_SRC, S_SRC, step)
    for ci in range(4): dma_chunk(ci)
    A(f"""
    s_mov_b32 {s(S_SCALE)}, {f32bits(128**-0.5 * math.log2(math.e)):#x}
    s_mov_b32 {s(S_SEL10)}, 0x00003f80
    s_mov_b32 {s(S_SEL01)}, 0x3f800000
    s_mov_b32 {s(S_MK3)}, 0x33333333
    s_mov_b32 {s(S_MK3+1)}, 0x33333333
    """)
    for r in range(V_ZZ, V_X + 2): A(f"v_mov_b32 v{r}, 0")
    for par in range(2):
        for z in range(2):
            add64(A, S_PST + 4 * par + 2 * z, S_WS, WS_INBOX + par * 0x40000 + z * 0x20000)
    for r in range(4): add64(A, S_MEMX + 2 * r, S_WS, WS_MEMX + r * 8192)
    A(f"s_mov_b32 {s(S_MEX)}, 0xff")
    A(f"s_mov_b32 {s(S_MEX+1)}, 0xff")
    add64(A, S_KVB, S_WS, WS_KV - 0x20000)
    add64(A, S_FLB, S_WS, WS_FLAGS)
    A(f"""s_and_b32 {s(S_T0)}, {s(S_W)}, 1
    s_lshr_b32 {s(S_T1)}, {s(S_W)}, 1
    s_mul_i32 {s(S_T1)}, {s(S_T1)}, {L_VX-L_KX}
    s_lshl_b32 {s(S_T2)}, {s(S_T0)}, 12
    s_add_u32 {s(S_T1)}, {s(S_T1)}, {s(S_T2)}
    s_add_u32 {s(S_KXM0)}, {s(S_T1)}, {L_KX}
    s_add_u32 {s(S_KXM0+1)}, {s(S_T1)}, {L_KX+8192}
    s_lshl_b32 {s(S_T3)}, {s(S_H)}, 12
    s_waitcnt vmcnt(32)
    v_lshrrev_b32 v56, 12, {v(V_PST)}
    v_add_u32 v56, {s(S_H)}, v56
    v_and_b32 v56, 31, v56
    v_lshl_add_u32 {v(V_PST)}, v56, {6 if 'in64' in EXP else 7}, {v(V_PST)}
    s_lshr_b32 {s(S_T0)}, {s(S_H)}, 3
    s_lshl_b32 {s(S_T0)}, {s(S_T0)}, 11
    s_bfe_u32 {s(S_T1)}, {s(S_H)}, 0x10002
    s_lshl_b32 {s(S_T1)}, {s(S_T1)}, 9
    s_add_u32 {s(S_T0)}, {s(S_T0)}, {s(S_T1)}
    s_and_b32 {s(S_T1)}, {s(S_H)}, 3
    s_lshl_b32 {s(S_T1)}, {s(S_T1)}, 6
    s_add_u32 {s(S_T0)}, {s(S_T0)}, {s(S_T1)}
    v_add_u32 {v(V_MST)}, {s(S_T0)}, {v(V_MST)}
    s_lshl_b32 {s(S_T0)}, {s(S_H)}, 12
    v_add_u32 {v(V_KVO)}, {s(S_T0)}, {v(V_KVO)}
    s_lshl_b32 {s(S_T0)}, {s(S_H)}, 13
    v_add_u32 {v(V_KXO)}, {s(S_T0)}, {v(V_KXO)}
    v_mov_b32 v56, 0
    v_mov_b32 v57, 0
    v_mov_b32 v58, 0
    v_mov_b32 v59, 0
    v_mov_b32 v60, -1
    v_add_u32 v61, {s(S_T3)}, v76
    """)
    for pz in range(4):
        A(f"global_store_dwordx4 v61, v[56:59], {s(S_PST+2*pz,2)} sc1")
    for r in range(4):
        A(f"global_store_dword {v(V_MST)}, v60, {s(S_MEMX+2*r,2)} sc1")
    A("s_nop 1")
    for t in range(8):
        A(f"global_load_ushort v{60+2*t}, v{VRO+1}, {s(S_MEM0,2)} offset:{128*t}")
        A(f"global_load_ushort v{61+2*t}, v{VRO+1}, {s(S_MEM0,2)} offset:{128*t+2}")
    for ci in range(12):
        slot = ci % 4
        A("s_waitcnt vmcnt(48)" if ci < 4 else "s_waitcnt vmcnt(24)")
        A("s_barrier")
        if ci == 4:
            A(f"""s_cmp_eq_u32 {s(S_W)}, 0
            s_cbranch_scc0 L_rec_noinc
            v_mov_b32 v56, 1
            s_mov_b64 exec, 1
            global_atomic_add {v(V_ZZ)}, v56, {s(S_DBG,2)} offset:{DBG_RECINIT}
            s_mov_b64 exec, -1
            L_rec_noinc:""")
        if "ctrace" in EXP:
            A("s_add_u32 s2, s2, 256")
            trace(A, ci, 86)
            A("s_sub_u32 s2, s2, 256")
        W = [WK, WQ, WV][ci // 4]
        c = ci % 4
        lend = A.uid("Lwv")
        for wv in range(4):
            lnx = A.uid("Lwv")
            if wv < 3:
                A(f"s_cmp_eq_u32 {s(S_W)}, {wv}")
                A(f"s_cbranch_scc0 {lnx}")
            for tt in range(2):
                t = 2 * (c ^ wv) + tt
                for T in range(2):
                    wreg = W(T, t)
                    kind, lo = wreg[0], int(wreg[2:].split(":")[0])
                    for p4 in range(4):
                        off = (2 * (p4 & 1) + 8 * (p4 >> 1) + 64 * tt) * 256 + (slot & 1) * 32768
                        A(f"ds_read_b64_tr_b16 {kind}[{lo+2*p4}:{lo+2*p4+1}], v{VR + T + 2*(slot>>1)} offset:{off}")
            if wv < 3:
                A(f"s_branch {lend}")
                A.label(lnx)
        A.label(lend)
        if ci == 4:
            for t in range(8):
                A(f"v_lshl_or_b32 v{60+2*t}, v{61+2*t}, 16, v{60+2*t}")
                A(f"ds_write_b32 v{VRO+2}, v{60+2*t} offset:{1024*t}")
        A("s_waitcnt lgkmcnt(0)")
        A("s_barrier")
        dma_chunk(ci + 4)
    for par in range(2): add64(A, INB(par), S_PST + 4 * par, s(S_T3))
    for k in range(4):
        A(f"s_mov_b32 {s(S_SELM+2*k)}, {0x03030303 << (2*k):#x}")
        A(f"s_mov_b32 {s(S_SELM+2*k+1)}, {0x03030303 << (2*k):#x}")
    A(f"s_lshl_b32 {s(S_FLO)}, {s(S_H)}, 7")
    A("""s_waitcnt vmcnt(0)
    s_barrier""")
    if "ctrace" in EXP:
        A("s_add_u32 s2, s2, 256")
        trace(A, 12, 86)
        A("s_sub_u32 s2, s2, 256")
    A(f"""v_lshrrev_b32 v56, 4, {v(V_L16)}
    v_and_b32 v56, 3, v56
    s_lshl_b32 {s(S_T0)}, {s(S_H)}, 2
    v_add_u32 v56, {s(S_T0)}, v56
    v_lshlrev_b32 v56, 7, v56
    v_add_u32 v56, {FL_MINI}, v56
    global_load_dwordx2 v[40:41], {v(V_ZZ)}, {s(S_DBG,2)} offset:{DBG_XCC0} sc1
    global_load_dword v42, {v(V_ZZ)}, {s(S_DBG,2)} offset:{DBG_INIT} sc1
    s_waitcnt vmcnt(0)
    global_load_dword v43, v56, {s(S_FLB,2)} sc1""")
    def wo_read(f, reg):
        T, tp = f >> 1, f & 1
        A(f"v_xor_b32 v{VRO+1}, {T*32}, v{VRO}")
        for p4 in range(4):
            off = (32 * tp + 16 * (p4 >> 1) + 2 * (p4 & 1)) * 256
            A(f"ds_read_b64_tr_b16 v[{reg+2*p4}:{reg+2*p4+1}], v{VRO+1} offset:{off}")
    regs = [16, 24, 32, 44] + [56 + 8 * i for i in range(9)]
    PK = VRO + 3
    for k, f in enumerate([13, 14, 15]): wo_read(f, 56 + 8 * k)
    A("s_waitcnt lgkmcnt(0)")
    for k in range(6): A(f"ds_write_b128 v{PK}, v[{56+4*k}:{59+4*k}] offset:{1024*k}")
    A("s_waitcnt lgkmcnt(0)")
    for f in range(13):
        wo_read(f, regs[f])
        if f % 3 == 2: A("s_waitcnt lgkmcnt(4)")
    A("s_waitcnt lgkmcnt(0)")
    A("s_barrier")
    for f in range(2, 13):
        A(f"ds_write_b128 {v(V_WOR)}, v[{regs[f]}:{regs[f]+3}] offset:{f*2048}")
        A(f"ds_write_b128 {v(V_WOR)}, v[{regs[f]+4}:{regs[f]+7}] offset:{f*2048+1024}")
        if f % 4 == 3: A("s_waitcnt lgkmcnt(0)")
    A("s_waitcnt lgkmcnt(0)")
    for k in range(6): A(f"ds_read_b128 v[{56+4*k}:{59+4*k}], v{PK} offset:{1024*k}")
    A("s_waitcnt lgkmcnt(0)")
    for k in range(6): A(f"ds_write_b128 {v(V_WOR)}, v[{56+4*k}:{59+4*k}] offset:{13*2048+1024*k}")
    A(f"""s_waitcnt vmcnt(0)
    v_readfirstlane_b32 s70, v40
    v_readfirstlane_b32 s71, v41
    v_readfirstlane_b32 s72, v42
    v_cmp_ne_u32 s[74:75], 1, v43""")
    for r in range(4): A(f"v_mov_b32 v{V_ONES+r}, 0x3f803f80")
    for r in range(V_ZZ, V_X + 2): A(f"v_mov_b32 v{r}, 0")
    A("""s_waitcnt lgkmcnt(0)
    s_barrier""")

def spin_guard(A):
    A(f"s_add_u32 {s(S_SPIN)}, {s(S_SPIN)}, 1")
    A(f"s_cmp_gt_u32 {s(S_SPIN)}, 0x400000")
    A("s_cbranch_scc1 L_end")

NST = 10
TRACE = False
MINI = True
FASTST = ""
FASTLD = "sc1"
def trace(A, tid_, vt):
    if not TRACE: return
    A("s_memrealtime s[100:101]")
    A("s_waitcnt lgkmcnt(0)")
    A(f"v_mov_b32 v{vt+1}, s100")
    A("s_lshl_b32 s100, s2, 4")
    A(f"s_add_u32 s100, s100, {tid_}")
    A("s_lshl_b32 s100, s100, 2")
    A(f"s_add_u32 s100, s100, {WS_DBG + (2<<20)}")
    A(f"v_mov_b32 v{vt}, s100")
    A(f"global_store_dword v{vt}, v{vt+1}, {s(S_WS,2)}")
EXP = {"in64"}
PRM = dict(dA=3, dB=10, dGA=5, dGB=9, ne=2, bq=6, dd=0, dd3=0)
def zero_acc(A):
    A(f"v_mfma_f32_32x32x8_bf16 {v(V_ACC,16)}, {v(V_ZZ,2)}, {v(V_ZZ,2)}, 0")
    A(f"v_mfma_f32_32x32x8_bf16 {v(V_ACC+16,16)}, {v(V_ZZ,2)}, {v(V_ZZ,2)}, 0")

def dma4(par):
    return [f"s_mov_b32 m0, {s(S_KXM0+par)}"] + [f"global_load_lds_dwordx4 {v(V_KXO)}, {s(S_WS,2)} offset:{1024*i}" for i in range(4)] + [f"v_add_u32 {v(V_KXO)}, 0x40000, {v(V_KXO)}"]

def kv_read(A, KP):
    A(f"s_lshl_b32 {s(S_T0)}, {s(S_W)}, 10")
    A(f"v_add_u32 v{KP+4}, {s(S_T0)}, {v(V_TR)}")
    A(f"ds_read_b64_tr_b16 v[{KP}:{KP+1}], v{KP+4}")
    A(f"ds_read_b64_tr_b16 v[{KP+2}:{KP+3}], v{KP+4} offset:256")
    A(f"s_mov_b64 exec, {s(S_MK3,2)}")
    A(f"ds_read_b128 {v(KP,4)}, {v(V_XR)}")
    A("s_mov_b64 exec, -1")

def flag_wait(A, name, vt):
    A(f"s_mov_b32 {s(S_SPIN)}, 0")
    A(f"v_mov_b32 v{vt}, {s(S_FLO)}")
    A.label(name)
    A(f"global_load_dword v{vt+1}, v{vt}, {s(S_FLB,2)} sc1")
    spin_guard(A)
    A(f"""s_waitcnt vmcnt(0)
    v_readfirstlane_b32 {s(S_T0)}, v{vt+1}
    s_cmp_eq_u32 {s(S_T0)}, 1
    s_cbranch_scc0 {name}""")

def load_counters(A, vt, sdst):
    A(f"""v_mbcnt_lo_u32_b32 v{vt}, -1, 0
    v_mbcnt_hi_u32_b32 v{vt}, -1, v{vt}
    v_and_b32 v{vt}, 7, v{vt}
    v_lshlrev_b32 v{vt}, 2, v{vt}
    v_mov_b32 v{vt+1}, {DBG_XCC0}
    v_cmp_eq_u32 vcc, 0, v{vt}
    v_cndmask_b32 v{vt}, v{vt}, v{vt+1}, vcc
    global_load_dword v{vt+1}, v{vt}, {s(S_DBG,2)} sc1
    s_waitcnt vmcnt(0)""")
    for k in range(8): A(f"v_readlane_b32 {s(sdst+k)}, v{vt+1}, {k}")
    A(f"s_add_u32 {s(S_T0)}, {s(sdst)}, {s(sdst+1)}")
    for k in range(2, 8): A(f"s_add_u32 {s(S_T0)}, {s(S_T0)}, {s(sdst+k)}")

FORCE_MODE = None
def decide_mode(A):
    if FORCE_MODE is not None:
        A(f"s_mov_b32 {s(S_MODE)}, {FORCE_MODE}")
        return
    A(f"s_mov_b32 {s(S_SPIN)}, 0")
    A.label("L_rec_md")
    spin_guard(A)
    load_counters(A, 56, 70)
    A(f"""s_mov_b32 {s(S_MODE)}, 0
    s_cmp_ge_u32 s70, 32
    s_cbranch_scc1 L_rec_mdok
    s_mov_b32 {s(S_MODE)}, 1
    s_cmp_ge_u32 {s(S_T0)}, 256
    s_cbranch_scc0 L_rec_md""")
    A.label("L_rec_mdok")

def gen_preloop(A, timing, stamps, n_init=0):
    A.comment("pre-loop")
    trace(A, 1, 56)
    if n_init and FORCE_MODE is None:
        A(f"""s_mov_b32 {s(S_MODE)}, 0
        s_min_u32 s70, s70, s71
        s_cmp_lt_u32 s70, 32
        s_cbranch_scc1 L_rec_slowchk
        s_cmp_lt_u32 s72, {n_init}
        s_cbranch_scc1 L_rec_slowchk
        s_cmp_lg_u64 s[74:75], 0
        s_cbranch_scc1 L_rec_slowchk""")
        for x in dma4(0): A(x)
        A("s_waitcnt vmcnt(0)")
        A("s_branch L_rec_go")
        A.label("L_rec_slowchk")
    if n_init:
        decide_mode(A)
        A(f"s_mov_b32 {s(S_SPIN)}, 0")
        A.label("L_rec_gi")
        A(f"global_load_dword v56, {v(V_ZZ)}, {s(S_DBG,2)} offset:{DBG_INIT} sc1")
        spin_guard(A)
        A(f"""s_waitcnt vmcnt(0)
        v_readfirstlane_b32 {s(S_T0)}, v56
        s_cmp_ge_u32 {s(S_T0)}, {n_init}
        s_cbranch_scc0 L_rec_gi""")
    if n_init:
        A(f"""v_and_b32 v56, 3, {v(V_INL)}
        v_lshrrev_b32 v56, 4, {v(V_L16)}
        v_and_b32 v56, 3, v56
        s_lshl_b32 {s(S_T0)}, {s(S_H)}, 2
        v_add_u32 v56, {s(S_T0)}, v56
        v_lshlrev_b32 v56, 7, v56
        v_add_u32 v56, {FL_MINI}, v56
        s_mov_b32 {s(S_SPIN)}, 0""")
        A.label("L_rec_f0")
        A(f"global_load_dword v57, v56, {s(S_FLB,2)} sc1")
        spin_guard(A)
        A(f"""s_waitcnt vmcnt(0)
        v_cmp_ne_u32 vcc, 1, v57
        s_cbranch_vccnz L_rec_f0""")
    else:
        flag_wait(A, "L_rec_f0", 56)
    for x in dma4(0): A(x)
    A.label("L_rec_i0")
    A(f"global_load_dword v56, {v(V_ZZ)}, {s(S_DBG,2)} offset:{DBG_RECINIT} sc1")
    spin_guard(A)
    A(f"""s_waitcnt vmcnt(0)
    v_readfirstlane_b32 {s(S_T0)}, v56
    s_cmp_ge_u32 {s(S_T0)}, 32
    s_cbranch_scc0 L_rec_i0""")
    A.label("L_rec_go")
    A(f"s_mov_b32 {s(S_STEP)}, 0")
    zero_acc(A)
    A(f"""v_mov_b32 v116, -1
    v_mov_b32 v112, 0
    v_mov_b32 v113, 0
    v_mov_b32 v114, 0
    v_mov_b32 v115, 0""")
    A(f"ds_read_b128 {v(V_M,4)}, {v(V_W2K)} offset:{L_MEM}")
    A(f"ds_read_b128 {v(V_M+4,4)}, {v(V_W2K)} offset:{L_MEM+1024}")
    for P in range(1, 4): A(f"v_xor_b32 v{V_T+P-1}, {P*2048}, {v(V_W2K)}")
    A("s_waitcnt lgkmcnt(0)")
    trace(A, 2, 56)
    A("s_barrier")
    if timing:
        A("s_memtime s[66:67]")
        A("s_waitcnt lgkmcnt(0)")
    if stamps:
        for k in range(NST): A(f"s_mov_b32 s{90+k}, 0")

class LT:
    def __init__(self, A): self.A, self.ops, self.done = A, [], 0
    def op(self, name, ins):
        self.ops.append(name); return ins
    def wait(self, name):
        i = len(self.ops) - 1 - self.ops[::-1].index(name)
        if i < self.done: return None
        self.done = i + 1
        return f"s_waitcnt lgkmcnt({min(len(self.ops) - 1 - i, 15)})"

def gen_step(A, k4, mode, dbg, stamps):
    sfx = f"{'s' if mode == ' sc1' else 'f'}{k4}"
    par, phase = k4 & 1, ((k4 >> 1) & 1) ^ 1
    ldf = "sc1" if mode == " sc1" else FASTLD
    def stamp(k):
        if stamps: A(f"s_memtime s[{70+2*k}:{71+2*k}]")
    M = lambda t: v(V_M + 4 * t, 4)
    F = lambda u: v(V_F + 4 * u, 4)
    KXR = lambda j: [v(88,4), v(92,4), v(104,4), v(108,4)][j] if j < 4 else M(j - 4)
    idx = v(V_IDX)
    lt = LT(A)
    def emit(x):
        if x is None: return
        if isinstance(x, str): A(x)
        elif x[0] == "ds": A(lt.op(x[1], x[2]))
        elif x[0] == "w":
            w = lt.wait(x[1])
            if w: A(w)
    def run(main, fills):
        for k, m in enumerate(main):
            for x in m: emit(x)
            for x in fills.get(k, []): emit(x)
    def post(acc, d0, d1):
        return [f"v_add_f32 v{acc}, v{acc}, v{acc+2}", f"v_add_f32 v{acc+1}, v{acc+1}, v{acc+3}",
                f"v_add_f32 v{acc+4}, v{acc+4}, v{acc+6}", f"v_add_f32 v{acc+5}, v{acc+5}, v{acc+7}",
                f"v_cvt_pk_bf16_f32 v{d0}, v{acc}, v{acc+1}", f"v_cvt_pk_bf16_f32 v{d1}, v{acc+4}, v{acc+5}"]
    mrd = lambda t, tag: ("ds", f"M{tag}{t}", f"ds_read_b128 {M(t)}, v{V_T+(t>>1)-1} offset:{L_MEM+(t&1)*1024}")
    kxrd = lambda j: ("ds", f"KX{j}", f"ds_read_b128 {KXR(j)}, {v(V_L16)} offset:{L_KX+par*8192+j*1024}")
    frd = lambda i, tag: ("ds", f"F{tag}{i}", f"ds_read_b64_tr_b16 {v(V_F+2*i,2)}, {v(V_TR)} offset:{(i>>1)*1024+(i&1)*256}")
    slots = [44, 52, 60, 68, 112]
    NS = len(slots)
    def wslot(f): return (V_WO01 + 8 * f) if f < 2 else slots[(f - 2) % NS]
    def wo_ld(f):
        r = wslot(f)
        return [("ds", f"W{f}a", f"ds_read_b128 {v(r,4)}, {v(V_WOR)} offset:{f*2048}"),
                ("ds", f"W{f}", f"ds_read_b128 {v(r+4,4)}, {v(V_WOR)} offset:{f*2048+1024}")]
    smf = lambda acc, T, t, W: f"v_smfmac_f32_16x16x64_bf16 {v(acc+4*T,4)}, {M(t)}, {W(T,t)}, {idx}"
    KP = 112
    A.label(f"L_rec_step_{sfx}")
    if TRACE and k4 == 0:
        lt_ = A.uid("Ltr")
        A(f"s_and_b32 {s(S_T0)}, {s(S_STEP)}, 7")
        A(f"s_cmp_eq_u32 {s(S_T0)}, 0")
        A(f"s_cbranch_scc0 {lt_}")
        A(f"s_lshr_b32 {s(S_T0)}, {s(S_STEP)}, 3")
        A(f"s_add_u32 {s(S_T0)}, {s(S_T0)}, 4")
        trace(A, s(S_T0), 68)
        A("s_memtime s[100:101]")
        A("s_waitcnt lgkmcnt(0)")
        A("v_mov_b32 v69, s100")
        A(f"v_add_u32 v68, 0x10000, v68")
        A(f"global_store_dword v68, v69, {s(S_WS,2)}")
        A.label(lt_)
    stamp(0)
    d4 = dma4(par ^ 1) if "nold" not in EXP else [None] * 6
    hk = [f"global_store_dword {v(V_MST)}, v{KP+4}, {s(S_MEMX+2*((k4+1)&3),2)}{mode}", f"v_add_u32 {v(V_KVO)}, 0x20000, {v(V_KVO)}"]
    fl = []
    if k4 == 2: fl.append(f"global_load_dword {v(V_FLAG)}, v{KP+7}, {s(S_FLB,2)} sc1")
    kvst = f"global_store_dwordx4 {v(V_KVO)}, {v(KP,4)}, {s(S_KVB,2)} sc1"
    NE = PRM["ne"]
    early = [[smf(V_AK, T, t, WK)] for t in range(2) for T in range(2)] + [[smf(V_AQ, T, t, WQ)] for t in range(2) for T in range(2)]
    run(early, {NE: ["s_waitcnt lgkmcnt(0)", "s_barrier"] + [mrd(t, "a") for t in range(2, 8)] + [kvst]})
    run([[("w", f"Ma{t}"), smf(V_AK, T, t, WK)] for t in range(2, 8) for T in range(2)],
        {0: [d4[0]], 1: [d4[1]], 3: [d4[2]], 5: [d4[3]], 7: [d4[4], d4[5]], 8: hk, 9: fl + [kxrd(2)], 11: [kxrd(3)]})
    stamp(1)
    kp = post(V_AK, V_T + 2, V_T + 3)
    fills = {7: kp[0:2], 8: kp[2:4], 9: kp[4:6],
             10: [("ds", "KW", f"ds_write2_b32 {v(V_QKW)}, v{V_T+2}, v{V_T+3} offset0:1 offset1:129"), kxrd(0)],
             11: [kxrd(1)]}
    run([[smf(V_AQ, T, t, WQ)] for t in range(2, 8) for T in range(2)], fills)
    stamp(2)
    SX, PX, SM, OA, LA = 80, 104, 88, 80, 112
    VXR = (108, 92)
    qp = post(V_AQ, V_T, V_T + 1)
    fills = {1: [kxrd(4), "s_nop 4"] + qp + [("ds", "QW", f"ds_write2_b32 {v(V_QKW)}, v{V_T}, v{V_T+1} offset0:0 offset1:128")],
             3: [kxrd(5)], 5: [kxrd(6)], 7: [kxrd(7)]}
    bq = PRM["bq"]
    fills[bq] = fills.get(bq, []) + [f"s_waitcnt vmcnt({6 + (1 if k4 == 2 else 0)})", ("w", "QW"), "s_barrier"] + [frd(i, "a") for i in range(4)]
    fills[bq + 1] = [frd(i, "a") for i in range(4, 8)] + fills.get(bq + 1, [])
    run([[smf(V_AV, T, t, WV)] for t in range(6) for T in range(2)], fills)
    stamp(3)
    def sxm(kt):
        L = []
        for u in range(4):
            d = SX + 4 * kt; j = kt * 4 + u
            L.append([("w", f"Fa{2*u+1}"), ("w", f"KX{j}"),
                      f"v_mfma_f32_16x16x32_bf16 {v(d,4)}, {KXR(j)}, {F(u)}, {'0' if u == 0 else v(d,4)}"])
        return L
    smm = [[f"v_mfma_f32_16x16x32_bf16 {v(SM,4)}, {F(u)}, {F(u)}, {'0' if u == 0 else v(SM,4)}"] for u in range(4)]
    m, t1 = V_T, V_T + 1
    ta, tb = V_T + 2, V_T + 3
    xs = list(range(SX, SX + 8))
    def pexp(k): return [f"v_exp_f32 v{ta}, v{xs[2*k]}", f"v_exp_f32 v{tb}, v{xs[2*k+1]}", f"v_cvt_pk_bf16_f32 v{PX+k}, v{ta}, v{tb}"]
    vx = [("ds", "VX0", f"ds_read_b128 {v(VXR[0],4)}, {v(V_W2K)} offset:{L_VX+par*8192}"),
          ("ds", "VX1", f"ds_read_b128 {v(VXR[1],4)}, {v(V_W2K)} offset:{L_VX+par*8192+1024}")]
    w2, w3, w4, w5 = wo_ld(2), wo_ld(3), wo_ld(4), wo_ld(5)
    vb = [[smf(V_AV, T, t, WV)] for t in range(6, 8) for T in range(2)]
    vp = post(V_AV, V_X, V_X + 1)
    e0, e1, e2, e3 = pexp(0), pexp(1), pexp(2), pexp(3)
    pm = [f"v_mul_f32 v{SM+2}, {s(S_SCALE)}, v{SM+2}", f"v_mul_f32 v{SM+3}, {s(S_SCALE)}, v{SM+3}",
          f"v_exp_f32 v{SM}, v{SM+2}", f"v_exp_f32 v{SM+1}, v{SM+3}",
          f"v_cvt_pk_bf16_f32 v{V_PA}, v{SM}, v{SM+1}", f"v_cvt_pk_bf16_f32 v{V_PB+1}, v{SM}, v{SM+1}"]
    ck = [f"v_max3_f32 v{m}, |v{xs[0]}|, |v{xs[1]}|, |v{xs[2]}|", f"v_max3_f32 v{m}, v{m}, |v{xs[3]}|, v{SM+2}",
          f"v_max3_f32 v{t1}, |v{xs[4]}|, |v{xs[5]}|, v{SM+3}", f"v_max3_f32 v{m}, v{m}, |v{xs[6]}|, |v{xs[7]}|",
          f"v_max_f32 v{m}, v{m}, v{t1}", f"v_cmp_lt_f32 vcc, 0x42700000, v{m}"]
    main = sxm(0) + smm + sxm(1) + vb
    fills = {0: [w4[0]], 1: [w4[1]], 3: [vx[0], vx[1]], 7: ["s_nop 1", e0[0]], 8: [e0[1]], 9: [w2[0], e0[2], e1[0]], 10: [w2[1], e1[1]], 11: [w3[0], w3[1], e1[2], ck[0]],
             12: pm[0:2], 13: pm[2:4] + [ck[1]], 14: pm[4:6], 15: w5}
    run(main, fills)
    stamp(4)
    for x in ck[2:] + e2 + e3: emit(x)
    A(f"s_and_b64 vcc, vcc, {s(S_MK3,2)}")
    A(f"s_cbranch_scc1 L_rec_fb_{sfx}")
    A.label(f"L_rec_fbret_{sfx}")
    if k4 == 3: A(f"s_cmp_eq_u32 {s(S_STEP)}, 63\ns_cselect_b32 {s(S_T1)}, 1, 0")
    emit(("w", "VX1"))
    for x in vp[:2]: A(x)
    A(f"v_mfma_f32_16x16x32_bf16 {v(LA,4)}, {v(V_ONES,4)}, {v(PX,4)}, 0")
    A(vp[2])
    A(f"v_mfma_f32_16x16x32_bf16 {v(OA,4)}, {v(VXR[0],4)}, {v(PX,4)}, 0")
    A(vp[3])
    A(f"v_mfma_f32_16x16x32_bf16 {v(OA+4,4)}, {v(VXR[1],4)}, {v(PX,4)}, 0")
    for x in vp[4:]: A(x)
    A(f"v_mfma_f32_16x16x16_bf16 {v(LA,4)}, {v(V_ONES,2)}, {v(V_PA,2)}, {v(LA,4)}")
    emit(("ds", "XW", f"ds_write2_b32 {v(V_XW)}, v{V_X}, v{V_X+1} offset0:0 offset1:64"))
    if k4 == 3: A(f"s_cmp_eq_u32 {s(S_T1)}, 1")
    A(f"v_mfma_f32_16x16x16_bf16 {v(OA,4)}, {v(V_X,2)}, {v(V_PA,2)}, {v(OA,4)}")
    A(f"v_mfma_f32_16x16x16_bf16 {v(OA+4,4)}, {v(V_X,2)}, {v(V_PB,2)}, {v(OA+4,4)}")
    if k4 == 3: A("s_cbranch_scc1 L_rec_last")
    for k in range(4): A(f"v_mov_b64 {v(96+2*k,2)}, 0")
    A(f"v_rcp_f32 v{t1}, v{LA}")
    for x in wo_ld(6): emit(x)
    for r in range(4): A(f"v_mul_f32 v{OA+r}, v{OA+r}, v{t1}")
    for k in range(2): A(f"v_cvt_pk_bf16_f32 v{V_T+2+k}, v{OA+2*k}, v{OA+2*k+1}")
    emit(("ds", "OW0", f"ds_write_b64 {v(V_OW)}, {v(V_T+2,2)}"))
    for r in range(4, 8): A(f"v_mul_f32 v{OA+r}, v{OA+r}, v{t1}")
    for k in range(2): A(f"v_cvt_pk_bf16_f32 v{V_T+k}, v{OA+4+2*k}, v{OA+5+2*k}")
    emit(("ds", "OW", f"ds_write_b64 {v(V_OW)}, {v(V_T,2)} offset:512"))
    A(f"v_mfma_f32_32x32x8_bf16 {v(V_ACC,16)}, {v(V_ZZ,2)}, {v(V_ZZ,2)}, 0")
    for k in range(4): A(f"v_mov_b64 {v(104+2*k,2)}, 0")
    emit(("w", "OW"))
    A("s_barrier")
    stamp(5)
    OF = 120
    emit(("ds", "OF0", f"ds_read_b128 {v(OF,4)}, {v(V_L16)} offset:{L_O}"))
    emit(("ds", "OF1", f"ds_read_b128 {v(OF+4,4)}, {v(V_L16)} offset:{L_O+1024}"))
    def post_tile(T):
        b = V_ACC + 4 * T
        d = (V_T if T < 4 else V_ACC) + (T & 3)
        L = [f"v_add_f32 v{b}, v{b}, v{b+2}", f"v_add_f32 v{b+1}, v{b+1}, v{b+3}", f"v_cvt_pk_bf16_f32 v{d}, v{b}, v{b+1}"]
        if (T & 3) == 0: L.append(f"v_and_or_b32 v{d}, v{d}, -2, {phase}")
        return L
    for f in range(16):
        T, tp = f >> 1, f & 1
        if f < 2: emit(("w", f"OF{f}"))
        else: emit(("w", f"W{f}"))
        A(f"v_smfmac_f32_16x16x64_bf16 {v(V_ACC+4*T,4)}, {v(OF+4*tp,4)}, {v(wslot(f),8)}, {idx}")
        if f >= 2 and f + NS < 16:
            for x in wo_ld(f + NS): emit(x)
        if tp == 1 and T >= 2:
            for x in post_tile(T - 2): A(x)
            if T - 2 == 3:
                A(f"global_store_dwordx4 {v(V_PST)}, {v(V_T,4)}, {s(S_PST+4*par,2)}{mode}")
    for T in (6, 7):
        for x in post_tile(T): A(x)
    A(f"global_store_dwordx4 {v(V_PST)}, {v(V_ACC,4)}, {s(S_PST+4*par+2,2)}{mode}")
    if "ack" in EXP:
        stamp(5)
        A("s_waitcnt vmcnt(0)")
    stamp(6)
    RA, SEL, D = 44, 60, 64
    kv_read(A, KP)
    for k in range(4): A(f"v_cndmask_b32 v{SEL+k}, 0, {v(V_SELV)}, {s(S_SELM+2*k,2)}")
    zero_acc(A)
    A(f"v_mov_b32 v{KP+4}, -1")
    if k4 == 1:
        A(f"""s_add_u32 {s(S_FLO)}, {s(S_FLO)}, 4096
        s_lshl_b32 {s(S_T0)}, {s(S_H)}, 7
        s_add_u32 {s(S_T0)}, {s(S_T0)}, {15*4096}
        s_min_u32 {s(S_FLO)}, {s(S_FLO)}, {s(S_T0)}
        v_mov_b32 v{KP+7}, {s(S_FLO)}""")
    A("s_waitcnt lgkmcnt(0)")
    A(f"v_min_u32 v{KP}, -2, v{KP}")
    def delay(n):
        for _ in range(n): A("s_nop 3")
    lz = A.uid("Lz")
    A(f"s_cmp_lt_u32 {s(S_W)}, 2")
    A(f"s_cbranch_scc1 {lz}")
    delay(PRM["dB"])
    A.label(lz)
    delay(PRM["dA"])
    RB = 52
    def ld_in(R):
        A(f"global_load_dwordx4 {v(R,4)}, {v(V_INL)}, {s(INB(par),2)} {ldf}")
        A(f"global_load_dwordx4 {v(R+4,4)}, {v(V_INL)}, {s(INB(par),2)} offset:{1024 if 'in64' in EXP else 2048} {ldf}")
    def red_chk(R, n_after):
        A(f"s_waitcnt vmcnt({n_after+1})")
        A(f"v_mfma_f32_16x16x32_bf16 {v(D,4)}, {v(R,4)}, {v(SEL,4)}, 0")
        A(f"s_waitcnt vmcnt({n_after})")
        A(f"v_mfma_f32_16x16x32_bf16 {v(D,4)}, {v(R+4,4)}, {v(SEL,4)}, {v(D,4)}")
        A(f"v_and_b32 v68, v{R}, v{R+4}" if phase else f"v_or_b32 v68, v{R}, v{R+4}")
        A("v_and_b32 v68, 1, v68")
        A(f"v_cmp_ne_u32 vcc, {phase}, v68")
    A(f"s_mov_b32 {s(S_SPIN)}, 0")
    if PRM["dd"]:
        ld_in(RA)
        delay(PRM["dd"])
        A.label(f"L_p2_{sfx}")
        ld_in(RB)
        if stamps: A("s_add_u32 s99, s99, 1")
        red_chk(RA, 2)
        A(f"s_cbranch_vccz L_p2d_{sfx}")
        ld_in(RA)
        spin_guard(A)
        if stamps: A("s_add_u32 s99, s99, 1")
        red_chk(RB, 2)
        A(f"s_cbranch_vccnz L_p2_{sfx}")
        A.label(f"L_p2d_{sfx}")
    else:
        A.label(f"L_p2_{sfx}")
        if stamps: A("s_add_u32 s99, s99, 1")
        ld_in(RA)
        spin_guard(A)
        red_chk(RA, 0)
        A(f"s_cbranch_vccnz L_p2_{sfx}")
    stamp(7)
    A(f"""v_permlane32_swap_b32 v{D}, v{D+2}
    v_permlane32_swap_b32 v{D+1}, v{D+3}
    v_add_f32 v{D}, v{D}, v{D+2}
    v_add_f32 v{D+1}, v{D+1}, v{D+3}
    v_mov_b32 v{D+2}, v{D}
    v_mov_b32 v{D+3}, v{D+1}
    v_permlane16_swap_b32 v{D}, v{D+2}
    v_permlane16_swap_b32 v{D+1}, v{D+3}
    v_add_f32 v{D}, v{D}, v{D+2}
    v_add_f32 v{D+1}, v{D+1}, v{D+3}
    v_cvt_pk_bf16_f32 v{D}, v{D}, v{D+1}
    v_min_u32 v{D}, -2, v{D}""")
    if "mex" in EXP: A(f"s_mov_b64 exec, {s(S_MEX,2)}")
    A(f"global_store_dword {v(V_MST)}, v{D}, {s(S_MEMX+2*k4,2)}{mode}")
    if "mex" in EXP: A("s_mov_b64 exec, -1")
    if "ack2" in EXP:
        stamp(7)
        A("s_waitcnt vmcnt(0)")
    stamp(8)
    if k4 == 2:
        A(f"v_readfirstlane_b32 {s(S_FLAG)}, {v(V_FLAG)}")
    for P in range(1, 4): A(f"v_xor_b32 v{V_T+P-1}, {P*2048}, {v(V_W2K)}")
    lz = A.uid("Lz")
    A(f"s_cmp_ge_u32 {s(S_W)}, 2")
    A(f"s_cbranch_scc1 {lz}")
    delay(PRM["dB"])
    A.label(lz)
    delay(PRM["dGA"])
    mx = s(S_MEMX + 2 * k4, 2)
    def ld_g(R):
        A(f"global_load_dwordx4 {v(R,4)}, {v(V_W2K)}, {mx} {ldf}")
        A(f"global_load_dwordx4 {v(R+4,4)}, {v(V_W2K)}, {mx} offset:1024 {ldf}")
    def g_chk(R, n_after):
        A(f"""s_waitcnt vmcnt({n_after+1})
        ds_write_b128 {v(V_W2K)}, {v(R,4)} offset:{L_MEM}
        v_max3_u32 v68, v{R}, v{R+1}, v{R+2}
        s_waitcnt vmcnt({n_after})
        ds_write_b128 {v(V_W2K)}, {v(R+4,4)} offset:{L_MEM+1024}
        v_max3_u32 v69, v{R+3}, v{R+4}, v{R+5}
        v_max3_u32 v68, v68, v{R+6}, v{R+7}
        v_max_u32 v68, v68, v69
        v_cmp_eq_u32 vcc, -1, v68""")
    A(f"s_mov_b32 {s(S_SPIN)}, 0")
    if PRM["dd3"]:
        RC = 120
        ld_g(RA)
        delay(PRM["dd3"])
        A.label(f"L_p3_{sfx}")
        ld_g(RC)
        if stamps: A("s_add_u32 s99, s99, 1")
        g_chk(RA, 2)
        A(f"s_cbranch_vccz L_p3d_{sfx}")
        spin_guard(A)
        if stamps: A("s_add_u32 s99, s99, 1")
        g_chk(RC, 0)
        A(f"s_cbranch_vccz L_p3c_{sfx}")
        ld_g(RA)
        delay(PRM["dd3"])
        A(f"s_branch L_p3_{sfx}")
        A.label(f"L_p3c_{sfx}")
        for k in range(4): A(f"v_mov_b64 {v(RA+2*k,2)}, {v(RC+2*k,2)}")
        A.label(f"L_p3d_{sfx}")
    else:
        A.label(f"L_p3_{sfx}")
        if stamps: A("s_add_u32 s99, s99, 1")
        ld_g(RA)
        spin_guard(A)
        g_chk(RA, 0)
        A(f"s_cbranch_vccnz L_p3_{sfx}")
    stamp(9)
    if dbg:
        A(f"s_add_u32 {s(S_T0)}, {s(S_STEP)}, 1")
        A(f"s_lshl_b32 {s(S_T0)}, {s(S_T0)}, 13")
        A(f"s_add_u32 {s(S_T0)}, {s(S_T0)}, {WS_DBG}")
        add64(A, S_SRC, S_WS, s(S_T0))
        for R_, o in ((RA, 0), (RA + 4, 1024)):
            A(f"global_store_dwordx4 {v(V_W2K)}, {v(R_,4)}, {s(S_SRC,2)} offset:{o}")
    if k4 == 2:
        A(f"s_cmp_eq_u32 {s(S_FLAG)}, 1")
        A(f"s_cbranch_scc1 L_rec_fok_{sfx}")
        if MINI:
            A(f"s_cmp_eq_u32 {s(S_STEP)}, 2")
            A(f"s_cbranch_scc1 L_rec_fok_{sfx}")
        flag_wait(A, f"L_rec_fw_{sfx}", 68)
        A.label(f"L_rec_fok_{sfx}")
    if stamps:
        A("s_waitcnt lgkmcnt(0)")
        for k in range(NST - 1):
            A(f"s_sub_u32 s68, s{72+2*k}, s{70+2*k}")
            A(f"s_add_u32 s{90+k}, s{90+k}, s68")
        if k4 == 3:
            A(f"s_cmp_eq_u32 {s(S_STEP)}, 7")
            A(f"s_cbranch_scc0 L_rec_join_{sfx}")
            for k in range(NST): A(f"s_mov_b32 s{90+k}, 0")
    A.label(f"L_rec_join_{sfx}")
    A(f"s_add_u32 {s(S_STEP)}, {s(S_STEP)}, 1")
    def ool():
        A.label(f"L_rec_fb_{sfx}")
        A(f"""v_max3_f32 v{m}, v{xs[0]}, v{xs[1]}, v{xs[2]}
        v_max3_f32 v{t1}, v{xs[3]}, v{xs[4]}, v{xs[5]}
        v_max3_f32 v{m}, v{m}, v{xs[6]}, v{xs[7]}
        v_max3_f32 v{m}, v{m}, v{SM+2}, v{SM+3}
        v_max_f32 v{m}, v{m}, v{t1}
        v_mov_b32 v{t1}, v{m}
        v_permlane16_swap_b32 v{m}, v{t1}
        v_max_f32 v{m}, v{m}, v{t1}
        v_mov_b32 v{t1}, v{m}
        v_permlane32_swap_b32 v{m}, v{t1}
        v_max_f32 v{m}, v{m}, v{t1}""")
        for r in xs + [SM + 2, SM + 3]: A(f"v_sub_f32 v{r}, v{r}, v{m}")
        for x in e0 + e1 + e2 + e3 + pm[2:]: A(x)
        A("s_nop 1")
        A(f"s_branch L_rec_fbret_{sfx}")
    return ool

def gen_loop(A, dbg=False, timing=False, stamps=False, n_init=0):
    gen_preloop(A, timing, stamps, n_init)
    A(f"s_cmp_eq_u32 {s(S_MODE)}, 0")
    A("s_cbranch_scc0 L_rec_step_s0")
    for mode in (FASTST, " sc1"):
        ools = [gen_step(A, k4, mode, dbg, stamps) for k4 in range(4)]
        A(f"s_branch L_rec_step_{'s' if mode == ' sc1' else 'f'}0")
        for o in ools: o()
    A.label("L_rec_last")
    KP = 44
    A("s_waitcnt lgkmcnt(0)")
    kv_read(A, KP)
    A(f"""s_waitcnt lgkmcnt(0)
    v_min_u32 v{KP}, -2, v{KP}
    global_store_dwordx4 {v(V_KVO)}, {v(KP,4)}, {s(S_KVB,2)} sc1
    """)
    trace(A, 3, 56)
    if timing:
        A(f"""s_memtime s[68:69]
        s_waitcnt lgkmcnt(0)
        s_sub_u32 s68, s68, s66
        v_mov_b32 v44, s68
        s_lshl_b32 {s(S_T0)}, {s(S_H)}, 2
        s_add_u32 {s(S_T0)}, {s(S_T0)}, {WS_DBG + (3<<20)}
        v_mov_b32 v45, {s(S_T0)}
        global_store_dword v45, v44, {s(S_WS,2)}""")
    if stamps:
        A(f"""s_lshl_b32 {s(S_T0)}, {s(S_H)}, 2
        s_add_u32 {s(S_T0)}, {s(S_T0)}, {s(S_W)}
        s_lshl_b32 {s(S_T0)}, {s(S_T0)}, 6
        s_add_u32 {s(S_T0)}, {s(S_T0)}, {WS_DBG + (1<<20)}""")
        add64(A, S_SRC, S_WS, s(S_T0))
        for k in range(NST):
            A(f"v_mov_b32 v46, s{90+k}")
            A(f"global_store_dword {v(V_ZZ)}, v46, {s(S_SRC,2)} offset:{4*k}")
    A("s_branch L_end")

HEADER = """.amdgcn_target "amdgcn-amd-amdhsa--gfx950"
.text
.globl {name}
.p2align 8
.type {name},@function
{name}:
"""
FOOTER = """.section .rodata,"a"
.p2align 6
.amdhsa_kernel {name}
  .amdhsa_next_free_vgpr 512
  .amdhsa_next_free_sgpr 102
  .amdhsa_accum_offset 256
  .amdhsa_group_segment_fixed_size 0
  .amdhsa_kernarg_size 128
  .amdhsa_user_sgpr_count 2
  .amdhsa_user_sgpr_kernarg_segment_ptr 1
  .amdhsa_system_sgpr_workgroup_id_x 1
.end_amdhsa_kernel
"""

def gen_standalone(dbg=True, timing=True, mode=0, stamps=False):
    A = Asm(); TB = Tables()
    A(f"""
    s_cmp_ge_u32 s2, 256
    s_cbranch_scc1 L_end
    s_load_dwordx2 {s(S_MEM0,2)}, s[0:1], 8
    s_load_dwordx4 {s(S_WQ,4)}, s[0:1], 16
    s_load_dwordx4 {s(S_WV,4)}, s[0:1], 32
    s_load_dwordx2 {s(S_DBG,2)}, s[0:1], 112
    s_load_dwordx2 {s(S_WS,2)}, s[0:1], 120
    s_getreg_b32 s3, hwreg(HW_REG_XCC_ID)
    s_and_b32 s3, s3, 7
    s_waitcnt lgkmcnt(0)
    s_cmp_eq_u32 s3, 0
    s_cbranch_scc0 L_end
    v_mov_b32 v2, 0
    v_mov_b32 v3, 1
    v_cmp_eq_u32 vcc, 0, v0
    s_and_saveexec_b64 s[4:5], vcc
    s_cbranch_execz L_tk
    global_atomic_add v4, v2, v3, {s(S_DBG,2)} sc0
    s_waitcnt vmcnt(0)
    ds_write_b32 v2, v4
    s_waitcnt lgkmcnt(0)
    L_tk:
    s_mov_b64 exec, -1
    s_barrier
    ds_read_b32 v4, v2
    s_waitcnt lgkmcnt(0)
    v_readfirstlane_b32 {s(S_H)}, v4
    s_barrier
    s_cmp_ge_u32 {s(S_H)}, 32
    s_cbranch_scc1 L_end
    s_mov_b32 {s(S_MODE)}, {mode}
    """)
    gen_prologue(A, TB)
    gen_loop(A, dbg, timing, stamps)
    A.label("L_end")
    A("s_waitcnt vmcnt(0)")
    A("s_endpgm")
    name = "rec_kernel"
    return f"; @launch grid=(256,1,1) block=(256,1,1) lds={LDS_TOTAL}\n" + HEADER.format(name=name) + A.text() + TB.text() + FOOTER.format(name=name)

if __name__ == "__main__":
    open("rec.s", "w").write(gen_standalone())
```

```python
from asmlib import *
from layout import *
import gen_rec
from gen_rec import add64, f32bits, dec, spin_guard, S_WO, S_WS, S_DBG, S_H, S_W, S_SPIN, S_T0, S_T1, S_T2, S_T3, S_SRC, S_TB, LT
import math
S_X = 4
S_GRP, S_KS, S_NS, S_TK = 22, 23, 24, 25
S_C = 26
S_SEG = 28
S_PH = 29
S_OUT, S_WR, S_WG, S_WU, S_WD, S_GW = 30, 32, 34, 36, 38, 40
S_IDX = 42
S_RS = 66
S_B0, S_B1, S_B2, S_B3 = 74, 76, 78, 80
S_PAR = 82
S_FIRST = 83
S_OB = 84
LOG2E = math.log2(math.e)

def wait_counter(A, off, n, vt, vz):
    l, l2 = A.uid("Lwc"), A.uid("Lwc")
    A(f"s_mov_b32 {s(S_SPIN)}, 0")
    A(f"s_branch {l2}")
    A.label(l)
    A("s_sleep 8")
    A.label(l2)
    A(f"global_load_dword v{vt}, v{vz}, {s(S_DBG,2)} offset:{off} sc1")
    spin_guard(A)
    A(f"""s_waitcnt vmcnt(0)
    v_readfirstlane_b32 {s(S_T0)}, v{vt}
    s_cmp_ge_u32 {s(S_T0)}, {n}
    s_cbranch_scc0 {l}""")

def wait_flags(A, vaddr, vt, sleep=2):
    l, l2 = A.uid("Lwf"), A.uid("Lwf")
    A(f"s_mov_b32 {s(S_SPIN)}, 0")
    A(f"s_branch {l2}")
    A.label(l)
    A(f"s_sleep {sleep}")
    A.label(l2)
    A(f"global_load_dword v{vt}, v{vaddr}, {s(S_WS,2)} sc1")
    spin_guard(A)
    A(f"""s_waitcnt vmcnt(0)
    v_cmp_ne_u32 vcc, 1, v{vt}
    s_cbranch_vccnz {l}""")

def set_flag(A, soff, vt):
    ln = A.uid("Lsf")
    A(f"""s_waitcnt vmcnt(0)
    s_barrier
    s_cmp_eq_u32 {s(S_W)}, 0
    s_cbranch_scc0 {ln}
    v_mov_b32 v{vt}, {soff}
    v_mov_b32 v{vt+1}, 1
    global_store_dword v{vt}, v{vt+1}, {s(S_WS,2)} sc1""")
    A.label(ln)

def rbf(A, d, x):
    A(f"v_cvt_pk_bf16_f32 v{d}, v{x}, v{x}")
    A(f"v_and_b32 v{d}, 0xffff0000, v{d}")

def sigmoid(A, d, x):
    A(f"v_mul_f32 v{d}, {f32bits(-LOG2E):#x}, v{x}")
    A(f"v_exp_f32 v{d}, v{d}")
    A(f"v_add_f32 v{d}, 1.0, v{d}")
    A(f"v_rcp_f32 v{d}, v{d}")

def allreduce(A, op, r, t):
    for c in ("quad_perm:[1,0,3,2]", "quad_perm:[2,3,0,1]", "row_ror:4", "row_ror:8"):
        A(f"{op}_dpp v{t}, v{r}, v{r} {c} row_mask:0xf bank_mask:0xf")
        A(f"v_mov_b32 v{r}, v{t}")
    for p in ("v_permlane16_swap_b32", "v_permlane32_swap_b32"):
        A(f"v_mov_b32 v{t}, v{r}")
        A(f"{p} v{r}, v{t}")
        A(f"{op} v{r}, v{r}, v{t}")

def gen_init(A, idx_sgpr, n_wg):
    A.comment("--- init job")
    A(f"""v_lshlrev_b32 v8, 4, v0
    v_mov_b32 v12, 0
    v_mov_b32 v13, 0
    v_mov_b32 v14, 0
    v_mov_b32 v15, 0
    v_mov_b32 v16, -1
    v_mov_b32 v17, -1
    v_mov_b32 v18, -1
    v_mov_b32 v19, -1""")
    for base, units, reg in ((WS_FLAGS, FL_TOTAL // 4096, 12), (WS_P2, 768, 12)):
        l, le = A.uid("Lin"), A.uid("Lin")
        A(f"s_mov_b32 {s(S_T0)}, {idx_sgpr}")
        A.label(l)
        A(f"""s_cmp_ge_u32 {s(S_T0)}, {units}
        s_cbranch_scc1 {le}
        s_lshl_b32 {s(S_T1)}, {s(S_T0)}, 12
        s_add_u32 {s(S_T1)}, {s(S_T1)}, {base}""")
        add64(A, S_SRC, S_WS, s(S_T1))
        A(f"""global_store_dwordx4 v8, {v(reg,4)}, {s(S_SRC,2)} sc1
        s_add_u32 {s(S_T0)}, {s(S_T0)}, {n_wg}
        s_branch {l}""")
        A.label(le)
    ln = A.uid("Lin")
    A(f"""s_waitcnt vmcnt(0)
    s_barrier
    v_cmp_eq_u32 vcc, 0, v0
    s_and_saveexec_b64 {s(S_SRC,2)}, vcc
    s_cbranch_execz {ln}
    v_mov_b32 v16, 1
    global_atomic_add v12, v16, {s(S_DBG,2)} offset:{DBG_INIT}""")
    A.label(ln)
    A("s_mov_b64 exec, -1")

def gen_m1(A, n_init):
    A.comment("--- M1: router/gate")
    A(f"""s_lshl_b32 {s(S_T3)}, {s(S_GRP)}, 5
    s_add_u32 {s(S_T3)}, {s(S_T3)}, {s(S_TK)}
    s_lshl_b32 {s(S_T0)}, {s(S_T3)}, 15
    s_lshl_b32 {s(S_T1)}, {s(S_W)}, 13
    s_add_u32 {s(S_T0)}, {s(S_T0)}, {s(S_T1)}
    s_add_u32 {s(S_T0)}, {s(S_T0)}, 4096""")
    add64(A, S_B0, S_X, s(S_T0))
    A(f"global_load_dwordx4 v[8:11], v2, {s(S_WR,2)}")
    A(f"global_load_dwordx4 v[12:15], v2, {s(S_GW,2)}")
    for k in range(8): A(f"global_load_dwordx4 {v(64+4*k,4)}, v2, {s(S_B0,2)} offset:{1024*k-4096}")
    A("s_waitcnt vmcnt(8)")
    for j in range(4):
        A(f"v_lshlrev_b32 v{16+2*j}, 16, v{8+j}")
        A(f"v_and_b32 v{17+2*j}, 0xffff0000, v{8+j}")
        A(f"v_lshlrev_b32 v{24+2*j}, 16, v{12+j}")
        A(f"v_and_b32 v{25+2*j}, 0xffff0000, v{12+j}")
    RK, GG = 48, 49
    for k in range(8):
        A(f"s_waitcnt vmcnt({7-k})")
        for j in range(4):
            A(f"v_lshlrev_b32 v{32+2*j}, 16, v{64+4*k+j}")
            A(f"v_and_b32 v{33+2*j}, 0xffff0000, v{64+4*k+j}")
        A(f"v_mul_f32 v40, v32, v16")
        for j in range(1, 8): A(f"v_fmac_f32 v40, v{32+j}, v{16+j}")
        for j in range(8): A(f"v_mul_f32 v{32+j}, v{32+j}, v{24+j}")
        for j in range(4): A(f"v_cvt_pk_bf16_f32 v{32+j}, v{32+2*j}, v{33+2*j}")
        A(f"v_dot2_f32_bf16 v41, v32, {s(S_T2)}, 0" if False else "v_mov_b32 v42, 0x3f803f80")
        A("v_dot2_f32_bf16 v41, v32, v42, 0")
        for j in range(1, 4): A(f"v_dot2_f32_bf16 v41, v{32+j}, v42, v41")
        allreduce(A, "v_add_f32", 40, 43)
        allreduce(A, "v_add_f32", 41, 43)
        A(f"v_cmp_eq_u32 vcc, {k}, v1")
        A(f"v_cndmask_b32 v{RK}, v{RK}, v40, vcc")
        A(f"v_cndmask_b32 v{GG}, v{GG}, v41, vcc")
    A(f"""v_cvt_pk_bf16_f32 v50, v{RK}, v{RK}
    v_and_b32 v50, 0xffff0000, v50
    v_ashrrev_i32 v51, 31, v50
    v_or_b32 v51, 0x80000000, v51
    v_xor_b32 v50, v50, v51
    v_and_b32 v50, 0xffff0000, v50
    s_lshl_b32 {s(S_T0)}, {s(S_T3)}, 5
    s_lshl_b32 {s(S_T1)}, {s(S_W)}, 3
    s_add_u32 {s(S_T0)}, {s(S_T0)}, {s(S_T1)}
    v_add_u32 v52, {s(S_T0)}, v1
    v_sub_u32 v53, 0xffff, v52
    v_or_b32 v50, v50, v53""")
    rbf(A, 54, GG)
    sigmoid(A, 55, 54)
    rbf(A, 54, 55)
    A("v_sub_f32 v55, 1.0, v54")
    rbf(A, 55, 55)
    A(f"""v_lshlrev_b32 v56, 2, v52
    v_add_u32 v56, {WS_RKEY}, v56
    v_lshlrev_b32 v57, 3, v52
    v_add_u32 v57, {WS_G}, v57
    s_mov_b64 exec, 0xff
    global_store_dword v56, v50, {s(S_WS,2)} sc1
    global_store_dwordx2 v57, v[54:55], {s(S_WS,2)} sc1
    s_mov_b64 exec, -1""")
    wait_counter(A, DBG_INIT, n_init, 58, 3)
    A(f"s_lshl_b32 {s(S_T1)}, {s(S_T3)}, 7")
    A(f"s_add_u32 {s(S_T1)}, {s(S_T1)}, {WS_FLAGS+FL_M1}")
    set_flag(A, s(S_T1), 58)

def gen_top8(A, n_init):
    A.comment("--- top8")
    wait_counter(A, DBG_INIT, n_init, 58, 3)
    A(f"v_lshlrev_b32 v8, 7, v1")
    A(f"v_add_u32 v8, {WS_FLAGS+FL_M1}, v8")
    wait_flags(A, 8, 9)
    add64(A, S_B0, S_WS, WS_RKEY + 4096)
    K = 64
    for k in range(8): A(f"global_load_dwordx4 {v(K+4*k,4)}, v2, {s(S_B0,2)} offset:{1024*k-4096} sc1")
    A("s_waitcnt vmcnt(0)")
    A(f"s_mov_b32 {s(S_T1)}, 0")
    for rnd in range(8):
        A(f"v_max3_u32 v8, v{K}, v{K+1}, v{K+2}")
        for j in range(3, 31, 2): A(f"v_max3_u32 v8, v8, v{K+j}, v{K+j+1}")
        A(f"v_max_u32 v8, v8, v{K+31}")
        allreduce(A, "v_max_u32", 8, 9)
        A(f"v_readfirstlane_b32 {s(S_T0)}, v8")
        A(f"s_add_u32 {s(S_T1)}, {s(S_T1)}, {s(S_T0)}")
        A(f"s_mov_b32 {s(S_RS+rnd)}, {s(S_T1)}")
        A(f"s_and_b32 {s(S_T2)}, {s(S_T1)}, 0xffff")
        A(f"s_sub_u32 {s(S_T2)}, 0xffff, {s(S_T2)}")
        A(f"s_and_b32 {s(S_IDX+rnd)}, {s(S_T2)}, 2047")
        if rnd < 7:
            for j in range(32): A(f"v_subrev_u32 v{K+j}, {s(S_T0)}, v{K+j}")

def gen_m2(A, TB, n_init):
    A.comment("--- M2: FFN slice fs = tk (64 cols)")
    def f_dg(tid):
        w, l = tid >> 6, tid & 63
        return (128 * w + (l >> 3)) * 3584 + (l & 7) * 16
    def f_trg(tid):
        w, l, n, g = dec(tid); r, c = n >> 2, n & 3
        return (8 * g + r) * 128 + w * 32 + 8 * c
    def f_trd(tid):
        w, l, n, g = dec(tid); r, c = n >> 2, n & 3
        return (8 * g + r) * 1024 + w * 256 + 8 * c
    def f_hw(tid):
        w, l, n, g = dec(tid); return 131072 + n * 128 + (16 * w + 4 * g) * 2
    g0 = TB.add([f_dg, f_trg, f_trd, f_hw])
    def f_hr(tid):
        w, l, n, g = dec(tid); return 131072 + n * 128 + g * 16
    def f_yo(tid):
        w, l, n, g = dec(tid); return (n & 7) * 2048 + (128 * w + 4 * g) * 4
    g1 = TB.add([f_hr, f_yo, lambda t: ((t & 63) >> 4) * 16, lambda t: t & 7])
    A("v_lshlrev_b32 v4, 4, v0")
    TB.load(A, g0, 16, 4, S_TB, S_SRC)
    TB.load(A, g1, 20, 4, S_TB, S_SRC)
    V_DG, V_TRG, V_TRD, V_HW, V_HR, V_YO, V_G16, V_T7 = range(16, 24)
    A(f"s_lshl_b32 {s(S_T0)}, {s(S_TK)}, 7")
    add64(A, S_B0, S_WG, s(S_T0))
    add64(A, S_B1, S_WU, s(S_T0))
    A(f"s_lshl_b32 {s(S_T2)}, {s(S_W)}, 14")
    A("s_waitcnt vmcnt(0)")
    for m, b in enumerate((S_B0, S_B1)):
        for i in range(16):
            A(f"s_add_u32 m0, {s(S_T2)}, {m*65536+i*1024}")
            A(f"s_nop 0")
            A(f"global_load_lds_dwordx4 v{V_DG}, {s(b,2)}")
            add64(A, b, b, 8 * 3584)
    gen_top8(A, n_init)
    A(f"v_mov_b32 v8, {s(S_IDX)}")
    for k in range(1, 8):
        A(f"v_cmp_eq_u32 vcc, {k}, v{V_T7}")
        A(f"v_mov_b32 v9, {s(S_IDX+k)}")
        A(f"v_cndmask_b32 v8, v8, v9, vcc")
    A(f"v_lshl_add_u32 v8, v8, 10, v{V_G16}")
    XB = 64
    for ks in range(16): A(f"global_load_dwordx4 {v(XB+4*ks,4)}, v8, {s(S_X,2)} offset:{64*ks}")
    A("s_waitcnt vmcnt(0)")
    A("s_barrier")
    AG, AU, WFR = 24, 28, 32
    A(f"v_add_u32 v9, 0x10000, v{V_TRG}")
    for ks in range(16):
        for m, (acc, ad) in enumerate(((AG, V_TRG), (AU, 9))):
            r = WFR + 8 * (ks & 1) + 4 * m
            for qd in range(2): A(f"ds_read_b64_tr_b16 {v(r+2*qd,2)}, v{ad} offset:{(32*ks+4*qd)*128}")
        if ks > 0:
            A("s_waitcnt lgkmcnt(4)")
            for m, acc in enumerate((AG, AU)):
                r = WFR + 8 * ((ks - 1) & 1) + 4 * m
                A(f"v_mfma_f32_16x16x32_bf16 {v(acc,4)}, {v(r,4)}, {v(XB+4*(ks-1),4)}, {'0' if ks == 1 else v(acc,4)}")
    A("s_waitcnt lgkmcnt(0)")
    for m, acc in enumerate((AG, AU)):
        A(f"v_mfma_f32_16x16x32_bf16 {v(acc,4)}, {v(WFR+8+4*m,4)}, {v(XB+60,4)}, {v(acc,4)}")
    A("s_barrier")
    A(f"""s_lshl_b32 {s(S_T0)}, {s(S_TK)}, 16
    s_lshl_b32 {s(S_T2)}, {s(S_W)}, 14
    s_add_u32 {s(S_T0)}, {s(S_T0)}, {s(S_T2)}""")
    add64(A, S_B0, S_WD, s(S_T0))
    for i in range(16):
        A(f"s_add_u32 m0, {s(S_T2)}, {i*1024}")
        A("s_nop 0")
        A(f"global_load_lds_dwordx4 v2, {s(S_B0,2)}")
        add64(A, S_B0, S_B0, 1024)
    for r in range(4):
        rbf(A, AG + r, AG + r)
        sigmoid(A, 48, AG + r)
        A(f"v_mul_f32 v{AG+r}, v{AG+r}, v48")
        rbf(A, AG + r, AG + r)
        rbf(A, AU + r, AU + r)
        A(f"v_mul_f32 v{AG+r}, v{AG+r}, v{AU+r}")
    A(f"""v_cvt_pk_bf16_f32 v48, v{AG}, v{AG+1}
    v_cvt_pk_bf16_f32 v49, v{AG+2}, v{AG+3}
    ds_write_b64 v{V_HW}, v[48:49]
    s_waitcnt vmcnt(0) lgkmcnt(0)
    s_barrier
    ds_read_b128 v[52:55], v{V_HR}
    ds_read_b128 v[56:59], v{V_HR} offset:64""")
    A(f"s_mul_i32 {s(S_T0)}, {s(S_TK)}, 16384")
    A(f"s_add_u32 {s(S_T0)}, {s(S_T0)}, {WS_YP}")
    add64(A, S_B0, S_WS, s(S_T0))
    for T in range(8):
        for kk in range(2):
            for qd in range(2): A(f"ds_read_b64_tr_b16 {v(64+8*T+4*kk+2*qd,2)}, v{V_TRD} offset:{(32*kk+4*qd)*1024+T*32}")
        if T % 2 == 1: A("s_waitcnt lgkmcnt(0)")
    for T in range(8):
        for kk in range(2):
            A(f"v_mfma_f32_16x16x32_bf16 {v(128+4*T,4)}, {v(64+8*T+4*kk,4)}, {v(52+4*kk,4)}, {'0' if kk == 0 else v(128+4*T,4)}")
    for T in range(8): A(f"global_store_dwordx4 v{V_YO}, {v(128+4*T,4)}, {s(S_B0,2)} offset:{64*T} sc1")
    A(f"s_lshl_b32 {s(S_T1)}, {s(S_TK)}, 7")
    A(f"s_add_u32 {s(S_T1)}, {s(S_T1)}, {WS_FLAGS+FL_M2}")
    set_flag(A, s(S_T1), 58)

def gen_m3(A, n_init):
    A.comment("--- M3: rows 2*(tk-28), +1")
    gen_top8(A, n_init)
    A(f"v_min_u32 v8, 27, v1")
    A(f"v_lshlrev_b32 v8, 7, v8")
    A(f"v_add_u32 v8, {WS_FLAGS+FL_M2}, v8")
    wait_flags(A, 8, 9)
    A(f"""s_sub_u32 {s(S_T3)}, {s(S_TK)}, 28
    s_lshl_b32 {s(S_T3)}, {s(S_T3)}, 1
    s_lshr_b32 {s(S_T0)}, {s(S_W)}, 1
    s_add_u32 {s(S_T3)}, {s(S_T3)}, {s(S_T0)}
    s_mov_b32 {s(S_T1)}, {s(S_IDX)}
    s_mov_b32 {s(S_T2)}, {s(S_RS)}""")
    for k in range(1, 8):
        A(f"s_cmp_eq_u32 {s(S_T3)}, {k}")
        A(f"s_cselect_b32 {s(S_T1)}, {s(S_IDX+k)}, {s(S_T1)}")
        A(f"s_cselect_b32 {s(S_T2)}, {s(S_RS+k)}, {s(S_T2)}")
    A(f"""s_and_b32 {s(S_T0)}, {s(S_W)}, 1
    s_lshl_b32 {s(S_T0)}, {s(S_T0)}, 10
    v_add_u32 v8, {s(S_T0)}, v2
    v_lshrrev_b32 v9, 1, v8
    s_lshl_b32 {s(S_T0)}, {s(S_T3)}, 11
    s_add_u32 {s(S_T0)}, {s(S_T0)}, {WS_YP}""")
    add64(A, S_B0, S_WS, s(S_T0))
    for f in range(28):
        A(f"global_load_dwordx4 {v(64+4*f,4)}, v8, {s(S_B0,2)} sc1")
        add64(A, S_B0, S_B0, 16384)
    A(f"s_lshl_b32 {s(S_T0)}, {s(S_T1)}, 10")
    add64(A, S_B1, S_X, s(S_T0))
    A(f"global_load_dwordx2 v[10:11], v9, {s(S_B1,2)}")
    A(f"""s_and_b32 {s(S_T2)}, {s(S_T2)}, 0xffff0000
    v_mov_b32 v12, {s(S_T2)}
    v_ashrrev_i32 v13, 31, v12
    v_not_b32 v13, v13
    v_or_b32 v13, 0x80000000, v13
    v_xor_b32 v12, v12, v13
    v_and_b32 v12, 0xffff0000, v12""")
    sigmoid(A, 13, 12)
    rbf(A, 13, 13)
    A("s_waitcnt vmcnt(0)")
    for f in range(1, 28):
        for r in range(4): A(f"v_add_f32 v{64+r}, v{64+r}, v{64+4*f+r}")
    A("""v_lshlrev_b32 v14, 16, v10
    v_and_b32 v15, 0xffff0000, v10
    v_lshlrev_b32 v16, 16, v11
    v_and_b32 v17, 0xffff0000, v11""")
    for r in range(4):
        rbf(A, 64 + r, 64 + r)
        A(f"v_mul_f32 v{64+r}, v{64+r}, v13")
        rbf(A, 64 + r, 64 + r)
        A(f"v_add_f32 v{64+r}, v{64+r}, v{14+r}")
    A(f"""v_cvt_pk_bf16_f32 v10, v64, v65
    v_cvt_pk_bf16_f32 v11, v66, v67
    s_lshl_b32 {s(S_T0)}, {s(S_T3)}, 10
    s_add_u32 {s(S_T0)}, {s(S_T0)}, {WS_BSEL}""")
    add64(A, S_B0, S_WS, s(S_T0))
    A(f"""global_store_dwordx2 v9, v[10:11], {s(S_B0,2)} sc1
    s_lshl_b32 {s(S_T0)}, {s(S_T3)}, 7
    s_add_u32 {s(S_T0)}, {s(S_T0)}, {WS_IDX}
    v_mov_b32 v12, {s(S_T0)}
    v_mov_b32 v13, {s(S_T1)}
    global_store_dword v12, v13, {s(S_WS,2)} sc1
    s_sub_u32 {s(S_T1)}, {s(S_TK)}, 28
    s_lshl_b32 {s(S_T1)}, {s(S_T1)}, 7
    s_add_u32 {s(S_T1)}, {s(S_T1)}, {WS_FLAGS+FL_M3}""")
    set_flag(A, s(S_T1), 58)

def gen_p2(A, TB, n_init):
    A.comment("=== phase 2 role ===")
    A(f"""s_load_dwordx2 {s(S_OUT,2)}, s[0:1], 104
    s_load_dwordx4 {s(S_WR,4)}, s[0:1], 64
    s_load_dwordx4 {s(S_WU,4)}, s[0:1], 80
    s_load_dwordx2 {s(S_GW,2)}, s[0:1], 96
    v_lshrrev_b32 v4, 6, v0
    v_and_b32 v1, 63, v0
    v_lshlrev_b32 v2, 4, v1
    v_mov_b32 v3, 0
    v_readfirstlane_b32 {s(S_W)}, v4
    s_lshr_b32 {s(S_KS)}, {s(S_TK)}, 2
    s_and_b32 {s(S_NS)}, {s(S_TK)}, 3
    s_mov_b32 {s(S_C)}, {f32bits(128**-0.5 * LOG2E):#x}""")
    TB.base(A, S_TB)
    A(f"""s_lshl_b32 {s(S_T3)}, {s(S_GRP)}, 5
    s_add_u32 {s(S_T3)}, {s(S_T3)}, {s(S_TK)}""")
    gen_init(A, s(S_T3), 96)
    A(f"""s_waitcnt lgkmcnt(0)
    s_cmp_eq_u32 {s(S_GRP)}, 2
    s_cbranch_scc1 L_p2_moe""")
    gen_m1(A, n_init)
    A("s_branch L_p2_main")
    A.label("L_p2_moe")
    A(f"s_cmp_ge_u32 {s(S_TK)}, 28")
    A("s_cbranch_scc1 L_p2_m3")
    gen_m2(A, TB, n_init)
    A("s_branch L_p2_main")
    A.label("L_p2_m3")
    gen_m3(A, n_init)
    A.label("L_p2_main")
    gen_rec.trace(A, 1, 8)
    def f_dw(tid):
        w, l, n, g = dec(tid); return g * 1024 + ((n ^ (g << 2)) * 16)
    def f_tr(dt):
        def f(tid):
            w, l, n, G = dec(tid); r, c = n >> 2, n & 3
            return w * 32768 + (4 * (G >> 1) + r) * 256 + ((dt ^ r) * 64) + (G & 1) * 32 + 8 * c
        return f
    def f_k(tid):
        l = tid & 63; key = l & 7; return ((l >> 5) * 16 + 4 * (key >> 1) + 2 + (key & 1)) * 16
    def f_v(tid):
        l = tid & 63; e = l & 31; key = e & 7; return ((e >> 3) * 16 + 4 * (key >> 1) + (key & 1)) * 16
    g0 = TB.add([f_dw, f_k, f_v, lambda t: (t & 31) * 4])
    g1 = TB.add([f_tr(0), f_tr(1), f_tr(2), f_tr(3)])
    g2 = TB.add([lambda t: (t >> 6) * 16384 + (t & 63) * 16, lambda t: (t >> 6) * 4096 + (t & 63) * 16,
                 lambda t: (t & 31) * 1024 + ((t >> 6) & 1) * 16 + ((t >> 5) & 1) * 8, lambda t: (t & 31) * 8])
    V_DW, V_K, V_V, V_ST, V_TR, V_RW, V_RR, V_XO, V_GO = 4, 5, 6, 7, 8, 12, 13, 14, 15
    A("v_lshlrev_b32 v16, 4, v0")
    A("s_barrier")
    for g, r in ((g0, 4), (g1, 8), (g2, 12)): TB.load(A, g, r, 16, S_TB, S_SRC)
    A(f"""s_lshl_b32 {s(S_H)}, {s(S_KS)}, 2
    s_add_u32 {s(S_H)}, {s(S_H)}, {s(S_W)}
    s_lshl_b32 {s(S_T0)}, {s(S_H)}, 17
    s_lshl_b32 {s(S_T1)}, {s(S_NS)}, 8
    s_add_u32 {s(S_T0)}, {s(S_T0)}, {s(S_T1)}""")
    add64(A, S_B0, S_WO, s(S_T0))
    A(f"s_lshl_b32 {s(S_T2)}, {s(S_W)}, 15")
    A("s_waitcnt vmcnt(0)")
    for i in range(32):
        A(f"s_add_u32 m0, {s(S_T2)}, {i*1024}")
        A("s_nop 0")
        A(f"global_load_lds_dwordx4 v{V_DW}, {s(S_B0,2)}")
        add64(A, S_B0, S_B0, 4096)
    A("s_waitcnt vmcnt(0)")
    WOF = lambda dt, k: a((dt * 8 + k) * 4, 4)
    for dt in range(4):
        for k in range(8):
            for qd in range(2):
                A(f"ds_read_b64_tr_b16 {a((dt*8+k)*4+2*qd,2)}, v{V_TR+dt} offset:{(16*k+8*qd)*256}")
            if k % 4 == 3: A("s_waitcnt lgkmcnt(0)")
    wait_counter(A, DBG_INIT, n_init, 16, 3)
    A(f"""v_and_b32 v16, 3, v1
    s_lshl_b32 {s(S_T0)}, {s(S_H)}, 2
    v_add_u32 v16, {s(S_T0)}, v16
    v_lshlrev_b32 v16, 7, v16
    v_add_u32 v16, {WS_FLAGS+FL_MINI}, v16""")
    wait_flags(A, 16, 17, 8)
    A(f"""s_mov_b32 {s(S_SEG)}, {s(S_GRP)}
    s_mov_b32 {s(S_PAR)}, 0
    s_mov_b32 {s(S_PH)}, 1
    s_mov_b32 {s(S_FIRST)}, 1
    s_mov_b64 {s(S_OB,2)}, {s(S_OUT,2)}
    s_barrier""")
    QF, OXP, KF, VF, OA, OUT, SA = 128, 32, 64, 96, 128, 192, 112
    A.label("L_p2_seg")
    A(f"s_cmp_ge_u32 {s(S_W)}, 2")
    A("s_cbranch_scc1 L_p2_pre_skip")
    A(f"s_cmp_eq_u32 {s(S_FIRST)}, 0")
    A("s_cbranch_scc1 L_p2_nf")
    A(f"""v_and_b32 v16, 3, v1
    v_lshlrev_b32 v16, 7, v16
    v_add_u32 v16, {WS_FLAGS+FL_M3}, v16""")
    wait_flags(A, 16, 17, 8)
    A(f"""v_and_b32 v16, 7, v1
    v_lshlrev_b32 v16, 7, v16
    v_add_u32 v16, {WS_IDX}, v16
    global_load_dword v17, v16, {s(S_WS,2)} sc1
    s_waitcnt vmcnt(0)""")
    for k in range(8): A(f"v_readlane_b32 {s(S_IDX+k)}, v17, {k}")
    A.label("L_p2_nf")
    A(f"""s_lshl_b32 {s(S_T0)}, {s(S_SEG)}, 15
    s_lshl_b32 {s(S_T1)}, {s(S_NS)}, 8
    s_lshl_b32 {s(S_T2)}, {s(S_KS)}, 5
    s_add_u32 {s(S_T1)}, {s(S_T1)}, {s(S_T2)}
    s_add_u32 {s(S_T0)}, {s(S_T0)}, {s(S_T1)}""")
    add64(A, S_B0, S_X, s(S_T0))
    add64(A, S_OB, S_OUT, s(S_T0))
    A(f"s_lshl_b32 {s(S_T0)}, {s(S_SEG)}, 8")
    A(f"s_add_u32 {s(S_T0)}, {s(S_T0)}, {WS_G}")
    add64(A, S_B3, S_WS, s(S_T0))
    A(f"global_load_dwordx2 v[26:27], v{V_XO}, {s(S_B0,2)}")
    A(f"global_load_dwordx2 v[28:29], v{V_GO}, {s(S_B3,2)} sc1")
    A(f"""s_lshl_b32 {s(S_T0)}, {s(S_SEG)}, 5
    v_and_b32 v16, 31, v1
    v_add_u32 v16, {s(S_T0)}, v16
    v_and_b32 v17, 0x3ff, v{V_XO}
    s_add_u32 {s(S_T1)}, {s(S_T1)}, {WS_BSEL}
    v_add_u32 v17, {s(S_T1)}, v17
    s_waitcnt vmcnt(0)""")
    for k in range(8):
        lk = A.uid("Lsel")
        A(f"v_cmp_eq_u32 vcc, {s(S_IDX+k)}, v16")
        A(f"s_cbranch_vccz {lk}")
        A(f"""s_mov_b64 exec, vcc
        v_add_u32 v23, {k*1024}, v17
        global_load_dwordx2 v[26:27], v23, {s(S_WS,2)} sc1
        s_waitcnt vmcnt(0)
        s_mov_b64 exec, -1""")
        A.label(lk)
    A("""v_lshlrev_b32 v96, 16, v26
    v_and_b32 v97, 0xffff0000, v26
    v_lshlrev_b32 v98, 16, v27
    v_and_b32 v99, 0xffff0000, v27""")
    for r in range(4):
        A(f"v_mul_f32 v{96+r}, v{96+r}, v29")
        rbf(A, 96 + r, 96 + r)
    for r in range(4): A(f"v_accvgpr_write_b32 a{160+r}, v{96+r}")
    A("v_accvgpr_write_b32 a164, v28")
    A.label("L_p2_pre_skip")
    A(f"""s_lshr_b32 {s(S_T1)}, {s(S_SEG)}, 2
    s_lshl_b32 {s(S_T1)}, {s(S_T1)}, 5
    s_add_u32 {s(S_T1)}, {s(S_T1)}, {s(S_H)}
    s_lshl_b32 {s(S_T1)}, {s(S_T1)}, 7
    s_add_u32 {s(S_T1)}, {s(S_T1)}, {WS_FLAGS+FL_P1B}
    v_mov_b32 v16, {s(S_T1)}""")
    wait_flags(A, 16, 17, 8)
    A(f"""s_lshl_b32 {s(S_T3)}, {s(S_SEG)}, 5
    s_add_u32 {s(S_T3)}, {s(S_T3)}, {s(S_H)}
    s_lshl_b32 {s(S_T0)}, {s(S_T3)}, 13
    s_add_u32 {s(S_T0)}, {s(S_T0)}, {WS_Q+4096}""")
    add64(A, S_B0, S_WS, s(S_T0))
    add64(A, S_B1, S_B0, WS_OX - WS_Q)
    A(f"s_lshl_b32 {s(S_T0)}, {s(S_T3)}, 7")
    A(f"s_add_u32 {s(S_T0)}, {s(S_T0)}, {WS_ST}")
    add64(A, S_B2, S_WS, s(S_T0))
    A(f"s_lshl_b32 {s(S_T0)}, {s(S_T3)}, 12")
    A(f"s_add_u32 {s(S_T0)}, {s(S_T0)}, {WS_KV}")
    add64(A, S_B3, S_WS, s(S_T0))
    for k in range(8): A(f"global_load_dwordx4 {v(OXP+4*k,4)}, v2, {s(S_B1,2)} offset:{1024*k-4096} sc1")
    for k in range(8): A(f"global_load_dwordx4 {a(QF+4*k,4)}, v2, {s(S_B0,2)} offset:{1024*k-4096} sc1")
    LSE = 18
    A(f"global_load_dword v{LSE}, v{V_ST}, {s(S_B2,2)} sc1")
    A("s_waitcnt vmcnt(9)")
    for j in range(32):
        A(f"v_lshlrev_b32 v{OA+2*j}, 16, v{OXP+j}")
        A(f"v_and_b32 v{OA+2*j+1}, 0xffff0000, v{OXP+j}")
    A(f"s_mov_b32 {s(S_SPIN)}, 0")
    A("v_and_b32 v17, 3, v1")
    A("v_lshlrev_b32 v17, 10, v17")
    if "oldkv" in gen_rec.EXP: A("s_branch L_p2_kv3")
    A("s_branch L_p2_kv2")
    A.label("L_p2_kv1")
    A("s_sleep 1")
    A.label("L_p2_kv2")
    A(f"global_load_dword v16, v17, {s(S_B3,2)} sc1")
    spin_guard(A)
    A("""s_waitcnt vmcnt(0)
    v_cmp_eq_u32 vcc, -1, v16
    s_cbranch_vccnz L_p2_kv1""")
    A.label("L_p2_kv")
    if "oldkv" in gen_rec.EXP: A("s_sleep 4")
    A.label("L_p2_kv3")
    for k in range(8): A(f"global_load_dwordx4 {v(KF+4*k,4)}, v{V_K}, {s(S_B3,2)} offset:{k*512} sc1")
    for et in range(4): A(f"global_load_dwordx4 {v(VF+4*et,4)}, v{V_V}, {s(S_B3,2)} offset:{et*1024} sc1")
    spin_guard(A)
    A("s_waitcnt vmcnt(0)")
    A(f"v_max3_u32 v16, v{KF}, v{KF+4}, v{KF+8}")
    for j in range(3, 11, 2): A(f"v_max3_u32 v16, v16, v{KF+4*j}, v{KF+4*j+4}")
    A(f"""v_max_u32 v16, v16, v{KF+44}
    v_cmp_eq_u32 vcc, -1, v16
    s_cbranch_vccnz L_p2_kv""")
    if gen_rec.TRACE:
        lt_ = A.uid("Ltr")
        A(f"s_cmp_eq_u32 {s(S_W)}, 0")
        A(f"s_cbranch_scc0 {lt_}")
        gen_rec.trace(A, 8, 30)
        A.label(lt_)
    for k in range(8):
        A(f"v_mfma_f32_32x32x16_bf16 {v(SA,16)}, {v(KF+4*k,4)}, {a(QF+4*k,4)}, {'0' if k == 0 else v(SA,16)}")
    A("v_cmp_lt_u32 vcc, 31, v1")
    for et in range(4):
        A(f"v_cndmask_b32 v{VF+4*et}, v{VF+4*et}, v{VF+4*et+2}, vcc")
        A(f"v_cndmask_b32 v{VF+4*et+1}, v{VF+4*et+1}, v{VF+4*et+3}, vcc")
    m, t1, al, l = 19, 20, 21, 22
    for r in range(4): A(f"v_mul_f32 v{SA+r}, {s(S_C)}, v{SA+r}")
    A(f"""v_max3_f32 v{m}, v{SA}, v{SA+1}, v{SA+2}
    v_max3_f32 v{m}, v{m}, v{SA+3}, v{LSE}
    v_mov_b32 v{t1}, v{m}
    v_permlane32_swap_b32 v{m}, v{t1}
    v_max_f32 v{m}, v{m}, v{t1}""")
    for r in range(4): A(f"v_sub_f32 v{SA+r}, v{SA+r}, v{m}")
    A(f"v_sub_f32 v{al}, v{LSE}, v{m}")
    for r in range(4): A(f"v_exp_f32 v{SA+r}, v{SA+r}")
    A(f"""v_exp_f32 v{al}, v{al}
    v_add_f32 v{l}, v{SA}, v{SA+1}
    v_add_f32 v{t1}, v{SA+2}, v{SA+3}
    v_add_f32 v{l}, v{l}, v{t1}
    v_mov_b32 v{t1}, v{l}
    v_permlane32_swap_b32 v{l}, v{t1}
    v_add_f32 v{l}, v{l}, v{t1}
    v_add_f32 v{l}, v{l}, v{al}
    v_rcp_f32 v{l}, v{l}
    s_nop 0
    v_mul_f32 v{al}, v{al}, v{l}""")
    for r in range(4): A(f"v_mul_f32 v{SA+r}, v{SA+r}, v{l}")
    A(f"v_cvt_pk_bf16_f32 v24, v{SA}, v{SA+1}")
    A(f"v_cvt_pk_bf16_f32 v25, v{SA+2}, v{SA+3}")
    for et in range(4):
        for j in range(16): A(f"v_mul_f32 v{OA+16*et+j}, v{OA+16*et+j}, v{al}")
        A(f"v_mfma_f32_32x32x8_bf16 {v(OA+16*et,16)}, {v(VF+4*et,2)}, v[24:25], {v(OA+16*et,16)}")
    for et in range(4):
        for j in range(8): A(f"v_cvt_pk_bf16_f32 v{OXP+8*et+j}, v{OA+16*et+2*j}, v{OA+16*et+2*j+1}")
        for f in range(2):
            k = 2 * et + f
            for dt in range(4):
                A(f"v_mfma_f32_32x32x16_bf16 {v(OUT+16*dt,16)}, {WOF(dt,k)}, {v(OXP+4*k,4)}, {'0' if k == 0 else v(OUT+16*dt,16)}")
    if gen_rec.TRACE:
        lt_ = A.uid("Ltr")
        A(f"s_cmp_eq_u32 {s(S_W)}, 0")
        A(f"s_cbranch_scc0 {lt_}")
        gen_rec.trace(A, 9, 30)
        A.label(lt_)
        A("s_nop 11")
    for dt in range(4):
        for j in range(4): A(f"ds_write_b128 v{V_RW}, {v(OUT+16*dt+4*j,4)} offset:{dt*4096+j*1024}")
    A(f"""s_lshl_b32 {s(S_T0)}, {s(S_GRP)}, 1
    s_add_u32 {s(S_T0)}, {s(S_T0)}, {s(S_PAR)}
    s_lshl_b32 {s(S_T0)}, {s(S_T0)}, 2
    s_add_u32 {s(S_T0)}, {s(S_T0)}, {s(S_NS)}
    s_lshl_b32 {s(S_T0)}, {s(S_T0)}, 17
    s_add_u32 {s(S_T0)}, {s(S_T0)}, {WS_P2}
    s_lshl_b32 {s(S_T1)}, {s(S_W)}, 15
    s_lshl_b32 {s(S_T2)}, {s(S_KS)}, 11
    s_add_u32 {s(S_T1)}, {s(S_T1)}, {s(S_T2)}
    s_add_u32 {s(S_T1)}, {s(S_T1)}, {s(S_T0)}""")
    add64(A, S_B0, S_WS, s(S_T1))
    add64(A, S_B1, S_B0, 16384)
    A(f"""s_lshl_b32 {s(S_T1)}, {s(S_KS)}, 14
    s_lshl_b32 {s(S_T2)}, {s(S_W)}, 10
    s_add_u32 {s(S_T1)}, {s(S_T1)}, {s(S_T2)}
    s_add_u32 {s(S_T1)}, {s(S_T1)}, {s(S_T0)}""")
    add64(A, S_B2, S_WS, s(S_T1))
    A("s_waitcnt lgkmcnt(0)")
    A("s_barrier")
    for sw in range(4):
        for j in range(4): A(f"ds_read_b128 {v(64+16*sw+4*j,4)}, v{V_RR} offset:{sw*16384+j*1024}")
    A("s_waitcnt lgkmcnt(8)")
    for r in range(16): A(f"v_add_f32 v{64+r}, v{64+r}, v{80+r}")
    A("s_waitcnt lgkmcnt(0)")
    for r in range(16): A(f"v_add_f32 v{96+r}, v{96+r}, v{112+r}")
    A("s_barrier")
    for j in range(4):
        for r in range(4): A(f"v_add_f32 v{64+4*j+r}, v{64+4*j+r}, v{96+4*j+r}")
        A(f"v_and_or_b32 v{64+4*j}, v{64+4*j}, -2, {s(S_PH)}")
        A(f"global_store_dwordx4 v2, {v(64+4*j,4)}, {s(S_B0 if j < 2 else S_B1,2)} offset:{(j&1)*1024} sc1")
    if gen_rec.TRACE:
        lt_ = A.uid("Ltr")
        A(f"s_cmp_eq_u32 {s(S_W)}, 0")
        A(f"s_cbranch_scc0 {lt_}")
        gen_rec.trace(A, 10, 30)
        A.label(lt_)
    A(f"s_cmp_ge_u32 {s(S_W)}, 2")
    A("s_cbranch_scc1 L_p2_next")
    if gen_rec.TRACE:
        lt_ = A.uid("Ltr")
        A(f"s_cmp_eq_u32 {s(S_W)}, 0")
        A(f"s_cbranch_scc0 {lt_}")
        gen_rec.trace(A, 11, 30)
        A.label(lt_)
    add64(A, S_B3, S_B2, 8192)
    for r in range(4): A(f"v_accvgpr_read_b32 v{96+r}, a{160+r}")
    A("v_accvgpr_read_b32 v28, a164")
    A("s_waitcnt vmcnt(0)")
    A(f"s_mov_b32 {s(S_SPIN)}, 0")
    A.label("L_p2_fp")
    for src in range(8):
        A(f"global_load_dwordx4 {v(64+4*src,4)}, v2, {s(S_B2 if src < 2 else S_B3,2)} offset:{src*2048 - (0 if src < 2 else 8192)} sc1" if src < 6 else
          f"global_load_dwordx4 {v(64+4*src,4)}, v30, {s(S_B3,2)} offset:{(src-6)*2048} sc1")
        if src == 0: A("v_add_u32 v30, 4096, v2")
    spin_guard(A)
    A("s_waitcnt vmcnt(0)")
    A(f"v_xor_b32 v16, {s(S_PH)}, v64")
    for src in range(1, 8):
        A(f"v_xor_b32 v17, {s(S_PH)}, v{64+4*src}")
        A("v_or_b32 v16, v16, v17")
    A("""v_and_b32 v16, 1, v16
    v_cmp_ne_u32 vcc, 0, v16
    s_cbranch_vccnz L_p2_fp""")
    if gen_rec.TRACE:
        lt_ = A.uid("Ltr")
        A(f"s_cmp_eq_u32 {s(S_W)}, 0")
        A(f"s_cbranch_scc0 {lt_}")
        gen_rec.trace(A, 12, 30)
        A.label(lt_)
    for src in range(1, 8):
        for r in range(4): A(f"v_add_f32 v{64+r}, v{64+r}, v{64+4*src+r}")
    for r in range(4):
        rbf(A, 64 + r, 64 + r)
        A(f"v_mul_f32 v{64+r}, v{64+r}, v28")
        rbf(A, 64 + r, 64 + r)
        A(f"v_add_f32 v{64+r}, v{64+r}, v{96+r}")
    A(f"""v_cvt_pk_bf16_f32 v26, v64, v65
    v_cvt_pk_bf16_f32 v27, v66, v67
    global_store_dwordx2 v{V_XO}, v[26:27], {s(S_OB,2)}""")
    A.label("L_p2_next")
    A(f"""s_mov_b32 {s(S_FIRST)}, 0
    s_xor_b32 {s(S_PAR)}, {s(S_PAR)}, 1
    s_xor_b32 {s(S_T0)}, {s(S_PAR)}, 1
    s_xor_b32 {s(S_PH)}, {s(S_PH)}, {s(S_T0)}
    s_add_u32 {s(S_SEG)}, {s(S_SEG)}, 3
    s_cmp_lt_u32 {s(S_SEG)}, 64
    s_cbranch_scc1 L_p2_seg""")
    gen_rec.trace(A, 2, 8)
    A("s_branch L_end")
```

```python
from asmlib import *
from layout import *
import math, struct

def f32bits(x): return struct.unpack("<I", struct.pack("<f", x))[0]

S_MEM0, S_WQ, S_WK, S_WV, S_WO, S_WS, S_DBG = 6, 8, 10, 12, 14, 16, 18
S_H, S_W, S_STEP, S_MODE = 20, 21, 22, 23
S_SCALE, S_SEL10, S_SEL01, S_SPIN = 24, 25, 26, 27
S_PST = 28
S_MEMX = 40
S_WS4 = 48
S_KVB = 50
S_FLB = 52
S_T0, S_T1, S_T2, S_T3 = 54, 55, 56, 57
S_KXM0 = 58
S_MK3 = 60
S_SRC = 64
S_TB = 62
S_INB = 4
def INB(par): return 36 + 2 * par
S_SELM = 8
S_MEX = 48
S_MEMG = 76
S_FLO = 4
S_FLAG = 5
(V_L16, V_IDX, V_QKW, V_TR,
 V_TRW, V_OW, V_PST, V_MST,
 V_GATH, V_KVO, V_XR, V_WOR,
 V_W2K, V_XW, V_SELV, V_KXO) = range(16)
V_INL = V_GATH
V_FLAG = V_TRW
V_WO01 = 16
V_ONES = 32
V_ZZ = 36
V_PA = 38
V_PB = 40
V_X = 42
V_M = 44
V_AQ, V_AK, V_AV = 80, 88, 96
V_ACC = 80
V_F = 112
V_T = 76
V_WV = 128

def WQ(T, t): return a((T * 8 + t) * 8, 8)
def WK(T, t): return a(128 + (T * 8 + t) * 8, 8)
def WV(T, t): return v(V_WV + (T * 8 + t) * 8, 8)

def add64(A, d, b, off):
    A(f"s_add_u32 {s(d)}, {s(b)}, {off}")
    A(f"s_addc_u32 {s(d+1)}, {s(b+1)}, 0")

class Tables:
    def __init__(self): self.groups = []
    def add(self, fns, nthreads=256):
        assert len(fns) == 4
        self.groups.append([[int(f(t)) & 0xffffffff for f in fns] for t in range(nthreads)])
        return len(self.groups) - 1
    def text(self):
        out = [".p2align 8", "L_tables:"]
        for g in self.groups:
            for row in g: out.append("  .long " + ", ".join("%#x" % x for x in row))
        return "\n".join(out) + "\n"
    def base(self, A, sreg):
        l = A.uid("Lpc")
        A(f"s_getpc_b64 {s(sreg,2)}")
        A.label(l)
        A(f"s_add_u32 {s(sreg)}, {s(sreg)}, L_tables-{l}")
        A(f"s_addc_u32 {s(sreg+1)}, {s(sreg+1)}, 0")
    def load(self, A, g, vdst, vtid16, sreg, stmp):
        add64(A, stmp, sreg, g * 4096)
        A(f"global_load_dwordx4 {v(vdst,4)}, {v(vtid16)}, {s(stmp,2)}")

def code_prefetch(A, label, shift, vdst, vt):
    l = A.uid("Lpc")
    A(f"s_getpc_b64 {s(S_SRC,2)}")
    A.label(l)
    A(f"s_add_u32 {s(S_SRC)}, {s(S_SRC)}, {label}-{l}")
    A(f"s_addc_u32 {s(S_SRC+1)}, {s(S_SRC+1)}, 0")
    A(f"v_lshlrev_b32 v{vt}, 7, v0")
    A(f"global_load_dword v{vdst}, v{vt}, {s(S_SRC,2)}")

def dec(tid):
    w, l = tid >> 6, tid & 63
    return w, l, l & 15, l >> 4

def gen_prologue(A, TB):
    A.comment("=== recurrence prologue; s20 = head ===")
    def f_qkw(tid):
        w, l, n, g = dec(tid); return L_QK + (32 * w + n) * 32 + g * 8
    def f_tr(tid):
        w, l, n, g = dec(tid); r, c = n >> 2, n & 3
        return L_QK + es(0, g, r) * 32 + c * 8
    def f_ow(tid):
        w, l, n, g = dec(tid)
        if n & 2: return L_MEM + l * 8
        return L_O + (w & 1) * 1024 + ((g >> 1) * 16 + n + 2 * (w >> 1)) * 16 + (g & 1) * 8
    def f_pst(tid):
        w, l, n, g = dec(tid)
        if "in64" in EXP: return (w * 8 + (n >> 3) * 4 + g) * 4096 + ((n >> 2) & 1) * 2048 + (n & 3) * 16
        return (w * 8 + (n >> 3) * 4 + g) * 4096 + (n & 7) * 16
    def f_mst(tid):
        w, l, n, g = dec(tid); j, b5 = l & 7, l >> 5; c, qq = j >> 1, j & 1
        cp = ((l >> 3) & 3) % PRM["ncp"]
        return cp * (32768 + PRM["cpo"]) + (w >> 1) * 1024 + (w & 1) * 256 + (2 * (c >> 1) + qq) * 16 + ((c & 1) * 2 + b5) * 4
    def f_kvo(tid):
        return tid * 16
    def f_xr(tid):
        w, l, n, g = dec(tid); key = 2 * (n >> 2) + (n & 1)
        return L_X + (32 * w + g * 8 + key) * 16
    def f_gath(tid):
        w, l, n, g = dec(tid)
        if "in64" in EXP: return (w >> 1) * 0x20000 + (w & 1) * 2048 + l * 16
        return (w >> 1) * 0x20000 + (l >> 2) * 128 + (w & 1) * 64 + (l & 3) * 16
    def f_xw(tid):
        w, l, n, g = dec(tid); return L_X + (32 * w + n) * 16 + g * 4
    g0 = TB.add([lambda t: (t & 63) * 16, lambda t: 0xeeee if t & 2 else 0x4444, f_qkw, f_tr])
    g1 = TB.add([lambda t: f_tr(t) + (t >> 6) * 1024, f_ow, f_pst, f_mst])
    def f_kxo(tid):
        w, l, n, g = dec(tid); return (w >> 1) * WS_VX + (w & 1) * 4096 + l * 16
    g2 = TB.add([f_gath, f_kvo, f_xr, lambda t: L_WO + (t >> 6) * 28672 + (t & 63) * 16 - 4096])
    g2b = TB.add([lambda t: (t >> 6) * 2048 + (t & 63) * 16, f_xw, lambda t: 0x3f800000 if t & 1 else 0x3f80, f_kxo])
    fq = lambda d: (d & 1) | (((d >> 4) & 3) << 1)
    fo = lambda e: (e & 1) | (((e >> 2) & 1) << 1) | (((e >> 6) & 1) << 2)
    def f_dq(hi):
        def f(tid):
            w, l, n, g = dec(tid); row = 32 * w + 16 * hi + g
            return g * 8192 + ((n ^ (fq(row) << 1)) * 16)
        return f
    def f_do(odd):
        def f(tid):
            w, l, n, g = dec(tid); row = 32 * w + 4 * odd + g
            return g * 1024 + ((n ^ (fo(row) << 1)) * 16)
        return f
    g3 = TB.add([f_dq(0), f_dq(1), f_do(0), f_do(1)])
    def f_rq(T, hi):
        def f(tid):
            w, l, n, gB = dec(tid); r, c = n >> 2, n & 3
            row = 32 * (r >> 1) + 16 * (gB & 1) + 4 * (gB >> 1) + (r & 1)
            return L_STG + hi * 65536 + row * 256 + ((2 * w + T) ^ fq(row)) * 32 + 8 * c
        return f
    g4 = TB.add([f_rq(0, 0), f_rq(1, 0), f_rq(0, 1), f_rq(1, 1)])
    def f_ro(tid):
        w, l, n, gB = dec(tid); r, c = n >> 2, n & 3
        row = 64 * (r >> 1) + 8 * (gB >> 1) + 4 * (gB & 1) + (r & 1)
        return L_STG + w * 32768 + row * 256 + fo(row) * 32 + 8 * c
    def f_m0(tid):
        l, jj = tid >> 2, tid & 3
        q, half = arow(l & 15)
        return q * 1024 + dslot(0, half, l >> 4, 2 * jj) * 2
    g5 = TB.add([f_ro, f_m0, lambda t: L_MEM + t * 4, lambda t: L_KX + (t >> 6) * 6144 + (t & 63) * 16])
    VD, VR, VRO = 44, 48, 52
    A(f"""
    v_lshrrev_b32 v1, 6, v0
    v_lshlrev_b32 v76, 4, v0
    s_nop 0
    v_readfirstlane_b32 {s(S_W)}, v1
    """)
    code_prefetch(A, "L_rec_step_f0", 0, 78, 77)
    TB.base(A, S_TB)
    for g, r in [(g0, 0), (g1, 4), (g2, 8), (g2b, 12), (g3, VD), (g4, VR), (g5, VRO)]:
        TB.load(A, g, r, 76, S_TB, S_SRC)
    A(f"""v_bfe_u32 v82, v76, 8, 2
    v_bfe_u32 v83, v76, 4, 4
    v_and_b32 v84, 1, v82
    s_and_b32 {s(S_T0)}, {s(S_W)}, 1
    s_lshl_b32 {s(S_T0)}, {s(S_T0)}, 2
    v_or_b32 v84, {s(S_T0)}, v84
    v_lshlrev_b32 v84, 1, v84
    v_xor_b32 v83, v83, v84
    v_lshlrev_b32 v83, 4, v83
    v_lshl_add_u32 v80, v82, 13, v83
    v_xor_b32 v81, 64, v80""")
    mats = [S_WK, S_WQ, S_WV]
    def dma_chunk(ci):
        slot = ci % 4
        if ci < 12:
            base, c = mats[ci // 4], ci % 4
            A(f"s_lshl_b32 {s(S_T0)}, {s(S_W)}, 18")
            A(f"s_lshl_b32 {s(S_T1)}, {s(S_H)}, 8")
            A(f"s_add_u32 {s(S_T0)}, {s(S_T0)}, {s(S_T1)}")
            A(f"s_add_u32 {s(S_T0)}, {s(S_T0)}, {128*c*8192}")
            step = 4 * 8192
            vo = lambda i: 80 + (i >> 2)
        else:
            base, c = S_WO, ci - 12
            A(f"s_lshl_b32 {s(S_T0)}, {s(S_W)}, 15")
            A(f"s_lshl_b32 {s(S_T1)}, {s(S_H)}, 17")
            A(f"s_add_u32 {s(S_T0)}, {s(S_T0)}, {s(S_T1)}")
            A(f"s_add_u32 {s(S_T0)}, {s(S_T0)}, {c*256}")
            step = 4 * 1024
            vo = lambda i: VD + 2 + (i & 1)
        add64(A, S_SRC, base, s(S_T0))
        A(f"s_lshl_b32 {s(S_T2)}, {s(S_W)}, 13")
        A(f"s_add_u32 {s(S_T2)}, {s(S_T2)}, {L_STG + slot*32768}")
        for i in range(8):
            A(f"s_mov_b32 m0, {s(S_T2)}")
            A(f"s_add_u32 {s(S_T2)}, {s(S_T2)}, 1024")
            A(f"global_load_lds_dwordx4 v{vo(i)}, {s(S_SRC,2)}" + (" nt" if PRM.get("wnt", 0) else ""))
            if i < 7: add64(A, S_SRC, S_SRC, step)
    for ci in range(4): dma_chunk(ci)
    A(f"""
    s_mov_b32 {s(S_SCALE)}, {f32bits(128**-0.5 * math.log2(math.e)):#x}
    s_mov_b32 {s(S_SEL10)}, 0x00003f80
    s_mov_b32 {s(S_SEL01)}, 0x3f800000
    s_mov_b32 {s(S_MK3)}, 0x33333333
    s_mov_b32 {s(S_MK3+1)}, 0x33333333
    """)
    for r in range(V_ZZ, V_X + 2): A(f"v_mov_b32 v{r}, 0")
    for par in range(2):
        for z in range(2):
            add64(A, S_PST + 4 * par + 2 * z, S_WS, WS_INBOX + par * 0x40000 + z * 0x20000)
    for r in range(4): add64(A, S_MEMX + 2 * r, S_WS, WS_MEMX + r * 8192)
    A(f"s_mov_b32 {s(S_MEX)}, 0xff")
    A(f"s_mov_b32 {s(S_MEX+1)}, 0xff")
    add64(A, S_KVB, S_WS, WS_KV - 0x20000)
    add64(A, S_FLB, S_WS, WS_FLAGS)
    A(f"""s_and_b32 {s(S_T0)}, {s(S_W)}, 1
    s_lshr_b32 {s(S_T1)}, {s(S_W)}, 1
    s_mul_i32 {s(S_T1)}, {s(S_T1)}, {L_VX-L_KX}
    s_lshl_b32 {s(S_T2)}, {s(S_T0)}, 12
    s_add_u32 {s(S_T1)}, {s(S_T1)}, {s(S_T2)}
    s_add_u32 {s(S_KXM0)}, {s(S_T1)}, {L_KX}
    s_add_u32 {s(S_KXM0+1)}, {s(S_T1)}, {L_KX+8192}
    s_lshl_b32 {s(S_T3)}, {s(S_H)}, 12
    s_waitcnt vmcnt(32)
    v_lshrrev_b32 v56, 12, {v(V_PST)}
    v_add_u32 v56, {s(S_H)}, v56
    v_and_b32 v56, 31, v56
    v_lshl_add_u32 {v(V_PST)}, v56, {6 if 'in64' in EXP else 7}, {v(V_PST)}
    s_lshr_b32 {s(S_T0)}, {s(S_H)}, 3
    s_lshl_b32 {s(S_T0)}, {s(S_T0)}, 11
    s_bfe_u32 {s(S_T1)}, {s(S_H)}, 0x10002
    s_lshl_b32 {s(S_T1)}, {s(S_T1)}, 9
    s_add_u32 {s(S_T0)}, {s(S_T0)}, {s(S_T1)}
    s_and_b32 {s(S_T1)}, {s(S_H)}, 3
    s_lshl_b32 {s(S_T1)}, {s(S_T1)}, 6
    s_add_u32 {s(S_T0)}, {s(S_T0)}, {s(S_T1)}
    v_add_u32 {v(V_MST)}, {s(S_T0)}, {v(V_MST)}
    s_lshl_b32 {s(S_T0)}, {s(S_H)}, 12
    v_add_u32 {v(V_KVO)}, {s(S_T0)}, {v(V_KVO)}
    s_lshl_b32 {s(S_T0)}, {s(S_H)}, 13
    v_add_u32 {v(V_KXO)}, {s(S_T0)}, {v(V_KXO)}
    v_mov_b32 v56, 0
    v_mov_b32 v57, 0
    v_mov_b32 v58, 0
    v_mov_b32 v59, 0
    v_mov_b32 v60, -1
    v_add_u32 v61, {s(S_T3)}, v76
    """)
    def init_stores():
        for pz in range(4): A(f"global_store_dwordx4 v61, v[56:59], {s(S_PST+2*pz,2)} sc1")
        for r in range(4): A(f"global_store_dword {v(V_MST)}, v60, {s(S_MEMX+2*r,2)} sc1")
    def mem0_loads():
        for t in range(8): A(f"global_load_dword v{62+t}, v{VRO+1}, {s(S_MEM0,2)} offset:{128*t}")
    order = [("c", 0, 8), ("c", 1, 8), ("c", 2, 8), ("c", 3, 8)]
    def after(tag):
        k = [i for i, o in enumerate(order) if o[:2] == tag][0]
        return sum(o[2] for o in order[k + 1:])
    for ci in range(12):
        slot = ci % 4
        A(f"s_waitcnt vmcnt({after(('c', ci))})")
        A("s_barrier")
        if ci == 7:
            A(f"""s_cmp_eq_u32 {s(S_W)}, 0
            s_cbranch_scc0 L_rec_noinc
            v_mov_b32 v56, 1
            s_mov_b64 exec, 1
            global_atomic_add {v(V_ZZ)}, v56, {s(S_DBG,2)} offset:{DBG_RECINIT}
            s_mov_b64 exec, -1
            L_rec_noinc:""")
        if "ctrace" in EXP:
            A("s_add_u32 s2, s2, 256")
            trace(A, ci, 86)
            A("s_sub_u32 s2, s2, 256")
        W = [WK, WQ, WV][ci // 4]
        c = ci % 4
        lend = A.uid("Lwv")
        for wv in range(4):
            lnx = A.uid("Lwv")
            if wv < 3:
                A(f"s_cmp_eq_u32 {s(S_W)}, {wv}")
                A(f"s_cbranch_scc0 {lnx}")
            for tt in range(2):
                t = 2 * (c ^ wv) + tt
                for T in range(2):
                    wreg = W(T, t)
                    kind, lo = wreg[0], int(wreg[2:].split(":")[0])
                    for p4 in range(4):
                        off = (2 * (p4 & 1) + 8 * (p4 >> 1) + 64 * tt) * 256 + (slot & 1) * 32768
                        A(f"ds_read_b64_tr_b16 {kind}[{lo+2*p4}:{lo+2*p4+1}], v{VR + T + 2*(slot>>1)} offset:{off}")
            if wv < 3:
                A(f"s_branch {lend}")
                A.label(lnx)
        A.label(lend)
        if ci == 7:
            for t in range(8): A(f"ds_write_b32 v{VRO+2}, v{62+t} offset:{1024*t}")
        A("s_waitcnt lgkmcnt(0)")
        A("s_barrier")
        dma_chunk(ci + 4)
        order.append(("c", ci + 4, 8))
        if ci == 1:
            init_stores(); order.append(("i", 0, 8))
        if ci == 2:
            mem0_loads(); order.append(("m", 0, 8))
    for par in range(2): add64(A, INB(par), S_PST + 4 * par, s(S_T3))
    for k in range(4):
        A(f"s_mov_b32 {s(S_SELM+2*k)}, {0x03030303 << (2*k):#x}")
        A(f"s_mov_b32 {s(S_SELM+2*k+1)}, {0x03030303 << (2*k):#x}")
    A(f"s_lshl_b32 {s(S_FLO)}, {s(S_H)}, 7")
    A("""s_waitcnt vmcnt(0)
    s_barrier""")
    if "ctrace" in EXP:
        A("s_add_u32 s2, s2, 256")
        trace(A, 12, 86)
        A("s_sub_u32 s2, s2, 256")
    A(f"""v_lshrrev_b32 v56, 4, {v(V_L16)}
    v_and_b32 v56, 3, v56
    s_lshl_b32 {s(S_T0)}, {s(S_H)}, 2
    v_add_u32 v56, {s(S_T0)}, v56
    v_lshlrev_b32 v56, 7, v56
    v_add_u32 v56, {FL_MINI}, v56
    global_load_dwordx2 v[40:41], {v(V_ZZ)}, {s(S_DBG,2)} offset:{DBG_XCC0} sc1
    global_load_dword v42, {v(V_ZZ)}, {s(S_DBG,2)} offset:{DBG_INIT} sc1
    s_waitcnt vmcnt(0)
    global_load_dword v43, v56, {s(S_FLB,2)} sc1""")
    def wo_read(f, reg):
        T, tp = f >> 1, f & 1
        A(f"v_xor_b32 v{VRO+1}, {T*32}, v{VRO}")
        for p4 in range(4):
            off = (32 * tp + 16 * (p4 >> 1) + 2 * (p4 & 1)) * 256
            A(f"ds_read_b64_tr_b16 v[{reg+2*p4}:{reg+2*p4+1}], v{VRO+1} offset:{off}")
    regs = [16, 24, 32, 44] + [56 + 8 * i for i in range(9)]
    PK = VRO + 3
    for k, f in enumerate([13, 14, 15]): wo_read(f, 56 + 8 * k)
    A("s_waitcnt lgkmcnt(0)")
    for k in range(6): A(f"ds_write_b128 v{PK}, v[{56+4*k}:{59+4*k}] offset:{1024*k}")
    A("s_waitcnt lgkmcnt(0)")
    for f in range(13):
        wo_read(f, regs[f])
        if f % 3 == 2: A("s_waitcnt lgkmcnt(4)")
    A("s_waitcnt lgkmcnt(0)")
    A("s_barrier")
    for f in range(2, 13):
        A(f"ds_write_b128 {v(V_WOR)}, v[{regs[f]}:{regs[f]+3}] offset:{f*2048}")
        A(f"ds_write_b128 {v(V_WOR)}, v[{regs[f]+4}:{regs[f]+7}] offset:{f*2048+1024}")
        if f % 4 == 3: A("s_waitcnt lgkmcnt(0)")
    A("s_waitcnt lgkmcnt(0)")
    for k in range(6): A(f"ds_read_b128 v[{56+4*k}:{59+4*k}], v{PK} offset:{1024*k}")
    A("s_waitcnt lgkmcnt(0)")
    for k in range(6): A(f"ds_write_b128 {v(V_WOR)}, v[{56+4*k}:{59+4*k}] offset:{13*2048+1024*k}")
    A(f"""s_waitcnt vmcnt(0)
    v_readfirstlane_b32 s70, v40
    v_readfirstlane_b32 s71, v41
    v_readfirstlane_b32 s72, v42
    v_cmp_ne_u32 s[74:75], 1, v43""")
    for r in range(4): A(f"v_mov_b32 v{V_ONES+r}, 0x3f803f80")
    for r in range(V_ZZ, V_X + 2): A(f"v_mov_b32 v{r}, 0")
    A("""s_waitcnt lgkmcnt(0)
    s_barrier""")

def spin_guard(A):
    A(f"s_add_u32 {s(S_SPIN)}, {s(S_SPIN)}, 1")
    A(f"s_cmp_gt_u32 {s(S_SPIN)}, 0x400000")
    A("s_cbranch_scc1 L_end")

NST = 10
TRACE = False
MINI = True
FASTST = ""
FASTLD = "sc1"
def trace(A, tid_, vt):
    if not TRACE: return
    A("s_memrealtime s[100:101]")
    A("s_waitcnt lgkmcnt(0)")
    A(f"v_mov_b32 v{vt+1}, s100")
    A("s_lshl_b32 s100, s2, 4")
    A(f"s_add_u32 s100, s100, {tid_}")
    A("s_lshl_b32 s100, s100, 2")
    A(f"s_add_u32 s100, s100, {WS_DBG + (2<<20)}")
    A(f"v_mov_b32 v{vt}, s100")
    A(f"global_store_dword v{vt}, v{vt+1}, {s(S_WS,2)}")
EXP = {"in64"}
PRM = dict(dA=3, dB=10, dGA=5, dGB=9, ne=2, bq=6, dd=0, dd3=0, dEL=0, ncp=1, cpo=0, dr=5)
def zero_acc(A):
    A(f"v_mfma_f32_32x32x8_bf16 {v(V_ACC,16)}, {v(V_ZZ,2)}, {v(V_ZZ,2)}, 0")
    A(f"v_mfma_f32_32x32x8_bf16 {v(V_ACC+16,16)}, {v(V_ZZ,2)}, {v(V_ZZ,2)}, 0")

def dma4(par):
    return [f"s_mov_b32 m0, {s(S_KXM0+par)}"] + [f"global_load_lds_dwordx4 {v(V_KXO)}, {s(S_WS,2)} offset:{1024*i}" for i in range(4)] + [f"v_add_u32 {v(V_KXO)}, 0x40000, {v(V_KXO)}"]

def kv_read(A, KP):
    A(f"s_lshl_b32 {s(S_T0)}, {s(S_W)}, 10")
    A(f"v_add_u32 v{KP+4}, {s(S_T0)}, {v(V_TR)}")
    A(f"ds_read_b64_tr_b16 v[{KP}:{KP+1}], v{KP+4}")
    A(f"ds_read_b64_tr_b16 v[{KP+2}:{KP+3}], v{KP+4} offset:256")
    A(f"s_mov_b64 exec, {s(S_MK3,2)}")
    A(f"ds_read_b128 {v(KP,4)}, {v(V_XR)}")
    A("s_mov_b64 exec, -1")

def flag_wait(A, name, vt):
    A(f"s_mov_b32 {s(S_SPIN)}, 0")
    A(f"v_mov_b32 v{vt}, {s(S_FLO)}")
    A.label(name)
    A(f"global_load_dword v{vt+1}, v{vt}, {s(S_FLB,2)} sc1")
    spin_guard(A)
    A(f"""s_waitcnt vmcnt(0)
    v_readfirstlane_b32 {s(S_T0)}, v{vt+1}
    s_cmp_eq_u32 {s(S_T0)}, 1
    s_cbranch_scc0 {name}""")

def load_counters(A, vt, sdst):
    A(f"""v_mbcnt_lo_u32_b32 v{vt}, -1, 0
    v_mbcnt_hi_u32_b32 v{vt}, -1, v{vt}
    v_and_b32 v{vt}, 7, v{vt}
    v_lshlrev_b32 v{vt}, 2, v{vt}
    v_mov_b32 v{vt+1}, {DBG_XCC0}
    v_cmp_eq_u32 vcc, 0, v{vt}
    v_cndmask_b32 v{vt}, v{vt}, v{vt+1}, vcc
    global_load_dword v{vt+1}, v{vt}, {s(S_DBG,2)} sc1
    s_waitcnt vmcnt(0)""")
    for k in range(8): A(f"v_readlane_b32 {s(sdst+k)}, v{vt+1}, {k}")
    A(f"s_add_u32 {s(S_T0)}, {s(sdst)}, {s(sdst+1)}")
    for k in range(2, 8): A(f"s_add_u32 {s(S_T0)}, {s(S_T0)}, {s(sdst+k)}")

FORCE_MODE = None
def decide_mode(A):
    if FORCE_MODE is not None:
        A(f"s_mov_b32 {s(S_MODE)}, {FORCE_MODE}")
        return
    A(f"s_mov_b32 {s(S_SPIN)}, 0")
    A.label("L_rec_md")
    spin_guard(A)
    load_counters(A, 56, 70)
    A(f"""s_mov_b32 {s(S_MODE)}, 0
    s_cmp_ge_u32 s70, 32
    s_cbranch_scc1 L_rec_mdok
    s_mov_b32 {s(S_MODE)}, 1
    s_cmp_ge_u32 {s(S_T0)}, 256
    s_cbranch_scc0 L_rec_md""")
    A.label("L_rec_mdok")

def gen_preloop(A, timing, stamps, n_init=0):
    A.comment("pre-loop")
    trace(A, 1, 56)
    if n_init and FORCE_MODE is None:
        A(f"""s_mov_b32 {s(S_MODE)}, 0
        s_min_u32 s70, s70, s71
        s_cmp_lt_u32 s70, 32
        s_cbranch_scc1 L_rec_slowchk
        s_cmp_lt_u32 s72, {n_init}
        s_cbranch_scc1 L_rec_slowchk
        s_cmp_lg_u64 s[74:75], 0
        s_cbranch_scc1 L_rec_slowchk""")
        for x in dma4(0): A(x)
        A("s_waitcnt vmcnt(0)")
        A("s_branch L_rec_go")
        A.label("L_rec_slowchk")
    if n_init:
        decide_mode(A)
        A(f"s_mov_b32 {s(S_SPIN)}, 0")
        A.label("L_rec_gi")
        A(f"global_load_dword v56, {v(V_ZZ)}, {s(S_DBG,2)} offset:{DBG_INIT} sc1")
        spin_guard(A)
        A(f"""s_waitcnt vmcnt(0)
        v_readfirstlane_b32 {s(S_T0)}, v56
        s_cmp_ge_u32 {s(S_T0)}, {n_init}
        s_cbranch_scc0 L_rec_gi""")
    if n_init:
        A(f"""v_and_b32 v56, 3, {v(V_INL)}
        v_lshrrev_b32 v56, 4, {v(V_L16)}
        v_and_b32 v56, 3, v56
        s_lshl_b32 {s(S_T0)}, {s(S_H)}, 2
        v_add_u32 v56, {s(S_T0)}, v56
        v_lshlrev_b32 v56, 7, v56
        v_add_u32 v56, {FL_MINI}, v56
        s_mov_b32 {s(S_SPIN)}, 0""")
        A.label("L_rec_f0")
        A(f"global_load_dword v57, v56, {s(S_FLB,2)} sc1")
        spin_guard(A)
        A(f"""s_waitcnt vmcnt(0)
        v_cmp_ne_u32 vcc, 1, v57
        s_cbranch_vccnz L_rec_f0""")
    else:
        flag_wait(A, "L_rec_f0", 56)
    for x in dma4(0): A(x)
    A.label("L_rec_i0")
    A(f"global_load_dword v56, {v(V_ZZ)}, {s(S_DBG,2)} offset:{DBG_RECINIT} sc1")
    spin_guard(A)
    A(f"""s_waitcnt vmcnt(0)
    v_readfirstlane_b32 {s(S_T0)}, v56
    s_cmp_ge_u32 {s(S_T0)}, 32
    s_cbranch_scc0 L_rec_i0""")
    A.label("L_rec_go")
    A(f"s_mov_b32 {s(S_STEP)}, 0")
    A(f"s_and_b32 {s(S_T0)}, {s(S_H)}, {PRM['ncp']-1}")
    A(f"s_mul_i32 {s(S_T0)}, {s(S_T0)}, {32768 + PRM['cpo']}")
    for r in range(4): add64(A, S_MEMG + 2 * r, S_MEMX + 2 * r, s(S_T0))
    zero_acc(A)
    A(f"""v_mov_b32 v116, -1
    v_mov_b32 v112, 0
    v_mov_b32 v113, 0
    v_mov_b32 v114, 0
    v_mov_b32 v115, 0""")
    A(f"ds_read_b128 {v(V_M,4)}, {v(V_W2K)} offset:{L_MEM}")
    A(f"ds_read_b128 {v(V_M+4,4)}, {v(V_W2K)} offset:{L_MEM+1024}")
    for P in range(1, 4): A(f"v_xor_b32 v{V_T+P-1}, {P*2048}, {v(V_W2K)}")
    A("s_waitcnt lgkmcnt(0)")
    trace(A, 2, 56)
    A("s_barrier")
    if timing:
        A("s_memtime s[66:67]")
        A("s_waitcnt lgkmcnt(0)")
    if stamps:
        for k in range(NST): A(f"s_mov_b32 s{90+k}, 0")

class LT:
    def __init__(self, A): self.A, self.ops, self.done = A, [], 0
    def op(self, name, ins):
        self.ops.append(name); return ins
    def wait(self, name):
        i = len(self.ops) - 1 - self.ops[::-1].index(name)
        if i < self.done: return None
        self.done = i + 1
        return f"s_waitcnt lgkmcnt({min(len(self.ops) - 1 - i, 15)})"

def gen_step(A, k4, mode, dbg, stamps):
    sfx = f"{'s' if mode == ' sc1' else 'f'}{k4}"
    par, phase = k4 & 1, ((k4 >> 1) & 1) ^ 1
    ldf = "sc1" if mode == " sc1" else FASTLD
    def stamp(k):
        if stamps: A(f"{'s_memrealtime' if 'rt' in EXP else 's_memtime'} s[{70+2*k}:{71+2*k}]")
    M = lambda t: v(V_M + 4 * t, 4)
    F = lambda u: v(V_F + 4 * u, 4)
    KXR = lambda j: [v(88,4), v(92,4), v(104,4), v(108,4)][j] if j < 4 else M(j - 4)
    idx = v(V_IDX)
    lt = LT(A)
    def emit(x):
        if x is None: return
        if isinstance(x, str): A(x)
        elif x[0] == "ds": A(lt.op(x[1], x[2]))
        elif x[0] == "w":
            w = lt.wait(x[1])
            if w: A(w)
    def run(main, fills):
        for k, m in enumerate(main):
            for x in m: emit(x)
            for x in fills.get(k, []): emit(x)
    def post(acc, d0, d1):
        return [f"v_add_f32 v{acc}, v{acc}, v{acc+2}", f"v_add_f32 v{acc+1}, v{acc+1}, v{acc+3}",
                f"v_add_f32 v{acc+4}, v{acc+4}, v{acc+6}", f"v_add_f32 v{acc+5}, v{acc+5}, v{acc+7}",
                f"v_cvt_pk_bf16_f32 v{d0}, v{acc}, v{acc+1}", f"v_cvt_pk_bf16_f32 v{d1}, v{acc+4}, v{acc+5}"]
    mrd = lambda t, tag: ("ds", f"M{tag}{t}", f"ds_read_b128 {M(t)}, v{V_T+(t>>1)-1} offset:{L_MEM+(t&1)*1024}")
    kxrd = lambda j: ("ds", f"KX{j}", f"ds_read_b128 {KXR(j)}, {v(V_L16)} offset:{L_KX+par*8192+j*1024}")
    frd = lambda i, tag: ("ds", f"F{tag}{i}", f"ds_read_b64_tr_b16 {v(V_F+2*i,2)}, {v(V_TR)} offset:{(i>>1)*1024+(i&1)*256}")
    slots = [44, 52, 60, 68, 112]
    NS = len(slots)
    def wslot(f): return (V_WO01 + 8 * f) if f < 2 else slots[(f - 2) % NS]
    def wo_ld(f):
        r = wslot(f)
        return [("ds", f"W{f}a", f"ds_read_b128 {v(r,4)}, {v(V_WOR)} offset:{f*2048}"),
                ("ds", f"W{f}", f"ds_read_b128 {v(r+4,4)}, {v(V_WOR)} offset:{f*2048+1024}")]
    smf = lambda acc, T, t, W: f"v_smfmac_f32_16x16x64_bf16 {v(acc+4*T,4)}, {M(t)}, {W(T,t)}, {idx}"
    KP = 112
    A.label(f"L_rec_step_{sfx}")
    if TRACE and k4 == 0:
        lt_ = A.uid("Ltr")
        A(f"s_and_b32 {s(S_T0)}, {s(S_STEP)}, 7")
        A(f"s_cmp_eq_u32 {s(S_T0)}, 0")
        A(f"s_cbranch_scc0 {lt_}")
        A(f"s_lshr_b32 {s(S_T0)}, {s(S_STEP)}, 3")
        A(f"s_add_u32 {s(S_T0)}, {s(S_T0)}, 4")
        trace(A, s(S_T0), 68)
        A("s_memtime s[100:101]")
        A("s_waitcnt lgkmcnt(0)")
        A("v_mov_b32 v69, s100")
        A(f"v_add_u32 v68, 0x10000, v68")
        A(f"global_store_dword v68, v69, {s(S_WS,2)}")
        A.label(lt_)
    stamp(0)
    if k4 == 3:
        A(f"s_cmp_eq_u32 {s(S_STEP)}, 63")
        A("s_cbranch_scc1 L_rec_last")
    d4 = dma4(par ^ 1) if "nold" not in EXP else [None] * 6
    hk = [f"global_store_dword {v(V_MST)}, v{KP+4}, {s(S_MEMX+2*((k4+1)&3),2)}{mode}", f"v_add_u32 {v(V_KVO)}, 0x20000, {v(V_KVO)}"]
    fl = []
    if k4 == 2: fl.append(f"global_load_dword {v(V_FLAG)}, v{KP+7}, {s(S_FLB,2)} sc1")
    kvst = f"global_store_dwordx4 {v(V_KVO)}, {v(KP,4)}, {s(S_KVB,2)} sc1"
    NE = PRM["ne"]
    early = [[smf(V_AK, T, t, WK)] for t in range(2) for T in range(2)] + [[smf(V_AQ, T, t, WQ)] for t in range(2) for T in range(2)]
    run(early, {NE: ["s_waitcnt lgkmcnt(0)", "s_barrier"] + [mrd(t, "a") for t in range(2, 8)] + [kvst]})
    run([[("w", f"Ma{t}"), smf(V_AK, T, t, WK)] for t in range(2, 8) for T in range(2)],
        {0: [d4[0]], 1: [d4[1]], 3: [d4[2]], 5: [d4[3]], 7: [d4[4], d4[5]], 8: hk, 9: fl + [f"s_waitcnt vmcnt({6 + len(fl)})", kxrd(2)], 11: [kxrd(3)]})
    stamp(1)
    kp = post(V_AK, V_T + 2, V_T + 3)
    fills = {7: kp[0:2], 8: kp[2:4], 9: kp[4:6],
             10: [("ds", "KW", f"ds_write2_b32 {v(V_QKW)}, v{V_T+2}, v{V_T+3} offset0:1 offset1:129"), kxrd(0)],
             11: [kxrd(1)]}
    run([[smf(V_AQ, T, t, WQ)] for t in range(2, 8) for T in range(2)], fills)
    stamp(2)
    SX, PX, SM, OA, LA = 80, 104, 88, 80, 112
    VXR = (108, 92)
    qp = post(V_AQ, V_T, V_T + 1)
    fills = {1: [kxrd(4), "s_nop 4"] + qp + [("ds", "QW", f"ds_write2_b32 {v(V_QKW)}, v{V_T}, v{V_T+1} offset0:0 offset1:128")],
             3: [kxrd(5)], 5: [kxrd(6)], 7: [kxrd(7)]}
    bq = PRM["bq"]
    fills[bq] = fills.get(bq, []) + [f"s_waitcnt vmcnt({6 + (1 if k4 == 2 else 0)})", ("w", "QW"), "s_barrier"] + [frd(i, "a") for i in range(4)]
    fills[bq + 1] = [frd(i, "a") for i in range(4, 8)] + fills.get(bq + 1, [])
    run([[smf(V_AV, T, t, WV)] for t in range(6) for T in range(2)], fills)
    stamp(3)
    def sxm(kt):
        L = []
        for u in range(4):
            d = SX + 4 * kt; j = kt * 4 + u
            L.append([("w", f"Fa{2*u+1}"), ("w", f"KX{j}"),
                      f"v_mfma_f32_16x16x32_bf16 {v(d,4)}, {KXR(j)}, {F(u)}, {'0' if u == 0 else v(d,4)}"])
        return L
    smm = [[f"v_mfma_f32_16x16x32_bf16 {v(SM,4)}, {F(u)}, {F(u)}, {'0' if u == 0 else v(SM,4)}"] for u in range(4)]
    m, t1 = V_T, V_T + 1
    ta, tb = V_T + 2, V_T + 3
    xs = list(range(SX, SX + 8))
    def pexp(k): return [f"v_exp_f32 v{ta}, v{xs[2*k]}", f"v_exp_f32 v{tb}, v{xs[2*k+1]}", f"v_cvt_pk_bf16_f32 v{PX+k}, v{ta}, v{tb}"]
    vx = [("ds", "VX0", f"ds_read_b128 {v(VXR[0],4)}, {v(V_W2K)} offset:{L_VX+par*8192}"),
          ("ds", "VX1", f"ds_read_b128 {v(VXR[1],4)}, {v(V_W2K)} offset:{L_VX+par*8192+1024}")]
    w2, w3, w4, w5 = wo_ld(2), wo_ld(3), wo_ld(4), wo_ld(5)
    vb = [[smf(V_AV, T, t, WV)] for t in range(6, 8) for T in range(2)]
    vp = post(V_AV, V_X, V_X + 1)
    e0, e1, e2, e3 = pexp(0), pexp(1), pexp(2), pexp(3)
    pm = [f"v_mul_f32 v{SM+2}, {s(S_SCALE)}, v{SM+2}", f"v_mul_f32 v{SM+3}, {s(S_SCALE)}, v{SM+3}",
          f"v_exp_f32 v{SM}, v{SM+2}", f"v_exp_f32 v{SM+1}, v{SM+3}",
          f"v_cvt_pk_bf16_f32 v{V_PA}, v{SM}, v{SM+1}", f"v_cvt_pk_bf16_f32 v{V_PB+1}, v{SM}, v{SM+1}"]
    ck = [f"v_max3_f32 v{m}, |v{xs[0]}|, |v{xs[1]}|, |v{xs[2]}|", f"v_max3_f32 v{m}, v{m}, |v{xs[3]}|, v{SM+2}",
          f"v_max3_f32 v{t1}, |v{xs[4]}|, |v{xs[5]}|, v{SM+3}", f"v_max3_f32 v{m}, v{m}, |v{xs[6]}|, |v{xs[7]}|",
          f"v_max_f32 v{m}, v{m}, v{t1}", f"v_cmp_lt_f32 vcc, 0x42700000, v{m}"]
    main = sxm(0) + smm + sxm(1) + vb
    fills = {0: [w4[0]], 1: [w4[1]], 3: [vx[0], vx[1]], 7: ["s_nop 1", e0[0]], 8: [e0[1]], 9: [w2[0], e0[2], e1[0]], 10: [w2[1], e1[1]], 11: [w3[0], w3[1], e1[2], ck[0]],
             12: pm[0:2], 13: pm[2:4] + [ck[1]], 14: pm[4:6], 15: w5}
    run(main, fills)
    stamp(4)
    for x in ck[2:] + e2 + e3: emit(x)
    A(f"s_and_b64 vcc, vcc, {s(S_MK3,2)}")
    A(f"s_cbranch_scc1 L_rec_fb_{sfx}")
    A.label(f"L_rec_fbret_{sfx}")
    emit(("w", "VX1"))
    for x in vp[:2]: A(x)
    A(f"v_mfma_f32_16x16x32_bf16 {v(LA,4)}, {v(V_ONES,4)}, {v(PX,4)}, 0")
    A(vp[2])
    A(f"v_mfma_f32_16x16x32_bf16 {v(OA,4)}, {v(VXR[0],4)}, {v(PX,4)}, 0")
    A(vp[3])
    A(f"v_mfma_f32_16x16x32_bf16 {v(OA+4,4)}, {v(VXR[1],4)}, {v(PX,4)}, 0")
    for x in vp[4:]: A(x)
    A(f"v_mfma_f32_16x16x16_bf16 {v(LA,4)}, {v(V_ONES,2)}, {v(V_PA,2)}, {v(LA,4)}")
    emit(("ds", "XW", f"ds_write2_b32 {v(V_XW)}, v{V_X}, v{V_X+1} offset0:0 offset1:64"))
    A(f"v_mfma_f32_16x16x16_bf16 {v(OA,4)}, {v(V_X,2)}, {v(V_PA,2)}, {v(OA,4)}")
    A(f"v_mfma_f32_16x16x16_bf16 {v(OA+4,4)}, {v(V_X,2)}, {v(V_PB,2)}, {v(OA+4,4)}")
    for k in range(4): A(f"v_mov_b64 {v(96+2*k,2)}, 0")
    A(f"v_rcp_f32 v{t1}, v{LA}")
    for x in wo_ld(6): emit(x)
    for r in range(4): A(f"v_mul_f32 v{OA+r}, v{OA+r}, v{t1}")
    for k in range(2): A(f"v_cvt_pk_bf16_f32 v{V_T+2+k}, v{OA+2*k}, v{OA+2*k+1}")
    emit(("ds", "OW0", f"ds_write_b64 {v(V_OW)}, {v(V_T+2,2)}"))
    for r in range(4, 8): A(f"v_mul_f32 v{OA+r}, v{OA+r}, v{t1}")
    for k in range(2): A(f"v_cvt_pk_bf16_f32 v{V_T+k}, v{OA+4+2*k}, v{OA+5+2*k}")
    emit(("ds", "OW", f"ds_write_b64 {v(V_OW)}, {v(V_T,2)} offset:512"))
    A(f"v_mfma_f32_32x32x8_bf16 {v(V_ACC,16)}, {v(V_ZZ,2)}, {v(V_ZZ,2)}, 0")
    for k in range(4): A(f"v_mov_b64 {v(104+2*k,2)}, 0")
    emit(("w", "OW"))
    A("s_barrier")
    stamp(5)
    OF = 120
    emit(("ds", "OF0", f"ds_read_b128 {v(OF,4)}, {v(V_L16)} offset:{L_O}"))
    emit(("ds", "OF1", f"ds_read_b128 {v(OF+4,4)}, {v(V_L16)} offset:{L_O+1024}"))
    def post_tile(T):
        b = V_ACC + 4 * T
        d = (V_T if T < 4 else V_ACC) + (T & 3)
        L = [f"v_add_f32 v{b}, v{b}, v{b+2}", f"v_add_f32 v{b+1}, v{b+1}, v{b+3}", f"v_cvt_pk_bf16_f32 v{d}, v{b}, v{b+1}"]
        if (T & 3) == 0: L.append(f"v_and_or_b32 v{d}, v{d}, -2, {phase}")
        return L
    for f in range(16):
        T, tp = f >> 1, f & 1
        if f < 2: emit(("w", f"OF{f}"))
        else: emit(("w", f"W{f}"))
        A(f"v_smfmac_f32_16x16x64_bf16 {v(V_ACC+4*T,4)}, {v(OF+4*tp,4)}, {v(wslot(f),8)}, {idx}")
        if f >= 2 and f + NS < 16:
            for x in wo_ld(f + NS): emit(x)
        if tp == 1 and T >= 2:
            for x in post_tile(T - 2): A(x)
            if T - 2 == 3:
                A(f"global_store_dwordx4 {v(V_PST)}, {v(V_T,4)}, {s(S_PST+4*par,2)}{mode}")
    for T in (6, 7):
        for x in post_tile(T): A(x)
    A(f"global_store_dwordx4 {v(V_PST)}, {v(V_ACC,4)}, {s(S_PST+4*par+2,2)}{mode}")
    if "ack" in EXP:
        stamp(5)
        A("s_waitcnt vmcnt(0)")
    stamp(6)
    RA, SEL, D = 44, 60, 64
    kv_read(A, KP)
    for k in range(4): A(f"v_cndmask_b32 v{SEL+k}, 0, {v(V_SELV)}, {s(S_SELM+2*k,2)}")
    zero_acc(A)
    A(f"v_mov_b32 v{KP+4}, -1")
    if k4 == 1:
        A(f"""s_add_u32 {s(S_FLO)}, {s(S_FLO)}, 4096
        s_lshl_b32 {s(S_T0)}, {s(S_H)}, 7
        s_add_u32 {s(S_T0)}, {s(S_T0)}, {15*4096}
        s_min_u32 {s(S_FLO)}, {s(S_FLO)}, {s(S_T0)}
        v_mov_b32 v{KP+7}, {s(S_FLO)}""")
    A("s_waitcnt lgkmcnt(0)")
    A(f"v_min_u32 v{KP}, -2, v{KP}")
    def delay(n):
        for _ in range(n): A("s_nop 3")
    lz = A.uid("Lz")
    A(f"s_cmp_lt_u32 {s(S_W)}, 2")
    A(f"s_cbranch_scc1 {lz}")
    delay(PRM["dB"])
    A.label(lz)
    delay(PRM["dA"])
    RB = 52
    oolq = []
    def pretry(name, ret, ld, inval, R0, R1, R2, fin):
        def blk():
            INV = s(S_SRC, 2)
            A.label(name)
            A(f"s_mov_b64 {INV}, vcc")
            A(f"s_mov_b64 exec, vcc")
            ld(R1)
            for _ in range(PRM["dr"]): A("s_nop 3")
            ld(R2)
            A.label(name + "_l")
            for R in (R1, R2):
                if stamps and "rt" not in EXP: A("s_add_u32 s99, s99, 1")
                A("s_waitcnt vmcnt(2)")
                inval(R)
                A(f"s_andn2_b64 exec, {INV}, vcc")
                for k in range(4): A(f"v_mov_b64 {v(R0+2*k,2)}, {v(R+2*k,2)}")
                A(f"s_and_b64 {INV}, {INV}, vcc")
                A(f"s_cbranch_scc0 {name}_d")
                A(f"s_mov_b64 exec, {INV}")
                ld(R)
            spin_guard(A)
            A(f"s_branch {name}_l")
            A.label(name + "_d")
            A("s_mov_b64 exec, -1")
            fin()
            A(f"s_branch {ret}")
        oolq.append(blk)
    def ld_in(R):
        A(f"global_load_dwordx4 {v(R,4)}, {v(V_INL)}, {s(INB(par),2)} {ldf}")
        A(f"global_load_dwordx4 {v(R+4,4)}, {v(V_INL)}, {s(INB(par),2)} offset:{1024 if 'in64' in EXP else 2048} {ldf}")
    def red_chk(R, n_after):
        A(f"s_waitcnt vmcnt({n_after+1})")
        A(f"v_mfma_f32_16x16x32_bf16 {v(D,4)}, {v(R,4)}, {v(SEL,4)}, 0")
        A(f"s_waitcnt vmcnt({n_after})")
        A(f"v_mfma_f32_16x16x32_bf16 {v(D,4)}, {v(R+4,4)}, {v(SEL,4)}, {v(D,4)}")
        A(f"v_and_b32 v68, v{R}, v{R+4}" if phase else f"v_or_b32 v68, v{R}, v{R+4}")
        A("v_and_b32 v68, 1, v68")
        A(f"v_cmp_ne_u32 vcc, {phase}, v68")
    A(f"s_mov_b32 {s(S_SPIN)}, 0")
    if PRM["dd"]:
        ld_in(RA)
        delay(PRM["dd"])
        A.label(f"L_p2_{sfx}")
        ld_in(RB)
        if stamps and "rt" not in EXP: A("s_add_u32 s99, s99, 1")
        red_chk(RA, 2)
        A(f"s_cbranch_vccz L_p2d_{sfx}")
        ld_in(RA)
        spin_guard(A)
        if stamps and "rt" not in EXP: A("s_add_u32 s99, s99, 1")
        red_chk(RB, 2)
        A(f"s_cbranch_vccnz L_p2_{sfx}")
        A.label(f"L_p2d_{sfx}")
    else:
        if "mr" in EXP: A("s_mov_b64 vcc, -1")
        A.label(f"L_p2_{sfx}")
        if stamps and "rt" not in EXP: A("s_add_u32 s99, s99, 1")
        if "mr" in EXP: A("s_mov_b64 exec, vcc")
        ld_in(RA)
        if "mr" in EXP: A("s_mov_b64 exec, -1")
        spin_guard(A)
        red_chk(RA, 0)
        if "pr" in EXP:
            A(f"s_cbranch_vccnz L_p2r_{sfx}")
            A.label(f"L_p2ok_{sfx}")
            def inv2(R):
                A(f"v_and_b32 v68, v{R}, v{R+4}" if phase else f"v_or_b32 v68, v{R}, v{R+4}")
                A("v_and_b32 v68, 1, v68")
                A(f"v_cmp_ne_u32 vcc, {phase}, v68")
            def fin2():
                A("s_nop 1")
                A(f"v_mfma_f32_16x16x32_bf16 {v(D,4)}, {v(RA,4)}, {v(SEL,4)}, 0")
                A(f"v_mfma_f32_16x16x32_bf16 {v(D,4)}, {v(RA+4,4)}, {v(SEL,4)}, {v(D,4)}")
                A("s_nop 6")
            pretry(f"L_p2r_{sfx}", f"L_p2ok_{sfx}", ld_in, inv2, RA, 52, 120, fin2)
        else:
            A(f"s_cbranch_vccnz L_p2_{sfx}")
    stamp(7)
    A(f"""v_permlane32_swap_b32 v{D}, v{D+2}
    v_permlane32_swap_b32 v{D+1}, v{D+3}
    v_add_f32 v{D}, v{D}, v{D+2}
    v_add_f32 v{D+1}, v{D+1}, v{D+3}
    v_mov_b32 v{D+2}, v{D}
    v_mov_b32 v{D+3}, v{D+1}
    v_permlane16_swap_b32 v{D}, v{D+2}
    v_permlane16_swap_b32 v{D+1}, v{D+3}
    v_add_f32 v{D}, v{D}, v{D+2}
    v_add_f32 v{D+1}, v{D+1}, v{D+3}
    v_cvt_pk_bf16_f32 v{D}, v{D}, v{D+1}
    v_min_u32 v{D}, -2, v{D}""")
    if "mex" in EXP: A(f"s_mov_b64 exec, {s(S_MEX,2)}")
    A(f"global_store_dword {v(V_MST)}, v{D}, {s(S_MEMX+2*k4,2)}{mode}")
    if "mex" in EXP: A("s_mov_b64 exec, -1")
    if "ack2" in EXP:
        stamp(7)
        A("s_waitcnt vmcnt(0)")
    stamp(8)
    if k4 == 2:
        A(f"v_readfirstlane_b32 {s(S_FLAG)}, {v(V_FLAG)}")
    for P in range(1, 4): A(f"v_xor_b32 v{V_T+P-1}, {P*2048}, {v(V_W2K)}")
    lz = A.uid("Lz")
    A(f"s_cmp_ge_u32 {s(S_W)}, 2")
    A(f"s_cbranch_scc1 {lz}")
    delay(PRM["dB"])
    A.label(lz)
    delay(PRM["dGA"])
    mx = s(S_MEMG + 2 * k4, 2)
    def ld_g(R):
        A(f"global_load_dwordx4 {v(R,4)}, {v(V_W2K)}, {mx} {ldf}")
        A(f"global_load_dwordx4 {v(R+4,4)}, {v(V_W2K)}, {mx} offset:1024 {ldf}")
    def g_chk(R, n_after):
        A(f"""s_waitcnt vmcnt({n_after+1})
        ds_write_b128 {v(V_W2K)}, {v(R,4)} offset:{L_MEM}
        v_max3_u32 v68, v{R}, v{R+1}, v{R+2}
        s_waitcnt vmcnt({n_after})
        ds_write_b128 {v(V_W2K)}, {v(R+4,4)} offset:{L_MEM+1024}
        v_max3_u32 v69, v{R+3}, v{R+4}, v{R+5}
        v_max3_u32 v68, v68, v{R+6}, v{R+7}
        v_max_u32 v68, v68, v69
        v_cmp_eq_u32 vcc, -1, v68""")
    A(f"s_mov_b32 {s(S_SPIN)}, 0")
    if PRM["dd3"]:
        RC = 120
        ld_g(RA)
        delay(PRM["dd3"])
        A.label(f"L_p3_{sfx}")
        ld_g(RC)
        if stamps and "rt" not in EXP: A("s_add_u32 s99, s99, 1")
        g_chk(RA, 2)
        A(f"s_cbranch_vccz L_p3d_{sfx}")
        spin_guard(A)
        if stamps and "rt" not in EXP: A("s_add_u32 s99, s99, 1")
        g_chk(RC, 0)
        A(f"s_cbranch_vccz L_p3c_{sfx}")
        ld_g(RA)
        delay(PRM["dd3"])
        A(f"s_branch L_p3_{sfx}")
        A.label(f"L_p3c_{sfx}")
        for k in range(4): A(f"v_mov_b64 {v(RA+2*k,2)}, {v(RC+2*k,2)}")
        A.label(f"L_p3d_{sfx}")
    else:
        if PRM["dEL"]:
            A(f"global_load_dwordx4 {v(RA,4)}, {v(V_W2K)}, {mx} {ldf}")
            delay(PRM["dEL"])
            A(f"global_load_dwordx4 {v(RA+4,4)}, {v(V_W2K)}, {mx} offset:1024 {ldf}")
            A(f"s_branch L_p3b_{sfx}")
        if "mr" in EXP: A("s_mov_b64 vcc, -1")
        A.label(f"L_p3_{sfx}")
        if "mr" in EXP: A("s_mov_b64 exec, vcc")
        ld_g(RA)
        if "mr" in EXP: A("s_mov_b64 exec, -1")
        spin_guard(A)
        A.label(f"L_p3b_{sfx}")
        if stamps and "rt" not in EXP: A("s_add_u32 s99, s99, 1")
        g_chk(RA, 0)
        if "pr" in EXP:
            A(f"s_cbranch_vccnz L_p3r_{sfx}")
            A.label(f"L_p3ok_{sfx}")
            def inv3(R):
                A(f"""v_max3_u32 v68, v{R}, v{R+1}, v{R+2}
                v_max3_u32 v69, v{R+3}, v{R+4}, v{R+5}
                v_max3_u32 v68, v68, v{R+6}, v{R+7}
                v_max_u32 v68, v68, v69
                v_cmp_eq_u32 vcc, -1, v68""")
            def fin3():
                A(f"ds_write_b128 {v(V_W2K)}, {v(RA,4)} offset:{L_MEM}")
                A(f"ds_write_b128 {v(V_W2K)}, {v(RA+4,4)} offset:{L_MEM+1024}")
            pretry(f"L_p3r_{sfx}", f"L_p3ok_{sfx}", ld_g, inv3, RA, 104, 120, fin3)
        else:
            A(f"s_cbranch_vccnz L_p3_{sfx}")
    stamp(9)
    if dbg:
        A(f"s_add_u32 {s(S_T0)}, {s(S_STEP)}, 1")
        A(f"s_lshl_b32 {s(S_T0)}, {s(S_T0)}, 13")
        A(f"s_add_u32 {s(S_T0)}, {s(S_T0)}, {WS_DBG}")
        add64(A, S_SRC, S_WS, s(S_T0))
        for R_, o in ((RA, 0), (RA + 4, 1024)):
            A(f"global_store_dwordx4 {v(V_W2K)}, {v(R_,4)}, {s(S_SRC,2)} offset:{o}")
    if k4 == 2:
        A(f"s_cmp_eq_u32 {s(S_FLAG)}, 1")
        A(f"s_cbranch_scc1 L_rec_fok_{sfx}")
        if MINI:
            A(f"s_cmp_eq_u32 {s(S_STEP)}, 2")
            A(f"s_cbranch_scc1 L_rec_fok_{sfx}")
        flag_wait(A, f"L_rec_fw_{sfx}", 68)
        A.label(f"L_rec_fok_{sfx}")
    if stamps and "rt" in EXP:
        A("s_waitcnt lgkmcnt(0)")
        if k4 == 0:
            A(f"s_cmp_eq_u32 {s(S_STEP)}, 40")
            A(f"s_cbranch_scc0 L_rec_join_{sfx}")
            for k in range(NST): A(f"s_mov_b32 s{90+k}, s{70+2*k}")
    elif stamps:
        A("s_waitcnt lgkmcnt(0)")
        for k in range(NST - 1):
            A(f"s_sub_u32 s68, s{72+2*k}, s{70+2*k}")
            A(f"s_add_u32 s{90+k}, s{90+k}, s68")
        if k4 == 3:
            A(f"s_cmp_eq_u32 {s(S_STEP)}, 7")
            A(f"s_cbranch_scc0 L_rec_join_{sfx}")
            for k in range(NST): A(f"s_mov_b32 s{90+k}, 0")
    A.label(f"L_rec_join_{sfx}")
    A(f"s_add_u32 {s(S_STEP)}, {s(S_STEP)}, 1")
    def ool():
        for b in oolq: b()
        A.label(f"L_rec_fb_{sfx}")
        A(f"""v_max3_f32 v{m}, v{xs[0]}, v{xs[1]}, v{xs[2]}
        v_max3_f32 v{t1}, v{xs[3]}, v{xs[4]}, v{xs[5]}
        v_max3_f32 v{m}, v{m}, v{xs[6]}, v{xs[7]}
        v_max3_f32 v{m}, v{m}, v{SM+2}, v{SM+3}
        v_max_f32 v{m}, v{m}, v{t1}
        v_mov_b32 v{t1}, v{m}
        v_permlane16_swap_b32 v{m}, v{t1}
        v_max_f32 v{m}, v{m}, v{t1}
        v_mov_b32 v{t1}, v{m}
        v_permlane32_swap_b32 v{m}, v{t1}
        v_max_f32 v{m}, v{m}, v{t1}""")
        for r in xs + [SM + 2, SM + 3]: A(f"v_sub_f32 v{r}, v{r}, v{m}")
        for x in e0 + e1 + e2 + e3 + pm[2:]: A(x)
        A("s_nop 1")
        A(f"s_branch L_rec_fbret_{sfx}")
    return ool

def gen_loop(A, dbg=False, timing=False, stamps=False, n_init=0):
    gen_preloop(A, timing, stamps, n_init)
    A(f"s_cmp_eq_u32 {s(S_MODE)}, 0")
    A("s_cbranch_scc0 L_rec_step_s0")
    for mode in (FASTST, " sc1"):
        ools = [gen_step(A, k4, mode, dbg, stamps) for k4 in range(4)]
        A(f"s_branch L_rec_step_{'s' if mode == ' sc1' else 'f'}0")
        for o in ools: o()
    A.label("L_rec_last")
    M = lambda t: v(V_M + 4 * t, 4)
    smf = lambda acc, T, t, W: f"v_smfmac_f32_16x16x64_bf16 {v(acc+4*T,4)}, {M(t)}, {W(T,t)}, {v(V_IDX)}"
    for t in range(2):
        for T in range(2): A(smf(V_AK, T, t, WK))
    A("s_waitcnt lgkmcnt(0)")
    A("s_barrier")
    for t in range(2, 8): A(f"ds_read_b128 {M(t)}, v{V_T+(t>>1)-1} offset:{L_MEM+(t&1)*1024}")
    A(f"global_store_dwordx4 {v(V_KVO)}, {v(112,4)}, {s(S_KVB,2)} sc1")
    for t in range(2):
        for T in range(2): A(smf(V_AV, T, t, WV))
    A(f"v_add_u32 {v(V_KVO)}, 0x20000, {v(V_KVO)}")
    for t in range(2, 8):
        A(f"s_waitcnt lgkmcnt({7-t})")
        for T in range(2): A(smf(V_AK, T, t, WK))
    def post(acc, d0, d1):
        return [f"v_add_f32 v{acc}, v{acc}, v{acc+2}", f"v_add_f32 v{acc+1}, v{acc+1}, v{acc+3}",
                f"v_add_f32 v{acc+4}, v{acc+4}, v{acc+6}", f"v_add_f32 v{acc+5}, v{acc+5}, v{acc+7}",
                f"v_cvt_pk_bf16_f32 v{d0}, v{acc}, v{acc+1}", f"v_cvt_pk_bf16_f32 v{d1}, v{acc+4}, v{acc+5}"]
    for t in range(2, 8):
        for T in range(2): A(smf(V_AV, T, t, WV))
        if t == 6:
            for x in post(V_AK, V_T + 2, V_T + 3): A(x)
            A(f"ds_write2_b32 {v(V_QKW)}, v{V_T+2}, v{V_T+3} offset0:1 offset1:129")
    for x in post(V_AV, V_X, V_X + 1): A(x)
    A(f"ds_write2_b32 {v(V_XW)}, v{V_X}, v{V_X+1} offset0:0 offset1:64")
    KP = 44
    kv_read(A, KP)
    A(f"""s_waitcnt lgkmcnt(0)
    v_min_u32 v{KP}, -2, v{KP}
    global_store_dwordx4 {v(V_KVO)}, {v(KP,4)}, {s(S_KVB,2)} sc1
    """)
    trace(A, 3, 56)
    if timing:
        A(f"""s_memtime s[68:69]
        s_waitcnt lgkmcnt(0)
        s_sub_u32 s68, s68, s66
        v_mov_b32 v44, s68
        s_lshl_b32 {s(S_T0)}, {s(S_H)}, 2
        s_add_u32 {s(S_T0)}, {s(S_T0)}, {WS_DBG + (3<<20)}
        v_mov_b32 v45, {s(S_T0)}
        global_store_dword v45, v44, {s(S_WS,2)}""")
    if stamps:
        A(f"""s_lshl_b32 {s(S_T0)}, {s(S_H)}, 2
        s_add_u32 {s(S_T0)}, {s(S_T0)}, {s(S_W)}
        s_lshl_b32 {s(S_T0)}, {s(S_T0)}, 6
        s_add_u32 {s(S_T0)}, {s(S_T0)}, {WS_DBG + (1<<20)}""")
        add64(A, S_SRC, S_WS, s(S_T0))
        for k in range(NST):
            A(f"v_mov_b32 v46, s{90+k}")
            A(f"global_store_dword {v(V_ZZ)}, v46, {s(S_SRC,2)} offset:{4*k}")
    A("s_branch L_end")

HEADER = """.amdgcn_target "amdgcn-amd-amdhsa--gfx950"
.text
.globl {name}
.p2align 8
.type {name},@function
{name}:
"""
FOOTER = """.section .rodata,"a"
.p2align 6
.amdhsa_kernel {name}
  .amdhsa_next_free_vgpr 512
  .amdhsa_next_free_sgpr 102
  .amdhsa_accum_offset 256
  .amdhsa_group_segment_fixed_size 0
  .amdhsa_kernarg_size 128
  .amdhsa_user_sgpr_count 2
  .amdhsa_user_sgpr_kernarg_segment_ptr 1
  .amdhsa_system_sgpr_workgroup_id_x 1
.end_amdhsa_kernel
"""

def gen_standalone(dbg=True, timing=True, mode=0, stamps=False):
    A = Asm(); TB = Tables()
    A(f"""
    s_cmp_ge_u32 s2, 256
    s_cbranch_scc1 L_end
    s_load_dwordx2 {s(S_MEM0,2)}, s[0:1], 8
    s_load_dwordx4 {s(S_WQ,4)}, s[0:1], 16
    s_load_dwordx4 {s(S_WV,4)}, s[0:1], 32
    s_load_dwordx2 {s(S_DBG,2)}, s[0:1], 112
    s_load_dwordx2 {s(S_WS,2)}, s[0:1], 120
    s_getreg_b32 s3, hwreg(HW_REG_XCC_ID)
    s_and_b32 s3, s3, 7
    s_waitcnt lgkmcnt(0)
    s_cmp_eq_u32 s3, 0
    s_cbranch_scc0 L_end
    v_mov_b32 v2, 0
    v_mov_b32 v3, 1
    v_cmp_eq_u32 vcc, 0, v0
    s_and_saveexec_b64 s[4:5], vcc
    s_cbranch_execz L_tk
    global_atomic_add v4, v2, v3, {s(S_DBG,2)} sc0
    s_waitcnt vmcnt(0)
    ds_write_b32 v2, v4
    s_waitcnt lgkmcnt(0)
    L_tk:
    s_mov_b64 exec, -1
    s_barrier
    ds_read_b32 v4, v2
    s_waitcnt lgkmcnt(0)
    v_readfirstlane_b32 {s(S_H)}, v4
    s_barrier
    s_cmp_ge_u32 {s(S_H)}, 32
    s_cbranch_scc1 L_end
    s_mov_b32 {s(S_MODE)}, {mode}
    """)
    gen_prologue(A, TB)
    gen_loop(A, dbg, timing, stamps)
    A.label("L_end")
    A("s_waitcnt vmcnt(0)")
    A("s_endpgm")
    name = "rec_kernel"
    return f"; @launch grid=(256,1,1) block=(256,1,1) lds={LDS_TOTAL}\n" + HEADER.format(name=name) + A.text() + TB.text() + FOOTER.format(name=name)

if __name__ == "__main__":
    open("rec.s", "w").write(gen_standalone())
```

```python
from asmlib import *
from layout import *
import math, struct

def f32bits(x): return struct.unpack("<I", struct.pack("<f", x))[0]

S_MEM0, S_WQ, S_WK, S_WV, S_WO, S_WS, S_DBG = 6, 8, 10, 12, 14, 16, 18
S_H, S_W, S_STEP, S_MODE = 20, 21, 22, 23
S_SCALE, S_SEL10, S_SEL01, S_SPIN = 24, 25, 26, 27
S_PST = 28
S_MEMX = 40
S_WS4 = 48
S_KVB = 50
S_FLB = 52
S_T0, S_T1, S_T2, S_T3 = 54, 55, 56, 57
S_KXM0 = 58
S_MK3 = 60
S_SRC = 64
S_TB = 62
S_INB = 4
def INB(par): return 36 + 2 * par
S_SELM = 8
S_MEX = 48
S_MEMG = 76
S_FLO = 4
S_FLAG = 5
(V_L16, V_IDX, V_QKW, V_TR,
 V_TRW, V_OW, V_PST, V_MST,
 V_GATH, V_KVO, V_XR, V_WOR,
 V_W2K, V_XW, V_SELV, V_KXO) = range(16)
V_INL = V_GATH
V_FLAG = V_TRW
V_WO01 = 16
V_ONES = 32
V_ZZ = 36
V_PA = 38
V_PB = 40
V_X = 42
V_M = 44
V_AQ, V_AK, V_AV = 80, 88, 96
V_ACC = 80
V_F = 112
V_T = 76
V_WV = 128

def WQ(T, t): return a((T * 8 + t) * 8, 8)
def WK(T, t): return a(128 + (T * 8 + t) * 8, 8)
def WV(T, t): return v(V_WV + (T * 8 + t) * 8, 8)

def add64(A, d, b, off):
    A(f"s_add_u32 {s(d)}, {s(b)}, {off}")
    A(f"s_addc_u32 {s(d+1)}, {s(b+1)}, 0")

class Tables:
    def __init__(self): self.groups = []
    def add(self, fns, nthreads=256):
        assert len(fns) == 4
        self.groups.append([[int(f(t)) & 0xffffffff for f in fns] for t in range(nthreads)])
        return len(self.groups) - 1
    def text(self):
        out = ['.section .rodata,"a"', ".p2align 8", "L_tables:"]
        for g in self.groups:
            for row in g: out.append("  .long " + ", ".join("%#x" % x for x in row))
        return "\n".join(out) + "\n"
    def base(self, A, sreg):
        A(f"s_getpc_b64 {s(sreg,2)}")
        A(f"s_add_u32 {s(sreg)}, {s(sreg)}, L_tables@rel32@lo+4")
        A(f"s_addc_u32 {s(sreg+1)}, {s(sreg+1)}, L_tables@rel32@hi+12")
    def load(self, A, g, vdst, vtid16, sreg, stmp):
        add64(A, stmp, sreg, g * 4096)
        A(f"global_load_dwordx4 {v(vdst,4)}, {v(vtid16)}, {s(stmp,2)}")

def code_prefetch(A, label, shift, vdst, vt):
    l = A.uid("Lpc")
    A(f"s_getpc_b64 {s(S_SRC,2)}")
    A.label(l)
    A(f"s_add_u32 {s(S_SRC)}, {s(S_SRC)}, {label}-{l}")
    A(f"s_addc_u32 {s(S_SRC+1)}, {s(S_SRC+1)}, 0")
    A(f"v_lshlrev_b32 v{vt}, 6, v0")
    A(f"global_load_dword v{vdst}, v{vt}, {s(S_SRC,2)}")

def dec(tid):
    w, l = tid >> 6, tid & 63
    return w, l, l & 15, l >> 4

def gen_prologue(A, TB):
    A.comment("=== recurrence prologue; s20 = head ===")
    def f_qkw(tid):
        w, l, n, g = dec(tid); return L_QK + (32 * w + n) * 32 + g * 8
    def f_tr(tid):
        w, l, n, g = dec(tid); r, c = n >> 2, n & 3
        return L_QK + es(0, g, r) * 32 + c * 8
    def f_ow(tid):
        w, l, n, g = dec(tid)
        if n & 2: return L_MEM + l * 8
        return L_O + (w & 1) * 1024 + ((g >> 1) * 16 + n + 2 * (w >> 1)) * 16 + (g & 1) * 8
    def f_pst(tid):
        w, l, n, g = dec(tid)
        if "in64" in EXP: return (w * 8 + (n >> 3) * 4 + g) * 4096 + ((n >> 2) & 1) * 2048 + (n & 3) * 16
        return (w * 8 + (n >> 3) * 4 + g) * 4096 + (n & 7) * 16
    def f_mst(tid):
        w, l, n, g = dec(tid); j, b5 = l & 7, l >> 5; c, qq = j >> 1, j & 1
        cp = ((l >> 3) & 3) % PRM["ncp"]
        return cp * (32768 + PRM["cpo"]) + (w >> 1) * 1024 + (w & 1) * 256 + (2 * (c >> 1) + qq) * 16 + ((c & 1) * 2 + b5) * 4
    def f_kvo(tid):
        return tid * 16
    def f_xr(tid):
        w, l, n, g = dec(tid); key = 2 * (n >> 2) + (n & 1)
        return L_X + (32 * w + g * 8 + key) * 16
    def f_gath(tid):
        w, l, n, g = dec(tid)
        if "in64" in EXP: return (w >> 1) * 0x20000 + (w & 1) * 2048 + l * 16
        return (w >> 1) * 0x20000 + (l >> 2) * 128 + (w & 1) * 64 + (l & 3) * 16
    def f_xw(tid):
        w, l, n, g = dec(tid); return L_X + (32 * w + n) * 16 + g * 4
    g0 = TB.add([lambda t: (t & 63) * 16, lambda t: 0xeeee if t & 2 else 0x4444, f_qkw, f_tr])
    g1 = TB.add([lambda t: f_tr(t) + (t >> 6) * 1024, f_ow, f_pst, f_mst])
    def f_kxo(tid):
        w, l, n, g = dec(tid); return (w >> 1) * WS_VX + (w & 1) * 4096 + l * 16
    g2 = TB.add([f_gath, f_kvo, f_xr, lambda t: L_WO + (t >> 6) * 28672 + (t & 63) * 16 - 4096])
    g2b = TB.add([lambda t: (t >> 6) * 2048 + (t & 63) * 16, f_xw, lambda t: 0x3f800000 if t & 1 else 0x3f80, f_kxo])
    fq = lambda d: (d & 1) | (((d >> 4) & 3) << 1)
    fo = lambda e: (e & 1) | (((e >> 2) & 1) << 1) | (((e >> 6) & 1) << 2)
    def f_dq(hi):
        def f(tid):
            w, l, n, g = dec(tid); row = 32 * w + 16 * hi + g
            return g * 8192 + ((n ^ (fq(row) << 1)) * 16)
        return f
    def f_do(odd):
        def f(tid):
            w, l, n, g = dec(tid); row = 32 * w + 4 * odd + g
            return g * 1024 + ((n ^ (fo(row) << 1)) * 16)
        return f
    g3 = TB.add([f_dq(0), f_dq(1), f_do(0), f_do(1)])
    def f_rq(T, hi):
        def f(tid):
            w, l, n, gB = dec(tid); r, c = n >> 2, n & 3
            row = 32 * (r >> 1) + 16 * (gB & 1) + 4 * (gB >> 1) + (r & 1)
            return L_STG + hi * 65536 + row * 256 + ((2 * w + T) ^ fq(row)) * 32 + 8 * c
        return f
    g4 = TB.add([f_rq(0, 0), f_rq(1, 0), f_rq(0, 1), f_rq(1, 1)])
    def f_ro(tid):
        w, l, n, gB = dec(tid); r, c = n >> 2, n & 3
        row = 64 * (r >> 1) + 8 * (gB >> 1) + 4 * (gB & 1) + (r & 1)
        return L_STG + w * 32768 + row * 256 + fo(row) * 32 + 8 * c
    def f_m0(tid):
        l, jj = tid >> 2, tid & 3
        q, half = arow(l & 15)
        return q * 1024 + dslot(0, half, l >> 4, 2 * jj) * 2
    g5 = TB.add([f_ro, f_m0, lambda t: L_MEM + t * 4, lambda t: L_KX + (t >> 6) * 6144 + (t & 63) * 16])
    VD, VR, VRO = 44, 48, 52
    A(f"""
    v_lshrrev_b32 v1, 6, v0
    v_lshlrev_b32 v76, 4, v0
    s_nop 0
    v_readfirstlane_b32 {s(S_W)}, v1
    """)
    code_prefetch(A, "L_rec_step_f0", 0, 78, 77)
    TB.base(A, S_TB)
    for g, r in [(g0, 0), (g1, 4), (g2, 8), (g2b, 12), (g3, VD), (g4, VR), (g5, VRO)]:
        TB.load(A, g, r, 76, S_TB, S_SRC)
    A(f"""v_bfe_u32 v82, v76, 8, 2
    v_bfe_u32 v83, v76, 4, 4
    v_and_b32 v84, 1, v82
    s_and_b32 {s(S_T0)}, {s(S_W)}, 1
    s_lshl_b32 {s(S_T0)}, {s(S_T0)}, 2
    v_or_b32 v84, {s(S_T0)}, v84
    v_lshlrev_b32 v84, 1, v84
    v_xor_b32 v83, v83, v84
    v_lshlrev_b32 v83, 4, v83
    v_lshl_add_u32 v80, v82, 13, v83
    v_xor_b32 v81, 64, v80""")
    mats = [S_WK, S_WQ, S_WV]
    def dma_chunk(ci):
        slot = ci % 4
        if ci < 12:
            base, c = mats[ci // 4], ci % 4
            A(f"s_lshl_b32 {s(S_T0)}, {s(S_W)}, 18")
            A(f"s_lshl_b32 {s(S_T1)}, {s(S_H)}, 8")
            A(f"s_add_u32 {s(S_T0)}, {s(S_T0)}, {s(S_T1)}")
            A(f"s_add_u32 {s(S_T0)}, {s(S_T0)}, {128*c*8192}")
            step = 4 * 8192
            vo = lambda i: 80 + (i >> 2)
        else:
            base, c = S_WO, ci - 12
            A(f"s_lshl_b32 {s(S_T0)}, {s(S_W)}, 15")
            A(f"s_lshl_b32 {s(S_T1)}, {s(S_H)}, 17")
            A(f"s_add_u32 {s(S_T0)}, {s(S_T0)}, {s(S_T1)}")
            A(f"s_add_u32 {s(S_T0)}, {s(S_T0)}, {c*256}")
            step = 4 * 1024
            vo = lambda i: VD + 2 + (i & 1)
        add64(A, S_SRC, base, s(S_T0))
        A(f"s_lshl_b32 {s(S_T2)}, {s(S_W)}, 13")
        A(f"s_add_u32 {s(S_T2)}, {s(S_T2)}, {L_STG + slot*32768}")
        for i in range(8):
            A(f"s_mov_b32 m0, {s(S_T2)}")
            A(f"s_add_u32 {s(S_T2)}, {s(S_T2)}, 1024")
            A(f"global_load_lds_dwordx4 v{vo(i)}, {s(S_SRC,2)}" + (" nt" if PRM.get("wnt", 0) else ""))
            if i < 7: add64(A, S_SRC, S_SRC, step)
    for ci in range(4): dma_chunk(ci)
    A(f"""
    s_mov_b32 {s(S_SCALE)}, {f32bits(128**-0.5 * math.log2(math.e)):#x}
    s_mov_b32 {s(S_SEL10)}, 0x00003f80
    s_mov_b32 {s(S_SEL01)}, 0x3f800000
    s_mov_b32 {s(S_MK3)}, 0x33333333
    s_mov_b32 {s(S_MK3+1)}, 0x33333333
    """)
    for r in range(V_ZZ, V_X + 2): A(f"v_mov_b32 v{r}, 0")
    for par in range(2):
        for z in range(2):
            add64(A, S_PST + 4 * par + 2 * z, S_WS, WS_INBOX + par * 0x40000 + z * 0x20000)
    for r in range(4): add64(A, S_MEMX + 2 * r, S_WS, WS_MEMX + r * 8192)
    A(f"s_mov_b32 {s(S_MEX)}, 0xff")
    A(f"s_mov_b32 {s(S_MEX+1)}, 0xff")
    add64(A, S_KVB, S_WS, WS_KV - 0x20000)
    add64(A, S_FLB, S_WS, WS_FLAGS)
    A(f"""s_and_b32 {s(S_T0)}, {s(S_W)}, 1
    s_lshr_b32 {s(S_T1)}, {s(S_W)}, 1
    s_mul_i32 {s(S_T1)}, {s(S_T1)}, {L_VX-L_KX}
    s_lshl_b32 {s(S_T2)}, {s(S_T0)}, 12
    s_add_u32 {s(S_T1)}, {s(S_T1)}, {s(S_T2)}
    s_add_u32 {s(S_KXM0)}, {s(S_T1)}, {L_KX}
    s_add_u32 {s(S_KXM0+1)}, {s(S_T1)}, {L_KX+8192}
    s_lshl_b32 {s(S_T3)}, {s(S_H)}, 12
    s_waitcnt vmcnt(32)
    v_lshrrev_b32 v56, 12, {v(V_PST)}
    v_add_u32 v56, {s(S_H)}, v56
    v_and_b32 v56, 31, v56
    v_lshl_add_u32 {v(V_PST)}, v56, {6 if 'in64' in EXP else 7}, {v(V_PST)}
    s_lshr_b32 {s(S_T0)}, {s(S_H)}, 3
    s_lshl_b32 {s(S_T0)}, {s(S_T0)}, 11
    s_bfe_u32 {s(S_T1)}, {s(S_H)}, 0x10002
    s_lshl_b32 {s(S_T1)}, {s(S_T1)}, 9
    s_add_u32 {s(S_T0)}, {s(S_T0)}, {s(S_T1)}
    s_and_b32 {s(S_T1)}, {s(S_H)}, 3
    s_lshl_b32 {s(S_T1)}, {s(S_T1)}, 6
    s_add_u32 {s(S_T0)}, {s(S_T0)}, {s(S_T1)}
    v_add_u32 {v(V_MST)}, {s(S_T0)}, {v(V_MST)}
    s_lshl_b32 {s(S_T0)}, {s(S_H)}, 12
    v_add_u32 {v(V_KVO)}, {s(S_T0)}, {v(V_KVO)}
    s_lshl_b32 {s(S_T0)}, {s(S_H)}, 13
    v_add_u32 {v(V_KXO)}, {s(S_T0)}, {v(V_KXO)}
    v_mov_b32 v56, 0
    v_mov_b32 v57, 0
    v_mov_b32 v58, 0
    v_mov_b32 v59, 0
    v_mov_b32 v60, -1
    v_add_u32 v61, {s(S_T3)}, v76
    """)
    def init_stores():
        for pz in range(4): A(f"global_store_dwordx4 v61, v[56:59], {s(S_PST+2*pz,2)} sc1")
        for r in range(4): A(f"global_store_dword {v(V_MST)}, v60, {s(S_MEMX+2*r,2)} sc1")
    def mem0_loads():
        for t in range(8): A(f"global_load_dword v{62+t}, v{VRO+1}, {s(S_MEM0,2)} offset:{128*t}")
    order = [("c", 0, 8), ("c", 1, 8), ("c", 2, 8), ("c", 3, 8)]
    def after(tag):
        k = [i for i, o in enumerate(order) if o[:2] == tag][0]
        return sum(o[2] for o in order[k + 1:])
    for ci in range(12):
        slot = ci % 4
        A(f"s_waitcnt vmcnt({after(('c', ci))})")
        A("s_barrier")
        if ci == 7:
            A(f"""s_cmp_eq_u32 {s(S_W)}, 0
            s_cbranch_scc0 L_rec_noinc
            v_mov_b32 v56, 1
            s_mov_b64 exec, 1
            global_atomic_add {v(V_ZZ)}, v56, {s(S_DBG,2)} offset:{DBG_RECINIT}
            s_mov_b64 exec, -1
            L_rec_noinc:""")
        if "ctrace" in EXP:
            A("s_add_u32 s2, s2, 256")
            trace(A, ci, 86)
            A("s_sub_u32 s2, s2, 256")
        W = [WK, WQ, WV][ci // 4]
        c = ci % 4
        lend = A.uid("Lwv")
        for wv in range(4):
            lnx = A.uid("Lwv")
            if wv < 3:
                A(f"s_cmp_eq_u32 {s(S_W)}, {wv}")
                A(f"s_cbranch_scc0 {lnx}")
            for tt in range(2):
                t = 2 * (c ^ wv) + tt
                for T in range(2):
                    wreg = W(T, t)
                    kind, lo = wreg[0], int(wreg[2:].split(":")[0])
                    for p4 in range(4):
                        off = (2 * (p4 & 1) + 8 * (p4 >> 1) + 64 * tt) * 256 + (slot & 1) * 32768
                        A(f"ds_read_b64_tr_b16 {kind}[{lo+2*p4}:{lo+2*p4+1}], v{VR + T + 2*(slot>>1)} offset:{off}")
            if wv < 3:
                A(f"s_branch {lend}")
                A.label(lnx)
        A.label(lend)
        if ci == 7:
            for t in range(8): A(f"ds_write_b32 v{VRO+2}, v{62+t} offset:{1024*t}")
        A("s_waitcnt lgkmcnt(0)")
        A("s_barrier")
        dma_chunk(ci + 4)
        order.append(("c", ci + 4, 8))
        if ci == 1:
            init_stores(); order.append(("i", 0, 8))
        if ci == 2:
            mem0_loads(); order.append(("m", 0, 8))
    for par in range(2): add64(A, INB(par), S_PST + 4 * par, s(S_T3))
    for k in range(4):
        A(f"s_mov_b32 {s(S_SELM+2*k)}, {0x03030303 << (2*k):#x}")
        A(f"s_mov_b32 {s(S_SELM+2*k+1)}, {0x03030303 << (2*k):#x}")
    A(f"s_lshl_b32 {s(S_FLO)}, {s(S_H)}, 7")
    A("""s_waitcnt vmcnt(0)
    s_barrier""")
    if "ctrace" in EXP:
        A("s_add_u32 s2, s2, 256")
        trace(A, 12, 86)
        A("s_sub_u32 s2, s2, 256")
    A(f"""v_lshrrev_b32 v56, 4, {v(V_L16)}
    v_and_b32 v56, 3, v56
    s_lshl_b32 {s(S_T0)}, {s(S_H)}, 2
    v_add_u32 v56, {s(S_T0)}, v56
    v_lshlrev_b32 v56, 7, v56
    v_add_u32 v56, {FL_MINI}, v56
    global_load_dwordx2 v[40:41], {v(V_ZZ)}, {s(S_DBG,2)} offset:{DBG_XCC0} sc1
    global_load_dword v42, {v(V_ZZ)}, {s(S_DBG,2)} offset:{DBG_INIT} sc1
    s_waitcnt vmcnt(0)
    global_load_dword v43, v56, {s(S_FLB,2)} sc1""")
    def wo_read(f, reg):
        T, tp = f >> 1, f & 1
        A(f"v_xor_b32 v{VRO+1}, {T*32}, v{VRO}")
        for p4 in range(4):
            off = (32 * tp + 16 * (p4 >> 1) + 2 * (p4 & 1)) * 256
            A(f"ds_read_b64_tr_b16 v[{reg+2*p4}:{reg+2*p4+1}], v{VRO+1} offset:{off}")
    regs = [16, 24, 32, 44] + [56 + 8 * i for i in range(9)]
    PK = VRO + 3
    for k, f in enumerate([13, 14, 15]): wo_read(f, 56 + 8 * k)
    A("s_waitcnt lgkmcnt(0)")
    for k in range(6): A(f"ds_write_b128 v{PK}, v[{56+4*k}:{59+4*k}] offset:{1024*k}")
    A("s_waitcnt lgkmcnt(0)")
    for f in range(13):
        wo_read(f, regs[f])
        if f % 3 == 2: A("s_waitcnt lgkmcnt(4)")
    A("s_waitcnt lgkmcnt(0)")
    A("s_barrier")
    for f in range(2, 13):
        A(f"ds_write_b128 {v(V_WOR)}, v[{regs[f]}:{regs[f]+3}] offset:{f*2048}")
        A(f"ds_write_b128 {v(V_WOR)}, v[{regs[f]+4}:{regs[f]+7}] offset:{f*2048+1024}")
        if f % 4 == 3: A("s_waitcnt lgkmcnt(0)")
    A("s_waitcnt lgkmcnt(0)")
    for k in range(6): A(f"ds_read_b128 v[{56+4*k}:{59+4*k}], v{PK} offset:{1024*k}")
    A("s_waitcnt lgkmcnt(0)")
    for k in range(6): A(f"ds_write_b128 {v(V_WOR)}, v[{56+4*k}:{59+4*k}] offset:{13*2048+1024*k}")
    A(f"""s_waitcnt vmcnt(0)
    v_readfirstlane_b32 s70, v40
    v_readfirstlane_b32 s71, v41
    v_readfirstlane_b32 s72, v42
    v_cmp_ne_u32 s[74:75], 1, v43""")
    for r in range(4): A(f"v_mov_b32 v{V_ONES+r}, 0x3f803f80")
    for r in range(V_ZZ, V_X + 2): A(f"v_mov_b32 v{r}, 0")
    A("""s_waitcnt lgkmcnt(0)
    s_barrier""")

def spin_guard(A):
    A(f"s_add_u32 {s(S_SPIN)}, {s(S_SPIN)}, 1")
    A(f"s_cmp_gt_u32 {s(S_SPIN)}, 0x400000")
    A("s_cbranch_scc1 L_end")

NST = 10
TRACE = False
MINI = True
FASTST = ""
FASTLD = "sc1"
def trace(A, tid_, vt):
    if not TRACE: return
    A("s_memrealtime s[100:101]")
    A("s_waitcnt lgkmcnt(0)")
    A(f"v_mov_b32 v{vt+1}, s100")
    A("s_lshl_b32 s100, s2, 4")
    A(f"s_add_u32 s100, s100, {tid_}")
    A("s_lshl_b32 s100, s100, 2")
    A(f"s_add_u32 s100, s100, {WS_DBG + (2<<20)}")
    A(f"v_mov_b32 v{vt}, s100")
    A(f"global_store_dword v{vt}, v{vt+1}, {s(S_WS,2)}")
EXP = {"in64"}
PRM = dict(dA=3, dB=10, dGA=5, dGB=9, ne=2, bq=6, dd=0, dd3=0, dEL=0, ncp=1, cpo=0, dr=5)
def zero_acc(A):
    A(f"v_mfma_f32_32x32x8_bf16 {v(V_ACC,16)}, {v(V_ZZ,2)}, {v(V_ZZ,2)}, 0")
    A(f"v_mfma_f32_32x32x8_bf16 {v(V_ACC+16,16)}, {v(V_ZZ,2)}, {v(V_ZZ,2)}, 0")

def dma4(par):
    return [f"s_mov_b32 m0, {s(S_KXM0+par)}"] + [f"global_load_lds_dwordx4 {v(V_KXO)}, {s(S_WS,2)} offset:{1024*i} sc1" for i in range(4)] + [f"v_add_u32 {v(V_KXO)}, 0x40000, {v(V_KXO)}"]

def kv_read(A, KP):
    A(f"s_lshl_b32 {s(S_T0)}, {s(S_W)}, 10")
    A(f"v_add_u32 v{KP+4}, {s(S_T0)}, {v(V_TR)}")
    A(f"ds_read_b64_tr_b16 v[{KP}:{KP+1}], v{KP+4}")
    A(f"ds_read_b64_tr_b16 v[{KP+2}:{KP+3}], v{KP+4} offset:256")
    A(f"s_mov_b64 exec, {s(S_MK3,2)}")
    A(f"ds_read_b128 {v(KP,4)}, {v(V_XR)}")
    A("s_mov_b64 exec, -1")

def flag_wait(A, name, vt):
    A(f"s_mov_b32 {s(S_SPIN)}, 0")
    A(f"v_mov_b32 v{vt}, {s(S_FLO)}")
    A.label(name)
    A(f"global_load_dword v{vt+1}, v{vt}, {s(S_FLB,2)} sc1")
    spin_guard(A)
    A(f"""s_waitcnt vmcnt(0)
    v_readfirstlane_b32 {s(S_T0)}, v{vt+1}
    s_cmp_eq_u32 {s(S_T0)}, 1
    s_cbranch_scc0 {name}""")

def load_counters(A, vt, sdst):
    A(f"""v_mbcnt_lo_u32_b32 v{vt}, -1, 0
    v_mbcnt_hi_u32_b32 v{vt}, -1, v{vt}
    v_and_b32 v{vt}, 7, v{vt}
    v_lshlrev_b32 v{vt}, 2, v{vt}
    v_mov_b32 v{vt+1}, {DBG_XCC0}
    v_cmp_eq_u32 vcc, 0, v{vt}
    v_cndmask_b32 v{vt}, v{vt}, v{vt+1}, vcc
    global_load_dword v{vt+1}, v{vt}, {s(S_DBG,2)} sc1
    s_waitcnt vmcnt(0)""")
    for k in range(8): A(f"v_readlane_b32 {s(sdst+k)}, v{vt+1}, {k}")
    A(f"s_add_u32 {s(S_T0)}, {s(sdst)}, {s(sdst+1)}")
    for k in range(2, 8): A(f"s_add_u32 {s(S_T0)}, {s(S_T0)}, {s(sdst+k)}")

FORCE_MODE = None
def decide_mode(A):
    if FORCE_MODE is not None:
        A(f"s_mov_b32 {s(S_MODE)}, {FORCE_MODE}")
        return
    A(f"s_mov_b32 {s(S_SPIN)}, 0")
    A.label("L_rec_md")
    spin_guard(A)
    load_counters(A, 56, 70)
    A(f"""s_mov_b32 {s(S_MODE)}, 0
    s_cmp_ge_u32 s70, 32
    s_cbranch_scc1 L_rec_mdok
    s_mov_b32 {s(S_MODE)}, 1
    s_cmp_ge_u32 {s(S_T0)}, 256
    s_cbranch_scc0 L_rec_md""")
    A.label("L_rec_mdok")

def gen_preloop(A, timing, stamps, n_init=0):
    A.comment("pre-loop")
    trace(A, 1, 56)
    if n_init and FORCE_MODE is None:
        A(f"""s_mov_b32 {s(S_MODE)}, 0
        s_min_u32 s70, s70, s71
        s_cmp_lt_u32 s70, 32
        s_cbranch_scc1 L_rec_slowchk
        s_cmp_lt_u32 s72, {n_init}
        s_cbranch_scc1 L_rec_slowchk
        s_cmp_lg_u64 s[74:75], 0
        s_cbranch_scc1 L_rec_slowchk""")
        for x in dma4(0): A(x)
        A("s_waitcnt vmcnt(0)")
        A("s_branch L_rec_go")
        A.label("L_rec_slowchk")
    if n_init:
        decide_mode(A)
        A(f"s_mov_b32 {s(S_SPIN)}, 0")
        A.label("L_rec_gi")
        A(f"global_load_dword v56, {v(V_ZZ)}, {s(S_DBG,2)} offset:{DBG_INIT} sc1")
        spin_guard(A)
        A(f"""s_waitcnt vmcnt(0)
        v_readfirstlane_b32 {s(S_T0)}, v56
        s_cmp_ge_u32 {s(S_T0)}, {n_init}
        s_cbranch_scc0 L_rec_gi""")
    if n_init:
        A(f"""v_and_b32 v56, 3, {v(V_INL)}
        v_lshrrev_b32 v56, 4, {v(V_L16)}
        v_and_b32 v56, 3, v56
        s_lshl_b32 {s(S_T0)}, {s(S_H)}, 2
        v_add_u32 v56, {s(S_T0)}, v56
        v_lshlrev_b32 v56, 7, v56
        v_add_u32 v56, {FL_MINI}, v56
        s_mov_b32 {s(S_SPIN)}, 0""")
        A.label("L_rec_f0")
        A(f"global_load_dword v57, v56, {s(S_FLB,2)} sc1")
        spin_guard(A)
        A(f"""s_waitcnt vmcnt(0)
        v_cmp_ne_u32 vcc, 1, v57
        s_cbranch_vccnz L_rec_f0""")
    else:
        flag_wait(A, "L_rec_f0", 56)
    for x in dma4(0): A(x)
    A.label("L_rec_i0")
    A(f"global_load_dword v56, {v(V_ZZ)}, {s(S_DBG,2)} offset:{DBG_RECINIT} sc1")
    spin_guard(A)
    A(f"""s_waitcnt vmcnt(0)
    v_readfirstlane_b32 {s(S_T0)}, v56
    s_cmp_ge_u32 {s(S_T0)}, 32
    s_cbranch_scc0 L_rec_i0""")
    A.label("L_rec_go")
    A(f"s_mov_b32 {s(S_STEP)}, 0")
    A(f"s_and_b32 {s(S_T0)}, {s(S_H)}, {PRM['ncp']-1}")
    A(f"s_mul_i32 {s(S_T0)}, {s(S_T0)}, {32768 + PRM['cpo']}")
    for r in range(4): add64(A, S_MEMG + 2 * r, S_MEMX + 2 * r, s(S_T0))
    zero_acc(A)
    A(f"""v_mov_b32 v116, -1
    v_mov_b32 v112, 0
    v_mov_b32 v113, 0
    v_mov_b32 v114, 0
    v_mov_b32 v115, 0""")
    A(f"ds_read_b128 {v(V_M,4)}, {v(V_W2K)} offset:{L_MEM}")
    A(f"ds_read_b128 {v(V_M+4,4)}, {v(V_W2K)} offset:{L_MEM+1024}")
    for P in range(1, 4): A(f"v_xor_b32 v{V_T+P-1}, {P*2048}, {v(V_W2K)}")
    A("s_waitcnt lgkmcnt(0)")
    trace(A, 2, 56)
    A("s_barrier")
    if timing:
        A("s_memtime s[66:67]")
        A("s_waitcnt lgkmcnt(0)")
    if stamps:
        for k in range(NST): A(f"s_mov_b32 s{90+k}, 0")

class LT:
    def __init__(self, A): self.A, self.ops, self.done = A, [], 0
    def op(self, name, ins):
        self.ops.append(name); return ins
    def wait(self, name):
        i = len(self.ops) - 1 - self.ops[::-1].index(name)
        if i < self.done: return None
        self.done = i + 1
        return f"s_waitcnt lgkmcnt({min(len(self.ops) - 1 - i, 15)})"

def gen_step(A, k4, mode, dbg, stamps):
    sfx = f"{'s' if mode == ' sc1' else 'f'}{k4}"
    par, phase = k4 & 1, ((k4 >> 1) & 1) ^ 1
    ldf = "sc1" if mode == " sc1" else FASTLD
    def stamp(k):
        if stamps: A(f"{'s_memrealtime' if 'rt' in EXP else 's_memtime'} s[{70+2*k}:{71+2*k}]")
    M = lambda t: v(V_M + 4 * t, 4)
    F = lambda u: v(V_F + 4 * u, 4)
    KXR = lambda j: [v(88,4), v(92,4), v(104,4), v(108,4)][j] if j < 4 else M(j - 4)
    idx = v(V_IDX)
    lt = LT(A)
    def emit(x):
        if x is None: return
        if isinstance(x, str): A(x)
        elif x[0] == "ds": A(lt.op(x[1], x[2]))
        elif x[0] == "w":
            w = lt.wait(x[1])
            if w: A(w)
    def run(main, fills):
        for k, m in enumerate(main):
            for x in m: emit(x)
            for x in fills.get(k, []): emit(x)
    def post(acc, d0, d1):
        return [f"v_add_f32 v{acc}, v{acc}, v{acc+2}", f"v_add_f32 v{acc+1}, v{acc+1}, v{acc+3}",
                f"v_add_f32 v{acc+4}, v{acc+4}, v{acc+6}", f"v_add_f32 v{acc+5}, v{acc+5}, v{acc+7}",
                f"v_cvt_pk_bf16_f32 v{d0}, v{acc}, v{acc+1}", f"v_cvt_pk_bf16_f32 v{d1}, v{acc+4}, v{acc+5}"]
    mrd = lambda t, tag: ("ds", f"M{tag}{t}", f"ds_read_b128 {M(t)}, v{V_T+(t>>1)-1} offset:{L_MEM+(t&1)*1024}")
    kxrd = lambda j: ("ds", f"KX{j}", f"ds_read_b128 {KXR(j)}, {v(V_L16)} offset:{L_KX+par*8192+j*1024}")
    frd = lambda i, tag: ("ds", f"F{tag}{i}", f"ds_read_b64_tr_b16 {v(V_F+2*i,2)}, {v(V_TR)} offset:{(i>>1)*1024+(i&1)*256}")
    slots = [44, 52, 60, 68, 112]
    NS = len(slots)
    def wslot(f): return (V_WO01 + 8 * f) if f < 2 else slots[(f - 2) % NS]
    def wo_ld(f):
        r = wslot(f)
        return [("ds", f"W{f}a", f"ds_read_b128 {v(r,4)}, {v(V_WOR)} offset:{f*2048}"),
                ("ds", f"W{f}", f"ds_read_b128 {v(r+4,4)}, {v(V_WOR)} offset:{f*2048+1024}")]
    smf = lambda acc, T, t, W: f"v_smfmac_f32_16x16x64_bf16 {v(acc+4*T,4)}, {M(t)}, {W(T,t)}, {idx}"
    KP = 112
    A.label(f"L_rec_step_{sfx}")
    if TRACE and k4 == 0:
        lt_ = A.uid("Ltr")
        A(f"s_and_b32 {s(S_T0)}, {s(S_STEP)}, 7")
        A(f"s_cmp_eq_u32 {s(S_T0)}, 0")
        A(f"s_cbranch_scc0 {lt_}")
        A(f"s_lshr_b32 {s(S_T0)}, {s(S_STEP)}, 3")
        A(f"s_add_u32 {s(S_T0)}, {s(S_T0)}, 4")
        trace(A, s(S_T0), 68)
        A("s_memtime s[100:101]")
        A("s_waitcnt lgkmcnt(0)")
        A("v_mov_b32 v69, s100")
        A(f"v_add_u32 v68, 0x10000, v68")
        A(f"global_store_dword v68, v69, {s(S_WS,2)}")
        A.label(lt_)
    stamp(0)
    if k4 == 3:
        A(f"s_cmp_eq_u32 {s(S_STEP)}, 63")
        A("s_cbranch_scc1 L_rec_last")
    d4 = dma4(par ^ 1) if "nold" not in EXP else [None] * 6
    hk = [f"global_store_dword {v(V_MST)}, v{KP+4}, {s(S_MEMX+2*((k4+1)&3),2)}{mode}", f"v_add_u32 {v(V_KVO)}, 0x20000, {v(V_KVO)}"]
    fl = []
    if k4 == 2: fl.append(f"global_load_dword {v(V_FLAG)}, v{KP+7}, {s(S_FLB,2)} sc1")
    kvst = f"global_store_dwordx4 {v(V_KVO)}, {v(KP,4)}, {s(S_KVB,2)} sc1"
    NE = PRM["ne"]
    early = [[smf(V_AK, T, t, WK)] for t in range(2) for T in range(2)] + [[smf(V_AQ, T, t, WQ)] for t in range(2) for T in range(2)]
    run(early, {NE: ["s_waitcnt lgkmcnt(0)", "s_barrier"] + [mrd(t, "a") for t in range(2, 8)] + [kvst]})
    run([[("w", f"Ma{t}"), smf(V_AK, T, t, WK)] for t in range(2, 8) for T in range(2)],
        {0: [d4[0]], 1: [d4[1]], 3: [d4[2]], 5: [d4[3]], 7: [d4[4], d4[5]], 8: hk, 9: fl + [f"s_waitcnt vmcnt({6 + len(fl)})", kxrd(2)], 11: [kxrd(3)]})
    stamp(1)
    kp = post(V_AK, V_T + 2, V_T + 3)
    fills = {7: kp[0:2], 8: kp[2:4], 9: kp[4:6],
             10: [("ds", "KW", f"ds_write2_b32 {v(V_QKW)}, v{V_T+2}, v{V_T+3} offset0:1 offset1:129"), kxrd(0)],
             11: [kxrd(1)]}
    run([[smf(V_AQ, T, t, WQ)] for t in range(2, 8) for T in range(2)], fills)
    stamp(2)
    SX, PX, SM, OA, LA = 80, 104, 88, 80, 112
    VXR = (108, 92)
    qp = post(V_AQ, V_T, V_T + 1)
    fills = {1: [kxrd(4), "s_nop 4"] + qp + [("ds", "QW", f"ds_write2_b32 {v(V_QKW)}, v{V_T}, v{V_T+1} offset0:0 offset1:128")],
             3: [kxrd(5)], 5: [kxrd(6)], 7: [kxrd(7)]}
    bq = PRM["bq"]
    fills[bq] = fills.get(bq, []) + [f"s_waitcnt vmcnt({6 + (1 if k4 == 2 else 0)})", ("w", "QW"), "s_barrier"] + [frd(i, "a") for i in range(4)]
    fills[bq + 1] = [frd(i, "a") for i in range(4, 8)] + fills.get(bq + 1, [])
    run([[smf(V_AV, T, t, WV)] for t in range(6) for T in range(2)], fills)
    stamp(3)
    def sxm(kt):
        L = []
        for u in range(4):
            d = SX + 4 * kt; j = kt * 4 + u
            L.append([("w", f"Fa{2*u+1}"), ("w", f"KX{j}"),
                      f"v_mfma_f32_16x16x32_bf16 {v(d,4)}, {KXR(j)}, {F(u)}, {'0' if u == 0 else v(d,4)}"])
        return L
    smm = [[f"v_mfma_f32_16x16x32_bf16 {v(SM,4)}, {F(u)}, {F(u)}, {'0' if u == 0 else v(SM,4)}"] for u in range(4)]
    m, t1 = V_T, V_T + 1
    ta, tb = V_T + 2, V_T + 3
    xs = list(range(SX, SX + 8))
    def pexp(k): return [f"v_exp_f32 v{ta}, v{xs[2*k]}", f"v_exp_f32 v{tb}, v{xs[2*k+1]}", f"v_cvt_pk_bf16_f32 v{PX+k}, v{ta}, v{tb}"]
    vx = [("ds", "VX0", f"ds_read_b128 {v(VXR[0],4)}, {v(V_W2K)} offset:{L_VX+par*8192}"),
          ("ds", "VX1", f"ds_read_b128 {v(VXR[1],4)}, {v(V_W2K)} offset:{L_VX+par*8192+1024}")]
    w2, w3, w4, w5 = wo_ld(2), wo_ld(3), wo_ld(4), wo_ld(5)
    vb = [[smf(V_AV, T, t, WV)] for t in range(6, 8) for T in range(2)]
    vp = post(V_AV, V_X, V_X + 1)
    e0, e1, e2, e3 = pexp(0), pexp(1), pexp(2), pexp(3)
    pm = [f"v_mul_f32 v{SM+2}, {s(S_SCALE)}, v{SM+2}", f"v_mul_f32 v{SM+3}, {s(S_SCALE)}, v{SM+3}",
          f"v_exp_f32 v{SM}, v{SM+2}", f"v_exp_f32 v{SM+1}, v{SM+3}",
          f"v_cvt_pk_bf16_f32 v{V_PA}, v{SM}, v{SM+1}", f"v_cvt_pk_bf16_f32 v{V_PB+1}, v{SM}, v{SM+1}"]
    ck = [f"v_max3_f32 v{m}, |v{xs[0]}|, |v{xs[1]}|, |v{xs[2]}|", f"v_max3_f32 v{m}, v{m}, |v{xs[3]}|, v{SM+2}",
          f"v_max3_f32 v{t1}, |v{xs[4]}|, |v{xs[5]}|, v{SM+3}", f"v_max3_f32 v{m}, v{m}, |v{xs[6]}|, |v{xs[7]}|",
          f"v_max_f32 v{m}, v{m}, v{t1}", f"v_cmp_lt_f32 vcc, 0x42700000, v{m}"]
    main = sxm(0) + smm + sxm(1) + vb
    fills = {0: [w4[0]], 1: [w4[1]], 3: [vx[0], vx[1]], 7: ["s_nop 1", e0[0]], 8: [e0[1]], 9: [w2[0], e0[2], e1[0]], 10: [w2[1], e1[1]], 11: [w3[0], w3[1], e1[2], ck[0]],
             12: pm[0:2], 13: pm[2:4] + [ck[1]], 14: pm[4:6], 15: w5}
    run(main, fills)
    stamp(4)
    for x in ck[2:] + e2 + e3: emit(x)
    A(f"s_and_b64 vcc, vcc, {s(S_MK3,2)}")
    A(f"s_cbranch_scc1 L_rec_fb_{sfx}")
    A.label(f"L_rec_fbret_{sfx}")
    emit(("w", "VX1"))
    for x in vp[:2]: A(x)
    A(f"v_mfma_f32_16x16x32_bf16 {v(LA,4)}, {v(V_ONES,4)}, {v(PX,4)}, 0")
    A(vp[2])
    A(f"v_mfma_f32_16x16x32_bf16 {v(OA,4)}, {v(VXR[0],4)}, {v(PX,4)}, 0")
    A(vp[3])
    A(f"v_mfma_f32_16x16x32_bf16 {v(OA+4,4)}, {v(VXR[1],4)}, {v(PX,4)}, 0")
    for x in vp[4:]: A(x)
    A(f"v_mfma_f32_16x16x16_bf16 {v(LA,4)}, {v(V_ONES,2)}, {v(V_PA,2)}, {v(LA,4)}")
    emit(("ds", "XW", f"ds_write2_b32 {v(V_XW)}, v{V_X}, v{V_X+1} offset0:0 offset1:64"))
    A(f"v_mfma_f32_16x16x16_bf16 {v(OA,4)}, {v(V_X,2)}, {v(V_PA,2)}, {v(OA,4)}")
    A(f"v_mfma_f32_16x16x16_bf16 {v(OA+4,4)}, {v(V_X,2)}, {v(V_PB,2)}, {v(OA+4,4)}")
    for k in range(4): A(f"v_mov_b64 {v(96+2*k,2)}, 0")
    A(f"v_rcp_f32 v{t1}, v{LA}")
    for x in wo_ld(6): emit(x)
    for r in range(4): A(f"v_mul_f32 v{OA+r}, v{OA+r}, v{t1}")
    for k in range(2): A(f"v_cvt_pk_bf16_f32 v{V_T+2+k}, v{OA+2*k}, v{OA+2*k+1}")
    emit(("ds", "OW0", f"ds_write_b64 {v(V_OW)}, {v(V_T+2,2)}"))
    for r in range(4, 8): A(f"v_mul_f32 v{OA+r}, v{OA+r}, v{t1}")
    for k in range(2): A(f"v_cvt_pk_bf16_f32 v{V_T+k}, v{OA+4+2*k}, v{OA+5+2*k}")
    emit(("ds", "OW", f"ds_write_b64 {v(V_OW)}, {v(V_T,2)} offset:512"))
    A(f"v_mfma_f32_32x32x8_bf16 {v(V_ACC,16)}, {v(V_ZZ,2)}, {v(V_ZZ,2)}, 0")
    for k in range(4): A(f"v_mov_b64 {v(104+2*k,2)}, 0")
    emit(("w", "OW"))
    A("s_barrier")
    stamp(5)
    OF = 120
    emit(("ds", "OF0", f"ds_read_b128 {v(OF,4)}, {v(V_L16)} offset:{L_O}"))
    emit(("ds", "OF1", f"ds_read_b128 {v(OF+4,4)}, {v(V_L16)} offset:{L_O+1024}"))
    def post_tile(T):
        b = V_ACC + 4 * T
        d = (V_T if T < 4 else V_ACC) + (T & 3)
        L = [f"v_add_f32 v{b}, v{b}, v{b+2}", f"v_add_f32 v{b+1}, v{b+1}, v{b+3}", f"v_cvt_pk_bf16_f32 v{d}, v{b}, v{b+1}"]
        if (T & 3) == 0: L.append(f"v_and_or_b32 v{d}, v{d}, -2, {phase}")
        return L
    for f in range(16):
        T, tp = f >> 1, f & 1
        if f < 2: emit(("w", f"OF{f}"))
        else: emit(("w", f"W{f}"))
        A(f"v_smfmac_f32_16x16x64_bf16 {v(V_ACC+4*T,4)}, {v(OF+4*tp,4)}, {v(wslot(f),8)}, {idx}")
        if f >= 2 and f + NS < 16:
            for x in wo_ld(f + NS): emit(x)
        if tp == 1 and T >= 2:
            for x in post_tile(T - 2): A(x)
            if T - 2 == 3:
                A(f"global_store_dwordx4 {v(V_PST)}, {v(V_T,4)}, {s(S_PST+4*par,2)}{mode}")
    for T in (6, 7):
        for x in post_tile(T): A(x)
    A(f"global_store_dwordx4 {v(V_PST)}, {v(V_ACC,4)}, {s(S_PST+4*par+2,2)}{mode}")
    if "ack" in EXP:
        stamp(5)
        A("s_waitcnt vmcnt(0)")
    stamp(6)
    RA, SEL, D = 44, 60, 64
    kv_read(A, KP)
    for k in range(4): A(f"v_cndmask_b32 v{SEL+k}, 0, {v(V_SELV)}, {s(S_SELM+2*k,2)}")
    zero_acc(A)
    A(f"v_mov_b32 v{KP+4}, -1")
    if k4 == 1:
        A(f"""s_add_u32 {s(S_FLO)}, {s(S_FLO)}, 4096
        s_lshl_b32 {s(S_T0)}, {s(S_H)}, 7
        s_add_u32 {s(S_T0)}, {s(S_T0)}, {15*4096}
        s_min_u32 {s(S_FLO)}, {s(S_FLO)}, {s(S_T0)}
        v_mov_b32 v{KP+7}, {s(S_FLO)}""")
    A("s_waitcnt lgkmcnt(0)")
    A(f"v_min_u32 v{KP}, -2, v{KP}")
    def delay(n):
        for _ in range(n): A("s_nop 3")
    lz = A.uid("Lz")
    A(f"s_cmp_lt_u32 {s(S_W)}, 2")
    A(f"s_cbranch_scc1 {lz}")
    delay(PRM["dB"])
    A.label(lz)
    delay(PRM["dA"])
    RB = 52
    oolq = []
    def pretry(name, ret, ld, inval, R0, R1, R2, fin):
        def blk():
            INV = s(S_SRC, 2)
            A.label(name)
            A(f"s_mov_b64 {INV}, vcc")
            A(f"s_mov_b64 exec, vcc")
            ld(R1)
            for _ in range(PRM["dr"]): A("s_nop 3")
            ld(R2)
            A.label(name + "_l")
            for R in (R1, R2):
                if stamps and "rt" not in EXP: A("s_add_u32 s99, s99, 1")
                A("s_waitcnt vmcnt(2)")
                inval(R)
                A(f"s_andn2_b64 exec, {INV}, vcc")
                for k in range(4): A(f"v_mov_b64 {v(R0+2*k,2)}, {v(R+2*k,2)}")
                A(f"s_and_b64 {INV}, {INV}, vcc")
                A(f"s_cbranch_scc0 {name}_d")
                A(f"s_mov_b64 exec, {INV}")
                ld(R)
            spin_guard(A)
            A(f"s_branch {name}_l")
            A.label(name + "_d")
            A("s_mov_b64 exec, -1")
            fin()
            A(f"s_branch {ret}")
        oolq.append(blk)
    def ld_in(R):
        A(f"global_load_dwordx4 {v(R,4)}, {v(V_INL)}, {s(INB(par),2)} {ldf}")
        A(f"global_load_dwordx4 {v(R+4,4)}, {v(V_INL)}, {s(INB(par),2)} offset:{1024 if 'in64' in EXP else 2048} {ldf}")
    def red_chk(R, n_after):
        A(f"s_waitcnt vmcnt({n_after+1})")
        A(f"v_mfma_f32_16x16x32_bf16 {v(D,4)}, {v(R,4)}, {v(SEL,4)}, 0")
        A(f"s_waitcnt vmcnt({n_after})")
        A(f"v_mfma_f32_16x16x32_bf16 {v(D,4)}, {v(R+4,4)}, {v(SEL,4)}, {v(D,4)}")
        A(f"v_and_b32 v68, v{R}, v{R+4}" if phase else f"v_or_b32 v68, v{R}, v{R+4}")
        A("v_and_b32 v68, 1, v68")
        A(f"v_cmp_ne_u32 vcc, {phase}, v68")
    A(f"s_mov_b32 {s(S_SPIN)}, 0")
    if PRM["dd"]:
        ld_in(RA)
        delay(PRM["dd"])
        A.label(f"L_p2_{sfx}")
        ld_in(RB)
        if stamps and "rt" not in EXP: A("s_add_u32 s99, s99, 1")
        red_chk(RA, 2)
        A(f"s_cbranch_vccz L_p2d_{sfx}")
        ld_in(RA)
        spin_guard(A)
        if stamps and "rt" not in EXP: A("s_add_u32 s99, s99, 1")
        red_chk(RB, 2)
        A(f"s_cbranch_vccnz L_p2_{sfx}")
        A.label(f"L_p2d_{sfx}")
    else:
        if "mr" in EXP: A("s_mov_b64 vcc, -1")
        A.label(f"L_p2_{sfx}")
        if stamps and "rt" not in EXP: A("s_add_u32 s99, s99, 1")
        if "mr" in EXP: A("s_mov_b64 exec, vcc")
        ld_in(RA)
        if "mr" in EXP: A("s_mov_b64 exec, -1")
        spin_guard(A)
        red_chk(RA, 0)
        if "pr" in EXP:
            A(f"s_cbranch_vccnz L_p2r_{sfx}")
            A.label(f"L_p2ok_{sfx}")
            def inv2(R):
                A(f"v_and_b32 v68, v{R}, v{R+4}" if phase else f"v_or_b32 v68, v{R}, v{R+4}")
                A("v_and_b32 v68, 1, v68")
                A(f"v_cmp_ne_u32 vcc, {phase}, v68")
            def fin2():
                A("s_nop 1")
                A(f"v_mfma_f32_16x16x32_bf16 {v(D,4)}, {v(RA,4)}, {v(SEL,4)}, 0")
                A(f"v_mfma_f32_16x16x32_bf16 {v(D,4)}, {v(RA+4,4)}, {v(SEL,4)}, {v(D,4)}")
                A("s_nop 6")
            pretry(f"L_p2r_{sfx}", f"L_p2ok_{sfx}", ld_in, inv2, RA, 52, 120, fin2)
        else:
            A(f"s_cbranch_vccnz L_p2_{sfx}")
    stamp(7)
    A(f"""v_permlane32_swap_b32 v{D}, v{D+2}
    v_permlane32_swap_b32 v{D+1}, v{D+3}
    v_add_f32 v{D}, v{D}, v{D+2}
    v_add_f32 v{D+1}, v{D+1}, v{D+3}
    v_mov_b32 v{D+2}, v{D}
    v_mov_b32 v{D+3}, v{D+1}
    v_permlane16_swap_b32 v{D}, v{D+2}
    v_permlane16_swap_b32 v{D+1}, v{D+3}
    v_add_f32 v{D}, v{D}, v{D+2}
    v_add_f32 v{D+1}, v{D+1}, v{D+3}
    v_cvt_pk_bf16_f32 v{D}, v{D}, v{D+1}
    v_min_u32 v{D}, -2, v{D}""")
    if "mex" in EXP: A(f"s_mov_b64 exec, {s(S_MEX,2)}")
    A(f"global_store_dword {v(V_MST)}, v{D}, {s(S_MEMX+2*k4,2)}{mode}")
    if "mex" in EXP: A("s_mov_b64 exec, -1")
    if "ack2" in EXP:
        stamp(7)
        A("s_waitcnt vmcnt(0)")
    stamp(8)
    if k4 == 2:
        A(f"v_readfirstlane_b32 {s(S_FLAG)}, {v(V_FLAG)}")
    for P in range(1, 4): A(f"v_xor_b32 v{V_T+P-1}, {P*2048}, {v(V_W2K)}")
    lz = A.uid("Lz")
    A(f"s_cmp_ge_u32 {s(S_W)}, 2")
    A(f"s_cbranch_scc1 {lz}")
    delay(PRM["dB"])
    A.label(lz)
    delay(PRM["dGA"])
    mx = s(S_MEMG + 2 * k4, 2)
    def ld_g(R):
        A(f"global_load_dwordx4 {v(R,4)}, {v(V_W2K)}, {mx} {ldf}")
        A(f"global_load_dwordx4 {v(R+4,4)}, {v(V_W2K)}, {mx} offset:1024 {ldf}")
    def g_chk(R, n_after):
        A(f"""s_waitcnt vmcnt({n_after+1})
        ds_write_b128 {v(V_W2K)}, {v(R,4)} offset:{L_MEM}
        v_max3_u32 v68, v{R}, v{R+1}, v{R+2}
        s_waitcnt vmcnt({n_after})
        ds_write_b128 {v(V_W2K)}, {v(R+4,4)} offset:{L_MEM+1024}
        v_max3_u32 v69, v{R+3}, v{R+4}, v{R+5}
        v_max3_u32 v68, v68, v{R+6}, v{R+7}
        v_max_u32 v68, v68, v69
        v_cmp_eq_u32 vcc, -1, v68""")
    A(f"s_mov_b32 {s(S_SPIN)}, 0")
    if PRM["dd3"]:
        RC = 120
        ld_g(RA)
        delay(PRM["dd3"])
        A.label(f"L_p3_{sfx}")
        ld_g(RC)
        if stamps and "rt" not in EXP: A("s_add_u32 s99, s99, 1")
        g_chk(RA, 2)
        A(f"s_cbranch_vccz L_p3d_{sfx}")
        spin_guard(A)
        if stamps and "rt" not in EXP: A("s_add_u32 s99, s99, 1")
        g_chk(RC, 0)
        A(f"s_cbranch_vccz L_p3c_{sfx}")
        ld_g(RA)
        delay(PRM["dd3"])
        A(f"s_branch L_p3_{sfx}")
        A.label(f"L_p3c_{sfx}")
        for k in range(4): A(f"v_mov_b64 {v(RA+2*k,2)}, {v(RC+2*k,2)}")
        A.label(f"L_p3d_{sfx}")
    else:
        if PRM["dEL"]:
            A(f"global_load_dwordx4 {v(RA,4)}, {v(V_W2K)}, {mx} {ldf}")
            delay(PRM["dEL"])
            A(f"global_load_dwordx4 {v(RA+4,4)}, {v(V_W2K)}, {mx} offset:1024 {ldf}")
            A(f"s_branch L_p3b_{sfx}")
        if "mr" in EXP: A("s_mov_b64 vcc, -1")
        A.label(f"L_p3_{sfx}")
        if "mr" in EXP: A("s_mov_b64 exec, vcc")
        ld_g(RA)
        if "mr" in EXP: A("s_mov_b64 exec, -1")
        spin_guard(A)
        A.label(f"L_p3b_{sfx}")
        if stamps and "rt" not in EXP: A("s_add_u32 s99, s99, 1")
        g_chk(RA, 0)
        if "pr" in EXP:
            A(f"s_cbranch_vccnz L_p3r_{sfx}")
            A.label(f"L_p3ok_{sfx}")
            def inv3(R):
                A(f"""v_max3_u32 v68, v{R}, v{R+1}, v{R+2}
                v_max3_u32 v69, v{R+3}, v{R+4}, v{R+5}
                v_max3_u32 v68, v68, v{R+6}, v{R+7}
                v_max_u32 v68, v68, v69
                v_cmp_eq_u32 vcc, -1, v68""")
            def fin3():
                A(f"ds_write_b128 {v(V_W2K)}, {v(RA,4)} offset:{L_MEM}")
                A(f"ds_write_b128 {v(V_W2K)}, {v(RA+4,4)} offset:{L_MEM+1024}")
            pretry(f"L_p3r_{sfx}", f"L_p3ok_{sfx}", ld_g, inv3, RA, 104, 120, fin3)
        else:
            A(f"s_cbranch_vccnz L_p3_{sfx}")
    stamp(9)
    if dbg:
        A(f"s_add_u32 {s(S_T0)}, {s(S_STEP)}, 1")
        A(f"s_lshl_b32 {s(S_T0)}, {s(S_T0)}, 13")
        A(f"s_add_u32 {s(S_T0)}, {s(S_T0)}, {WS_DBG}")
        add64(A, S_SRC, S_WS, s(S_T0))
        for R_, o in ((RA, 0), (RA + 4, 1024)):
            A(f"global_store_dwordx4 {v(V_W2K)}, {v(R_,4)}, {s(S_SRC,2)} offset:{o}")
    if k4 == 2:
        A(f"s_cmp_eq_u32 {s(S_FLAG)}, 1")
        A(f"s_cbranch_scc1 L_rec_fok_{sfx}")
        if MINI:
            A(f"s_cmp_eq_u32 {s(S_STEP)}, 2")
            A(f"s_cbranch_scc1 L_rec_fok_{sfx}")
        flag_wait(A, f"L_rec_fw_{sfx}", 68)
        A.label(f"L_rec_fok_{sfx}")
    if stamps and "rt" in EXP:
        A("s_waitcnt lgkmcnt(0)")
        if k4 == 0:
            A(f"s_cmp_eq_u32 {s(S_STEP)}, 40")
            A(f"s_cbranch_scc0 L_rec_join_{sfx}")
            for k in range(NST): A(f"s_mov_b32 s{90+k}, s{70+2*k}")
    elif stamps:
        A("s_waitcnt lgkmcnt(0)")
        for k in range(NST - 1):
            A(f"s_sub_u32 s68, s{72+2*k}, s{70+2*k}")
            A(f"s_add_u32 s{90+k}, s{90+k}, s68")
        if k4 == 3:
            A(f"s_cmp_eq_u32 {s(S_STEP)}, 7")
            A(f"s_cbranch_scc0 L_rec_join_{sfx}")
            for k in range(NST): A(f"s_mov_b32 s{90+k}, 0")
    A.label(f"L_rec_join_{sfx}")
    A(f"s_add_u32 {s(S_STEP)}, {s(S_STEP)}, 1")
    def ool():
        for b in oolq: b()
        A.label(f"L_rec_fb_{sfx}")
        A(f"""v_max3_f32 v{m}, v{xs[0]}, v{xs[1]}, v{xs[2]}
        v_max3_f32 v{t1}, v{xs[3]}, v{xs[4]}, v{xs[5]}
        v_max3_f32 v{m}, v{m}, v{xs[6]}, v{xs[7]}
        v_max3_f32 v{m}, v{m}, v{SM+2}, v{SM+3}
        v_max_f32 v{m}, v{m}, v{t1}
        v_mov_b32 v{t1}, v{m}
        v_permlane16_swap_b32 v{m}, v{t1}
        v_max_f32 v{m}, v{m}, v{t1}
        v_mov_b32 v{t1}, v{m}
        v_permlane32_swap_b32 v{m}, v{t1}
        v_max_f32 v{m}, v{m}, v{t1}""")
        for r in xs + [SM + 2, SM + 3]: A(f"v_sub_f32 v{r}, v{r}, v{m}")
        for x in e0 + e1 + e2 + e3 + pm[2:]: A(x)
        A("s_nop 1")
        A(f"s_branch L_rec_fbret_{sfx}")
    return ool

def gen_loop(A, dbg=False, timing=False, stamps=False, n_init=0):
    gen_preloop(A, timing, stamps, n_init)
    A(f"s_cmp_eq_u32 {s(S_MODE)}, 0")
    A("s_cbranch_scc0 L_rec_step_s0")
    for mode in (FASTST, " sc1"):
        ools = [gen_step(A, k4, mode, dbg, stamps) for k4 in range(4)]
        A(f"s_branch L_rec_step_{'s' if mode == ' sc1' else 'f'}0")
        for o in ools: o()
    A.label("L_rec_last")
    M = lambda t: v(V_M + 4 * t, 4)
    smf = lambda acc, T, t, W: f"v_smfmac_f32_16x16x64_bf16 {v(acc+4*T,4)}, {M(t)}, {W(T,t)}, {v(V_IDX)}"
    for t in range(2):
        for T in range(2): A(smf(V_AK, T, t, WK))
    A("s_waitcnt lgkmcnt(0)")
    A("s_barrier")
    for t in range(2, 8): A(f"ds_read_b128 {M(t)}, v{V_T+(t>>1)-1} offset:{L_MEM+(t&1)*1024}")
    A(f"global_store_dwordx4 {v(V_KVO)}, {v(112,4)}, {s(S_KVB,2)} sc1")
    for t in range(2):
        for T in range(2): A(smf(V_AV, T, t, WV))
    A(f"v_add_u32 {v(V_KVO)}, 0x20000, {v(V_KVO)}")
    for t in range(2, 8):
        A(f"s_waitcnt lgkmcnt({7-t})")
        for T in range(2): A(smf(V_AK, T, t, WK))
    def post(acc, d0, d1):
        return [f"v_add_f32 v{acc}, v{acc}, v{acc+2}", f"v_add_f32 v{acc+1}, v{acc+1}, v{acc+3}",
                f"v_add_f32 v{acc+4}, v{acc+4}, v{acc+6}", f"v_add_f32 v{acc+5}, v{acc+5}, v{acc+7}",
                f"v_cvt_pk_bf16_f32 v{d0}, v{acc}, v{acc+1}", f"v_cvt_pk_bf16_f32 v{d1}, v{acc+4}, v{acc+5}"]
    for t in range(2, 8):
        for T in range(2): A(smf(V_AV, T, t, WV))
        if t == 6:
            for x in post(V_AK, V_T + 2, V_T + 3): A(x)
            A(f"ds_write2_b32 {v(V_QKW)}, v{V_T+2}, v{V_T+3} offset0:1 offset1:129")
    for x in post(V_AV, V_X, V_X + 1): A(x)
    A(f"ds_write2_b32 {v(V_XW)}, v{V_X}, v{V_X+1} offset0:0 offset1:64")
    KP = 44
    kv_read(A, KP)
    A(f"""s_waitcnt lgkmcnt(0)
    v_min_u32 v{KP}, -2, v{KP}
    global_store_dwordx4 {v(V_KVO)}, {v(KP,4)}, {s(S_KVB,2)} sc1
    """)
    trace(A, 3, 56)
    if timing:
        A(f"""s_memtime s[68:69]
        s_waitcnt lgkmcnt(0)
        s_sub_u32 s68, s68, s66
        v_mov_b32 v44, s68
        s_lshl_b32 {s(S_T0)}, {s(S_H)}, 2
        s_add_u32 {s(S_T0)}, {s(S_T0)}, {WS_DBG + (3<<20)}
        v_mov_b32 v45, {s(S_T0)}
        global_store_dword v45, v44, {s(S_WS,2)}""")
    if stamps:
        A(f"""s_lshl_b32 {s(S_T0)}, {s(S_H)}, 2
        s_add_u32 {s(S_T0)}, {s(S_T0)}, {s(S_W)}
        s_lshl_b32 {s(S_T0)}, {s(S_T0)}, 6
        s_add_u32 {s(S_T0)}, {s(S_T0)}, {WS_DBG + (1<<20)}""")
        add64(A, S_SRC, S_WS, s(S_T0))
        for k in range(NST):
            A(f"v_mov_b32 v46, s{90+k}")
            A(f"global_store_dword {v(V_ZZ)}, v46, {s(S_SRC,2)} offset:{4*k}")
    A("s_branch L_end")

HEADER = """.amdgcn_target "amdgcn-amd-amdhsa--gfx950"
.text
.globl {name}
.p2align 8
.type {name},@function
{name}:
"""
FOOTER = """.section .rodata,"a"
.p2align 6
.amdhsa_kernel {name}
  .amdhsa_next_free_vgpr 512
  .amdhsa_next_free_sgpr 102
  .amdhsa_accum_offset 256
  .amdhsa_group_segment_fixed_size 0
  .amdhsa_kernarg_size 128
  .amdhsa_user_sgpr_count 2
  .amdhsa_user_sgpr_kernarg_segment_ptr 1
  .amdhsa_system_sgpr_workgroup_id_x 1
.end_amdhsa_kernel
"""

def gen_standalone(dbg=True, timing=True, mode=0, stamps=False):
    A = Asm(); TB = Tables()
    A(f"""
    s_cmp_ge_u32 s2, 256
    s_cbranch_scc1 L_end
    s_load_dwordx2 {s(S_MEM0,2)}, s[0:1], 8
    s_load_dwordx4 {s(S_WQ,4)}, s[0:1], 16
    s_load_dwordx4 {s(S_WV,4)}, s[0:1], 32
    s_load_dwordx2 {s(S_DBG,2)}, s[0:1], 112
    s_load_dwordx2 {s(S_WS,2)}, s[0:1], 120
    s_getreg_b32 s3, hwreg(HW_REG_XCC_ID)
    s_and_b32 s3, s3, 7
    s_waitcnt lgkmcnt(0)
    s_cmp_eq_u32 s3, 0
    s_cbranch_scc0 L_end
    v_mov_b32 v2, 0
    v_mov_b32 v3, 1
    v_cmp_eq_u32 vcc, 0, v0
    s_and_saveexec_b64 s[4:5], vcc
    s_cbranch_execz L_tk
    global_atomic_add v4, v2, v3, {s(S_DBG,2)} sc0
    s_waitcnt vmcnt(0)
    ds_write_b32 v2, v4
    s_waitcnt lgkmcnt(0)
    L_tk:
    s_mov_b64 exec, -1
    s_barrier
    ds_read_b32 v4, v2
    s_waitcnt lgkmcnt(0)
    v_readfirstlane_b32 {s(S_H)}, v4
    s_barrier
    s_cmp_ge_u32 {s(S_H)}, 32
    s_cbranch_scc1 L_end
    s_mov_b32 {s(S_MODE)}, {mode}
    """)
    gen_prologue(A, TB)
    gen_loop(A, dbg, timing, stamps)
    A.label("L_end")
    A("s_waitcnt vmcnt(0)")
    A("s_endpgm")
    name = "rec_kernel"
    return f"; @launch grid=(256,1,1) block=(256,1,1) lds={LDS_TOTAL}\n" + HEADER.format(name=name) + A.text() + TB.text() + FOOTER.format(name=name)

if __name__ == "__main__":
    open("rec.s", "w").write(gen_standalone())
```

```python
from asmlib import *
from layout import *
import math, struct

def f32bits(x): return struct.unpack("<I", struct.pack("<f", x))[0]

S_MEM0, S_WQ, S_WK, S_WV, S_WO, S_WS, S_DBG = 6, 8, 10, 12, 14, 16, 18
S_H, S_W, S_STEP, S_MODE = 20, 21, 22, 23
S_SCALE, S_SEL10, S_SEL01, S_SPIN = 24, 25, 26, 27
S_PST = 28
S_MEMX = 40
S_WS4 = 48
S_KVB = 50
S_FLB = 52
S_T0, S_T1, S_T2, S_T3 = 54, 55, 56, 57
S_KXM0 = 58
S_MK3 = 60
S_SRC = 64
S_TB = 62
S_INB = 4
def INB(par): return 36 + 2 * par
S_SELM = 8
S_MEX = 48
S_MEMG = 76
S_FLO = 4
S_FLAG = 5
(V_L16, V_IDX, V_QKW, V_TR,
 V_TRW, V_OW, V_PST, V_MST,
 V_GATH, V_KVO, V_XR, V_WOR,
 V_W2K, V_XW, V_SELV, V_KXO) = range(16)
V_INL = V_GATH
V_FLAG = V_TRW
V_WO01 = 16
V_ONES = 32
V_ZZ = 36
V_PA = 38
V_PB = 40
V_X = 42
V_M = 44
V_AQ, V_AK, V_AV = 80, 88, 96
V_ACC = 80
V_F = 112
V_T = 76
V_WV = 128

def WQ(T, t): return a((T * 8 + t) * 8, 8)
def WK(T, t): return a(128 + (T * 8 + t) * 8, 8)
def WV(T, t): return v(V_WV + (T * 8 + t) * 8, 8)

EARLY = [WK(0, 0), WK(1, 0), WK(0, 1), WK(1, 1), WQ(0, 0)]
EARLY_STG = [52, 60, 68, 104, 120]
def lds_slot(f): return {0: 2, 1: 3, 2: 4, 3: 5, 4: 6, 12: 12, 13: 13, 14: 14, 15: 15}[f]
def early_slot(k): return 7 + k

def add64(A, d, b, off):
    A(f"s_add_u32 {s(d)}, {s(b)}, {off}")
    A(f"s_addc_u32 {s(d+1)}, {s(b+1)}, 0")

class Tables:
    def __init__(self): self.groups = []
    def add(self, fns, nthreads=256):
        assert len(fns) == 4
        self.groups.append([[int(f(t)) & 0xffffffff for f in fns] for t in range(nthreads)])
        return len(self.groups) - 1
    def text(self):
        out = ['.section .rodata,"a"', ".p2align 8", "L_tables:"]
        for g in self.groups:
            for row in g: out.append("  .long " + ", ".join("%#x" % x for x in row))
        return "\n".join(out) + "\n"
    def base(self, A, sreg):
        A(f"s_getpc_b64 {s(sreg,2)}")
        A(f"s_add_u32 {s(sreg)}, {s(sreg)}, L_tables@rel32@lo+4")
        A(f"s_addc_u32 {s(sreg+1)}, {s(sreg+1)}, L_tables@rel32@hi+12")
    def load(self, A, g, vdst, vtid16, sreg, stmp):
        add64(A, stmp, sreg, g * 4096)
        A(f"global_load_dwordx4 {v(vdst,4)}, {v(vtid16)}, {s(stmp,2)}")

def code_prefetch(A, label, shift, vdst, vt, align=False):
    l = A.uid("Lpc")
    A(f"s_getpc_b64 {s(S_SRC,2)}")
    A.label(l)
    A(f"s_add_u32 {s(S_SRC)}, {s(S_SRC)}, {label}-{l}")
    A(f"s_addc_u32 {s(S_SRC+1)}, {s(S_SRC+1)}, 0")
    A(f"v_lshlrev_b32 v{vt}, {shift}, v0")
    if align: A(f"v_and_b32 v{vt}, -4, v{vt}")
    A(f"global_load_dword v{vdst}, v{vt}, {s(S_SRC,2)}")

def dec(tid):
    w, l = tid >> 6, tid & 63
    return w, l, l & 15, l >> 4

def gen_prologue(A, TB):
    A.comment("=== recurrence prologue; s20 = head ===")
    def f_qkw(tid):
        w, l, n, g = dec(tid)
        if "cf" in EXP: return L_QK + w * 1024 + l * 8
        return L_QK + (32 * w + n) * 32 + g * 8
    def f_tr(tid):
        w, l, n, g = dec(tid); r, c = n >> 2, n & 3
        return L_QK + es(0, g, r) * 32 + c * 8
    def f_ow(tid):
        w, l, n, g = dec(tid)
        if n & 2: return L_MEM + l * 8
        return L_O + (w & 1) * 1024 + ((g >> 1) * 16 + n + 2 * (w >> 1)) * 16 + (g & 1) * 8
    def f_pst(tid):
        w, l, n, g = dec(tid)
        if "in64" in EXP: return (w * 8 + (n >> 3) * 4 + g) * 4096 + ((n >> 2) & 1) * 2048 + (n & 3) * 16
        return (w * 8 + (n >> 3) * 4 + g) * 4096 + (n & 7) * 16
    def f_mst(tid):
        w, l, n, g = dec(tid); j, b5 = l & 7, l >> 5; c, qq = j >> 1, j & 1
        cp = ((l >> 3) & 3) % PRM["ncp"]
        return cp * (32768 + PRM["cpo"]) + (w >> 1) * 1024 + (w & 1) * 256 + (2 * (c >> 1) + qq) * 16 + ((c & 1) * 2 + b5) * 4
    def f_kvo(tid):
        return tid * 16
    def f_xr(tid):
        w, l, n, g = dec(tid); key = 2 * (n >> 2) + (n & 1)
        return L_X + (32 * w + g * 8 + key) * 16
    def f_gath(tid):
        w, l, n, g = dec(tid)
        if "in64" in EXP: return (w >> 1) * 0x20000 + (w & 1) * 2048 + l * 16
        return (w >> 1) * 0x20000 + (l >> 2) * 128 + (w & 1) * 64 + (l & 3) * 16
    def f_xw(tid):
        w, l, n, g = dec(tid); return L_X + (32 * w + n) * 16 + g * 4
    g0 = TB.add([lambda t: (t & 63) * 16, lambda t: 0xeeee if t & 2 else 0x4444, f_qkw, f_tr])
    g1 = TB.add([lambda t: f_tr(t) + (t >> 6) * 1024, f_ow, f_pst, f_mst])
    def f_kxo(tid):
        w, l, n, g = dec(tid); return (w >> 1) * WS_VX + (w & 1) * 4096 + l * 16
    g2 = TB.add([f_gath, f_kvo, f_xr, lambda t: L_WO + (t >> 6) * 28672 + (t & 63) * 16 - 4096])
    g2b = TB.add([lambda t: (t >> 6) * 2048 + (t & 63) * 16, f_xw, lambda t: 0x3f800000 if t & 1 else 0x3f80, f_kxo])
    fq = lambda d: (d & 1) | (((d >> 4) & 3) << 1)
    fo = lambda e: (e & 1) | (((e >> 2) & 1) << 1) | (((e >> 6) & 1) << 2)
    def f_dq(hi):
        def f(tid):
            w, l, n, g = dec(tid); row = 32 * w + 16 * hi + g
            return g * 8192 + ((n ^ (fq(row) << 1)) * 16)
        return f
    def f_do(odd):
        def f(tid):
            w, l, n, g = dec(tid); row = 32 * w + 4 * odd + g
            return g * 1024 + ((n ^ (fo(row) << 1)) * 16)
        return f
    g3 = TB.add([f_dq(0), f_dq(1), f_do(0), f_do(1)])
    def f_rq(T, hi):
        def f(tid):
            w, l, n, gB = dec(tid); r, c = n >> 2, n & 3
            row = 32 * (r >> 1) + 16 * (gB & 1) + 4 * (gB >> 1) + (r & 1)
            return L_STG + hi * 65536 + row * 256 + ((2 * w + T) ^ fq(row)) * 32 + 8 * c
        return f
    g4 = TB.add([f_rq(0, 0), f_rq(1, 0), f_rq(0, 1), f_rq(1, 1)])
    def f_ro(tid):
        w, l, n, gB = dec(tid); r, c = n >> 2, n & 3
        row = 64 * (r >> 1) + 8 * (gB >> 1) + 4 * (gB & 1) + (r & 1)
        return L_STG + w * 32768 + row * 256 + fo(row) * 32 + 8 * c
    def f_m0(tid):
        l, jj = tid >> 2, tid & 3
        q, half = arow(l & 15)
        return q * 1024 + dslot(0, half, l >> 4, 2 * jj) * 2
    g5 = TB.add([f_ro, f_m0, lambda t: L_MEM + t * 4, lambda t: L_KX + (t >> 6) * 6144 + (t & 63) * 16])
    VD, VR, VRO = 44, 48, 52
    A(f"""
    v_lshrrev_b32 v1, 6, v0
    v_lshlrev_b32 v76, 4, v0
    s_nop 0
    v_readfirstlane_b32 {s(S_W)}, v1
    """)
    code_prefetch(A, "L_rec_step_f0", 6, 78, 77)
    if "pflast" in EXP:
        code_prefetch(A, "L_rec_last", 1, 79, 77, True)
    TB.base(A, S_TB)
    for g, r in [(g0, 0), (g1, 4), (g2, 8), (g2b, 12), (g3, VD), (g4, VR), (g5, VRO)]:
        TB.load(A, g, r, 76, S_TB, S_SRC)
    A(f"""v_bfe_u32 v82, v76, 8, 2
    v_bfe_u32 v83, v76, 4, 4
    v_and_b32 v84, 1, v82
    s_and_b32 {s(S_T0)}, {s(S_W)}, 1
    s_lshl_b32 {s(S_T0)}, {s(S_T0)}, 2
    v_or_b32 v84, {s(S_T0)}, v84
    v_lshlrev_b32 v84, 1, v84
    v_xor_b32 v83, v83, v84
    v_lshlrev_b32 v83, 4, v83
    v_lshl_add_u32 v80, v82, 13, v83
    v_xor_b32 v81, 64, v80""")
    mats = [S_WK, S_WQ, S_WV]
    def dma_chunk(ci):
        slot = ci % 4
        if ci < 12:
            base, c = mats[ci // 4], ci % 4
            A(f"s_lshl_b32 {s(S_T0)}, {s(S_W)}, 18")
            A(f"s_lshl_b32 {s(S_T1)}, {s(S_H)}, 8")
            A(f"s_add_u32 {s(S_T0)}, {s(S_T0)}, {s(S_T1)}")
            A(f"s_add_u32 {s(S_T0)}, {s(S_T0)}, {128*c*8192}")
            step = 4 * 8192
            vo = lambda i: 80 + (i >> 2)
        else:
            base, c = S_WO, ci - 12
            A(f"s_lshl_b32 {s(S_T0)}, {s(S_W)}, 15")
            A(f"s_lshl_b32 {s(S_T1)}, {s(S_H)}, 17")
            A(f"s_add_u32 {s(S_T0)}, {s(S_T0)}, {s(S_T1)}")
            A(f"s_add_u32 {s(S_T0)}, {s(S_T0)}, {c*256}")
            step = 4 * 1024
            vo = lambda i: VD + 2 + (i & 1)
        add64(A, S_SRC, base, s(S_T0))
        A(f"s_lshl_b32 {s(S_T2)}, {s(S_W)}, 13")
        A(f"s_add_u32 {s(S_T2)}, {s(S_T2)}, {L_STG + slot*32768}")
        for i in range(8):
            A(f"s_mov_b32 m0, {s(S_T2)}")
            A(f"s_add_u32 {s(S_T2)}, {s(S_T2)}, 1024")
            A(f"global_load_lds_dwordx4 v{vo(i)}, {s(S_SRC,2)}" + (" nt" if PRM.get("wnt", 0) else ""))
            if i < 7: add64(A, S_SRC, S_SRC, step)
    for ci in range(4): dma_chunk(ci)
    A(f"""
    s_mov_b32 {s(S_SCALE)}, {f32bits(128**-0.5 * math.log2(math.e)):#x}
    s_mov_b32 {s(S_SEL10)}, 0x00003f80
    s_mov_b32 {s(S_SEL01)}, 0x3f800000
    s_mov_b32 {s(S_MK3)}, 0x33333333
    s_mov_b32 {s(S_MK3+1)}, 0x33333333
    """)
    for r in range(V_ZZ, V_X + 2): A(f"v_mov_b32 v{r}, 0")
    for par in range(2):
        for z in range(2):
            add64(A, S_PST + 4 * par + 2 * z, S_WS, WS_INBOX + par * 0x40000 + z * 0x20000)
    for r in range(4): add64(A, S_MEMX + 2 * r, S_WS, WS_MEMX + r * 8192)
    A(f"s_mov_b32 {s(S_MEX)}, 0xff")
    A(f"s_mov_b32 {s(S_MEX+1)}, 0xff")
    add64(A, S_KVB, S_WS, WS_KV - 0x20000)
    add64(A, S_FLB, S_WS, WS_FLAGS)
    A(f"""s_and_b32 {s(S_T0)}, {s(S_W)}, 1
    s_lshr_b32 {s(S_T1)}, {s(S_W)}, 1
    s_mul_i32 {s(S_T1)}, {s(S_T1)}, {L_VX-L_KX}
    s_lshl_b32 {s(S_T2)}, {s(S_T0)}, 12
    s_add_u32 {s(S_T1)}, {s(S_T1)}, {s(S_T2)}
    s_add_u32 {s(S_KXM0)}, {s(S_T1)}, {L_KX}
    s_add_u32 {s(S_KXM0+1)}, {s(S_T1)}, {L_KX+8192}
    s_lshl_b32 {s(S_T3)}, {s(S_H)}, 12
    s_waitcnt vmcnt(32)
    v_lshrrev_b32 v56, 12, {v(V_PST)}
    v_add_u32 v56, {s(S_H)}, v56
    v_and_b32 v56, 31, v56
    v_lshl_add_u32 {v(V_PST)}, v56, {6 if 'in64' in EXP else 7}, {v(V_PST)}
    s_lshr_b32 {s(S_T0)}, {s(S_H)}, 3
    s_lshl_b32 {s(S_T0)}, {s(S_T0)}, 11
    s_bfe_u32 {s(S_T1)}, {s(S_H)}, 0x10002
    s_lshl_b32 {s(S_T1)}, {s(S_T1)}, 9
    s_add_u32 {s(S_T0)}, {s(S_T0)}, {s(S_T1)}
    s_and_b32 {s(S_T1)}, {s(S_H)}, 3
    s_lshl_b32 {s(S_T1)}, {s(S_T1)}, 6
    s_add_u32 {s(S_T0)}, {s(S_T0)}, {s(S_T1)}
    v_add_u32 {v(V_MST)}, {s(S_T0)}, {v(V_MST)}
    s_lshl_b32 {s(S_T0)}, {s(S_H)}, 12
    v_add_u32 {v(V_KVO)}, {s(S_T0)}, {v(V_KVO)}
    s_lshl_b32 {s(S_T0)}, {s(S_H)}, 13
    v_add_u32 {v(V_KXO)}, {s(S_T0)}, {v(V_KXO)}
    v_mov_b32 v56, 0
    v_mov_b32 v57, 0
    v_mov_b32 v58, 0
    v_mov_b32 v59, 0
    v_mov_b32 v60, -1
    v_add_u32 v61, {s(S_T3)}, v76
    """)
    def init_stores():
        for pz in range(4): A(f"global_store_dwordx4 v61, v[56:59], {s(S_PST+2*pz,2)} sc1")
        for r in range(4): A(f"global_store_dword {v(V_MST)}, v60, {s(S_MEMX+2*r,2)} sc1")
    def mem0_loads():
        for t in range(8): A(f"global_load_dword v{62+t}, v{VRO+1}, {s(S_MEM0,2)} offset:{128*t}")
    order = [("c", 0, 8), ("c", 1, 8), ("c", 2, 8), ("c", 3, 8)]
    def after(tag):
        k = [i for i, o in enumerate(order) if o[:2] == tag][0]
        return sum(o[2] for o in order[k + 1:])
    for ci in range(12):
        slot = ci % 4
        A(f"s_waitcnt vmcnt({after(('c', ci))})")
        A("s_barrier")
        if ci == 7:
            A(f"""s_cmp_eq_u32 {s(S_W)}, 0
            s_cbranch_scc0 L_rec_noinc
            v_mov_b32 v56, 1
            s_mov_b64 exec, 1
            global_atomic_add {v(V_ZZ)}, v56, {s(S_DBG,2)} offset:{DBG_RECINIT}
            s_mov_b64 exec, -1
            L_rec_noinc:""")
        if "ctrace" in EXP:
            A("s_add_u32 s2, s2, 256")
            trace(A, ci, 86)
            A("s_sub_u32 s2, s2, 256")
        W = [WK, WQ, WV][ci // 4]
        c = ci % 4
        lend = A.uid("Lwv")
        for wv in range(4):
            lnx = A.uid("Lwv")
            if wv < 3:
                A(f"s_cmp_eq_u32 {s(S_W)}, {wv}")
                A(f"s_cbranch_scc0 {lnx}")
            for tt in range(2):
                t = 2 * (c ^ wv) + tt
                for T in range(2):
                    wreg = W(T, t)
                    kind, lo = wreg[0], int(wreg[2:].split(":")[0])
                    for p4 in range(4):
                        off = (2 * (p4 & 1) + 8 * (p4 >> 1) + 64 * tt) * 256 + (slot & 1) * 32768
                        A(f"ds_read_b64_tr_b16 {kind}[{lo+2*p4}:{lo+2*p4+1}], v{VR + T + 2*(slot>>1)} offset:{off}")
            if wv < 3:
                A(f"s_branch {lend}")
                A.label(lnx)
        A.label(lend)
        if ci == 7:
            for t in range(8): A(f"ds_write_b32 v{VRO+2}, v{62+t} offset:{1024*t}")
        A("s_waitcnt lgkmcnt(0)")
        A("s_barrier")
        dma_chunk(ci + 4)
        order.append(("c", ci + 4, 8))
        if ci == 1:
            init_stores(); order.append(("i", 0, 8))
        if ci == 2:
            mem0_loads(); order.append(("m", 0, 8))
    for par in range(2): add64(A, INB(par), S_PST + 4 * par, s(S_T3))
    for k in range(4):
        A(f"s_mov_b32 {s(S_SELM+2*k)}, {0x03030303 << (2*k):#x}")
        A(f"s_mov_b32 {s(S_SELM+2*k+1)}, {0x03030303 << (2*k):#x}")
    A(f"s_lshl_b32 {s(S_FLO)}, {s(S_H)}, 7")
    A("""s_waitcnt vmcnt(0)
    s_barrier""")
    if "ctrace" in EXP:
        A("s_add_u32 s2, s2, 256")
        trace(A, 12, 86)
        A("s_sub_u32 s2, s2, 256")
    A(f"""v_lshrrev_b32 v56, 4, {v(V_L16)}
    v_and_b32 v56, 3, v56
    s_lshl_b32 {s(S_T0)}, {s(S_H)}, 2
    v_add_u32 v56, {s(S_T0)}, v56
    v_lshlrev_b32 v56, 7, v56
    v_add_u32 v56, {FL_MINI}, v56
    global_load_dwordx2 v[40:41], {v(V_ZZ)}, {s(S_DBG,2)} offset:{DBG_XCC0} sc1
    global_load_dword v42, {v(V_ZZ)}, {s(S_DBG,2)} offset:{DBG_INIT} sc1
    s_waitcnt vmcnt(0)
    global_load_dword v43, v56, {s(S_FLB,2)} sc1""")
    def wo_read(f, reg):
        T, tp = f >> 1, f & 1
        A(f"v_xor_b32 v{VRO+1}, {T*32}, v{VRO}")
        for p4 in range(4):
            off = (32 * tp + 16 * (p4 >> 1) + 2 * (p4 & 1)) * 256
            A(f"ds_read_b64_tr_b16 v[{reg+2*p4}:{reg+2*p4+1}], v{VRO+1} offset:{off}")
    tmp = [32, 44] + [56 + 8 * i for i in range(9)]
    regs = {}
    for f in range(13): regs[f] = {5: 16, 6: 24}.get(f) or tmp.pop(0)
    PK = VRO + 3
    for k, f in enumerate([13, 14, 15]): wo_read(f, 56 + 8 * k)
    A("s_waitcnt lgkmcnt(0)")
    for k in range(6): A(f"ds_write_b128 v{PK}, v[{56+4*k}:{59+4*k}] offset:{1024*k}")
    A("s_waitcnt lgkmcnt(0)")
    for f in range(13):
        wo_read(f, regs[f])
        if f % 3 == 2: A("s_waitcnt lgkmcnt(4)")
    A("s_waitcnt lgkmcnt(0)")
    A("s_barrier")
    for k, w_ in enumerate(EARLY):
        lo = int(w_[2:].split(":")[0])
        A(f"ds_write_b128 {v(V_WOR)}, a[{lo}:{lo+3}] offset:{early_slot(k)*2048}")
        A(f"ds_write_b128 {v(V_WOR)}, a[{lo+4}:{lo+7}] offset:{early_slot(k)*2048+1024}")
    A("s_waitcnt lgkmcnt(0)")
    for f in (0, 1, 2, 3, 4, 12):
        A(f"ds_write_b128 {v(V_WOR)}, v[{regs[f]}:{regs[f]+3}] offset:{lds_slot(f)*2048}")
        A(f"ds_write_b128 {v(V_WOR)}, v[{regs[f]+4}:{regs[f]+7}] offset:{lds_slot(f)*2048+1024}")
    for k, w_ in enumerate(EARLY):
        lo = int(w_[2:].split(":")[0])
        for r in range(8): A(f"v_accvgpr_write_b32 a{lo+r}, v{regs[7+k]+r}")
    A("s_waitcnt lgkmcnt(0)")
    for k in range(6): A(f"ds_read_b128 v[{56+4*k}:{59+4*k}], v{PK} offset:{1024*k}")
    A("s_waitcnt lgkmcnt(0)")
    for k in range(6): A(f"ds_write_b128 {v(V_WOR)}, v[{56+4*k}:{59+4*k}] offset:{13*2048+1024*k}")
    A(f"""s_waitcnt vmcnt(0)
    v_readfirstlane_b32 s70, v40
    v_readfirstlane_b32 s71, v41
    v_readfirstlane_b32 s72, v42
    v_cmp_ne_u32 s[74:75], 1, v43""")
    for r in range(4): A(f"v_mov_b32 v{V_ONES+r}, 0x3f803f80")
    for r in range(V_ZZ, V_X + 2): A(f"v_mov_b32 v{r}, 0")
    A("""s_waitcnt lgkmcnt(0)
    s_barrier""")

def spin_guard(A):
    A(f"s_add_u32 {s(S_SPIN)}, {s(S_SPIN)}, 1")
    A(f"s_cmp_gt_u32 {s(S_SPIN)}, 0x400000")
    A("s_cbranch_scc1 L_end")

NST = 10
TRACE = False
MINI = True
FASTST = ""
FASTLD = "sc1"
def trace(A, tid_, vt):
    if not TRACE: return
    A("s_memrealtime s[100:101]")
    A("s_waitcnt lgkmcnt(0)")
    A(f"v_mov_b32 v{vt+1}, s100")
    A("s_lshl_b32 s100, s2, 4")
    A(f"s_add_u32 s100, s100, {tid_}")
    A("s_lshl_b32 s100, s100, 2")
    A(f"s_add_u32 s100, s100, {WS_DBG + (2<<20)}")
    A(f"v_mov_b32 v{vt}, s100")
    A(f"global_store_dword v{vt}, v{vt+1}, {s(S_WS,2)}")
EXP = {"in64", "pflast", "oldkv", "o2"}
PRM = dict(dA=3, dB=10, dGA=5, dGB=9, ne=2, bq=6, dd=0, dd3=0, dEL=0, ncp=1, cpo=0, dr=5)
def zero_acc(A):
    A(f"v_mfma_f32_32x32x8_bf16 {v(V_ACC,16)}, {v(V_ZZ,2)}, {v(V_ZZ,2)}, 0")
    A(f"v_mfma_f32_32x32x8_bf16 {v(V_ACC+16,16)}, {v(V_ZZ,2)}, {v(V_ZZ,2)}, 0")

def dma4(par):
    return [f"s_mov_b32 m0, {s(S_KXM0+par)}"] + [f"global_load_lds_dwordx4 {v(V_KXO)}, {s(S_WS,2)} offset:{1024*i} sc1" for i in range(4)] + [f"v_add_u32 {v(V_KXO)}, 0x40000, {v(V_KXO)}"]

def kv_read(A, KP):
    A(f"s_lshl_b32 {s(S_T0)}, {s(S_W)}, 10")
    A(f"v_add_u32 v{KP+4}, {s(S_T0)}, {v(V_TR)}")
    A(f"ds_read_b64_tr_b16 v[{KP}:{KP+1}], v{KP+4}")
    A(f"ds_read_b64_tr_b16 v[{KP+2}:{KP+3}], v{KP+4} offset:256")
    A(f"s_mov_b64 exec, {s(S_MK3,2)}")
    A(f"ds_read_b128 {v(KP,4)}, {v(V_XR)}")
    A("s_mov_b64 exec, -1")

def early_ld(k):
    r = EARLY_STG[k]
    return [f"ds_read_b128 {v(r,4)}, {v(V_WOR)} offset:{early_slot(k)*2048}", f"ds_read_b128 {v(r+4,4)}, {v(V_WOR)} offset:{early_slot(k)*2048+1024}"]

def flag_wait(A, name, vt):
    A(f"s_mov_b32 {s(S_SPIN)}, 0")
    A(f"v_mov_b32 v{vt}, {s(S_FLO)}")
    A.label(name)
    A(f"global_load_dword v{vt+1}, v{vt}, {s(S_FLB,2)} sc1")
    spin_guard(A)
    A(f"""s_waitcnt vmcnt(0)
    v_readfirstlane_b32 {s(S_T0)}, v{vt+1}
    s_cmp_eq_u32 {s(S_T0)}, 1
    s_cbranch_scc0 {name}""")

def load_counters(A, vt, sdst):
    A(f"""v_mbcnt_lo_u32_b32 v{vt}, -1, 0
    v_mbcnt_hi_u32_b32 v{vt}, -1, v{vt}
    v_and_b32 v{vt}, 7, v{vt}
    v_lshlrev_b32 v{vt}, 2, v{vt}
    v_mov_b32 v{vt+1}, {DBG_XCC0}
    v_cmp_eq_u32 vcc, 0, v{vt}
    v_cndmask_b32 v{vt}, v{vt}, v{vt+1}, vcc
    global_load_dword v{vt+1}, v{vt}, {s(S_DBG,2)} sc1
    s_waitcnt vmcnt(0)""")
    for k in range(8): A(f"v_readlane_b32 {s(sdst+k)}, v{vt+1}, {k}")
    A(f"s_add_u32 {s(S_T0)}, {s(sdst)}, {s(sdst+1)}")
    for k in range(2, 8): A(f"s_add_u32 {s(S_T0)}, {s(S_T0)}, {s(sdst+k)}")

FORCE_MODE = None
def decide_mode(A):
    if FORCE_MODE is not None:
        A(f"s_mov_b32 {s(S_MODE)}, {FORCE_MODE}")
        return
    A(f"s_mov_b32 {s(S_SPIN)}, 0")
    A.label("L_rec_md")
    spin_guard(A)
    load_counters(A, 56, 70)
    A(f"""s_mov_b32 {s(S_MODE)}, 0
    s_cmp_ge_u32 s70, 32
    s_cbranch_scc1 L_rec_mdok
    s_mov_b32 {s(S_MODE)}, 1
    s_cmp_ge_u32 {s(S_T0)}, 256
    s_cbranch_scc0 L_rec_md""")
    A.label("L_rec_mdok")

def gen_preloop(A, timing, stamps, n_init=0):
    A.comment("pre-loop")
    trace(A, 1, 56)
    if n_init and FORCE_MODE is None:
        A(f"""s_mov_b32 {s(S_MODE)}, 0
        s_min_u32 s70, s70, s71
        s_cmp_lt_u32 s70, 32
        s_cbranch_scc1 L_rec_slowchk
        s_cmp_lt_u32 s72, {n_init}
        s_cbranch_scc1 L_rec_slowchk
        s_cmp_lg_u64 s[74:75], 0
        s_cbranch_scc1 L_rec_slowchk""")
        for x in dma4(0): A(x)
        A("s_waitcnt vmcnt(0)")
        A("s_branch L_rec_go")
        A.label("L_rec_slowchk")
    if n_init:
        decide_mode(A)
        A(f"s_mov_b32 {s(S_SPIN)}, 0")
        A.label("L_rec_gi")
        A(f"global_load_dword v56, {v(V_ZZ)}, {s(S_DBG,2)} offset:{DBG_INIT} sc1")
        spin_guard(A)
        A(f"""s_waitcnt vmcnt(0)
        v_readfirstlane_b32 {s(S_T0)}, v56
        s_cmp_ge_u32 {s(S_T0)}, {n_init}
        s_cbranch_scc0 L_rec_gi""")
    if n_init:
        A(f"""v_and_b32 v56, 3, {v(V_INL)}
        v_lshrrev_b32 v56, 4, {v(V_L16)}
        v_and_b32 v56, 3, v56
        s_lshl_b32 {s(S_T0)}, {s(S_H)}, 2
        v_add_u32 v56, {s(S_T0)}, v56
        v_lshlrev_b32 v56, 7, v56
        v_add_u32 v56, {FL_MINI}, v56
        s_mov_b32 {s(S_SPIN)}, 0""")
        A.label("L_rec_f0")
        A(f"global_load_dword v57, v56, {s(S_FLB,2)} sc1")
        spin_guard(A)
        A(f"""s_waitcnt vmcnt(0)
        v_cmp_ne_u32 vcc, 1, v57
        s_cbranch_vccnz L_rec_f0""")
    else:
        flag_wait(A, "L_rec_f0", 56)
    for x in dma4(0): A(x)
    A.label("L_rec_i0")
    A(f"global_load_dword v56, {v(V_ZZ)}, {s(S_DBG,2)} offset:{DBG_RECINIT} sc1")
    spin_guard(A)
    A(f"""s_waitcnt vmcnt(0)
    v_readfirstlane_b32 {s(S_T0)}, v56
    s_cmp_ge_u32 {s(S_T0)}, 32
    s_cbranch_scc0 L_rec_i0""")
    A.label("L_rec_go")
    A(f"s_mov_b32 {s(S_STEP)}, 0")
    A(f"s_and_b32 {s(S_T0)}, {s(S_H)}, {PRM['ncp']-1}")
    A(f"s_mul_i32 {s(S_T0)}, {s(S_T0)}, {32768 + PRM['cpo']}")
    for r in range(4): add64(A, S_MEMG + 2 * r, S_MEMX + 2 * r, s(S_T0))
    zero_acc(A)
    A(f"""v_mov_b32 v116, -1
    v_mov_b32 v112, 0
    v_mov_b32 v113, 0
    v_mov_b32 v114, 0
    v_mov_b32 v115, 0""")
    A(f"ds_read_b128 {v(V_M,4)}, {v(V_W2K)} offset:{L_MEM}")
    A(f"ds_read_b128 {v(V_M+4,4)}, {v(V_W2K)} offset:{L_MEM+1024}")
    for P in range(1, 4): A(f"v_xor_b32 v{V_T+P-1}, {P*2048}, {v(V_W2K)}")
    trace(A, 2, 56)
    A("s_nop 15")
    for k in range(5):
        for x in early_ld(k): A(x)
    A("s_waitcnt lgkmcnt(0)")
    A("s_barrier")
    if timing:
        A("s_memtime s[66:67]")
        A("s_waitcnt lgkmcnt(0)")
    if stamps:
        for k in range(NST): A(f"s_mov_b32 s{90+k}, 0")

class LT:
    def __init__(self, A): self.A, self.ops, self.done = A, [], 0
    def op(self, name, ins):
        self.ops.append(name); return ins
    def wait(self, name):
        i = len(self.ops) - 1 - self.ops[::-1].index(name)
        if i < self.done: return None
        self.done = i + 1
        return f"s_waitcnt lgkmcnt({min(len(self.ops) - 1 - i, 15)})"

def gen_step(A, k4, mode, dbg, stamps):
    sfx = f"{'s' if mode == ' sc1' else 'f'}{k4}"
    par, phase = k4 & 1, ((k4 >> 1) & 1) ^ 1
    ldf = "sc1" if mode == " sc1" else FASTLD
    def stamp(k):
        if stamps: A(f"{'s_memrealtime' if 'rt' in EXP else 's_memtime'} s[{70+2*k}:{71+2*k}]")
    M = lambda t: v(V_M + 4 * t, 4)
    F = lambda u: v(V_F + 4 * u, 4)
    KXR = lambda j: [v(88,4), v(92,4), v(104,4), v(108,4)][j] if j < 4 else M(j - 4)
    idx = v(V_IDX)
    lt = LT(A)
    def emit(x):
        if x is None: return
        if isinstance(x, str): A(x)
        elif x[0] == "ds": A(lt.op(x[1], x[2]))
        elif x[0] == "w":
            w = lt.wait(x[1])
            if w: A(w)
    def run(main, fills):
        for k, m in enumerate(main):
            for x in m: emit(x)
            for x in fills.get(k, []): emit(x)
    def post(acc, d0, d1):
        return [f"v_add_f32 v{acc}, v{acc}, v{acc+2}", f"v_add_f32 v{acc+1}, v{acc+1}, v{acc+3}",
                f"v_add_f32 v{acc+4}, v{acc+4}, v{acc+6}", f"v_add_f32 v{acc+5}, v{acc+5}, v{acc+7}",
                f"v_cvt_pk_bf16_f32 v{d0}, v{acc}, v{acc+1}", f"v_cvt_pk_bf16_f32 v{d1}, v{acc+4}, v{acc+5}"]
    mrd = lambda t, tag: ("ds", f"M{tag}{t}", f"ds_read_b128 {M(t)}, v{V_T+(t>>1)-1} offset:{L_MEM+(t&1)*1024}")
    kxrd = lambda j: ("ds", f"KX{j}", f"ds_read_b128 {KXR(j)}, {v(V_L16)} offset:{L_KX+par*8192+j*1024}")
    frd = lambda i, tag: ("ds", f"F{tag}{i}", f"ds_read_b64_tr_b16 {v(V_F+2*i,2)}, {v(V_TR)} offset:{(i>>1)*1024+(i&1)*256}")
    slots = [44, 52, 60, 68, 112]
    NS = len(slots)
    def wreg(f):
        if f < 5: return v(slots[f], 8)
        if f < 7: return v(V_WO01 + 8 * (f - 5), 8)
        if f < 12: return EARLY[f - 7]
        return v(slots[f - 12], 8)
    def wo_ld(f):
        r = slots[f] if f < 5 else slots[f - 12]
        return [("ds", f"W{f}a", f"ds_read_b128 {v(r,4)}, {v(V_WOR)} offset:{lds_slot(f)*2048}"),
                ("ds", f"W{f}", f"ds_read_b128 {v(r+4,4)}, {v(V_WOR)} offset:{lds_slot(f)*2048+1024}")]
    smf = lambda acc, T, t, W: f"v_smfmac_f32_16x16x64_bf16 {v(acc+4*T,4)}, {M(t)}, {W(T,t)}, {idx}"
    KP = 112
    A.label(f"L_rec_step_{sfx}")
    if TRACE and k4 == 0:
        lt_ = A.uid("Ltr")
        A(f"s_and_b32 {s(S_T0)}, {s(S_STEP)}, 7")
        A(f"s_cmp_eq_u32 {s(S_T0)}, 0")
        A(f"s_cbranch_scc0 {lt_}")
        A(f"s_lshr_b32 {s(S_T0)}, {s(S_STEP)}, 3")
        A(f"s_add_u32 {s(S_T0)}, {s(S_T0)}, 4")
        trace(A, s(S_T0), 117)
        A("s_memtime s[100:101]")
        A("s_waitcnt lgkmcnt(0)")
        A("v_mov_b32 v118, s100")
        A(f"v_add_u32 v117, 0x10000, v117")
        A(f"global_store_dword v117, v118, {s(S_WS,2)}")
        A.label(lt_)
    stamp(0)
    if k4 == 3:
        A(f"s_cmp_eq_u32 {s(S_STEP)}, 63")
        A("s_cbranch_scc1 L_rec_last")
    d4 = dma4(par ^ 1) if "nold" not in EXP else [None] * 6
    hk = [f"global_store_dword {v(V_MST)}, v{KP+4}, {s(S_MEMX+2*((k4+1)&3),2)}{mode}", f"v_add_u32 {v(V_KVO)}, 0x20000, {v(V_KVO)}"]
    fl = []
    if k4 == 2: fl.append(f"global_load_dword {v(V_FLAG)}, v{KP+7}, {s(S_FLB,2)} sc1")
    kvst = f"global_store_dwordx4 {v(V_KVO)}, {v(KP,4)}, {s(S_KVB,2)} sc1"
    NE = PRM["ne"]
    early = [[smf(V_AK, T, t, WK)] for t in range(2) for T in range(2)] + [[smf(V_AQ, T, t, WQ)] for t in range(2) for T in range(2)]
    for k in range(5): early[k] = [early[k][0].replace(EARLY[k], v(EARLY_STG[k], 8))]
    early[0] = ["s_waitcnt lgkmcnt(2)"] + early[0]
    run(early, {NE: ["s_waitcnt lgkmcnt(0)", "s_barrier", mrd(2, "a"), mrd(3, "a")], NE + 1: [mrd(4, "a")], NE + 2: [mrd(5, "a")], NE + 3: [mrd(6, "a")],
                NE + 4: [mrd(7, "a")], NE + 5 - PRM.get("kvp", 0): [kvst]} if PRM.get("kvp", 0) == 0 else
               {NE: ["s_waitcnt lgkmcnt(0)", "s_barrier", mrd(2, "a"), mrd(3, "a"), kvst], NE + 1: [mrd(4, "a")], NE + 2: [mrd(5, "a")], NE + 3: [mrd(6, "a")], NE + 4: [mrd(7, "a")]})
    run([[("w", f"Ma{t}"), smf(V_AK, T, t, WK)] for t in range(2, 8) for T in range(2)],
        {0: [d4[0]], 1: [d4[1]], 3: [d4[2]], 5: [d4[3]], 7: [d4[4], d4[5]], 8: hk, 9: fl + [f"s_waitcnt vmcnt({6 + len(fl)})", kxrd(2)], 11: [kxrd(3)]})
    stamp(1)
    kp = post(V_AK, V_T + 2, V_T + 3)
    fills = {7: kp[0:2], 8: kp[2:4], 9: kp[4:6],
             10: [("ds", "KW", f"ds_write2_b32 {v(V_QKW)}, v{V_T+2}, v{V_T+3} offset0:1 offset1:129"), kxrd(0)],
             11: [kxrd(1)]}
    run([[smf(V_AQ, T, t, WQ)] for t in range(2, 8) for T in range(2)], fills)
    stamp(2)
    SX, PX, SM, OA, LA = 80, 104, 88, 80, 112
    VXR = (108, 92)
    qp = post(V_AQ, V_T, V_T + 1)
    fills = {PRM.get("qi", 1): [kxrd(4), f"s_nop {5 - PRM.get('qi', 1)}"] + qp + [("ds", "QW", f"ds_write2_b32 {v(V_QKW)}, v{V_T}, v{V_T+1} offset0:0 offset1:128")],
             }
    fills[3] = fills.get(3, []) + [kxrd(5)]
    bq = PRM["bq"]
    fills[bq] = fills.get(bq, []) + [f"s_waitcnt vmcnt({6 + (1 if k4 == 2 else 0)})", ("w", "QW"), "s_barrier"]
    for j in range(4): fills[bq + j] = fills.get(bq + j, []) + [frd(2 * j, "a"), frd(2 * j + 1, "a")]
    fills[bq + 4] = fills.get(bq + 4, []) + [kxrd(6)]
    fills[bq + 5] = fills.get(bq + 5, []) + [kxrd(7)]
    run([[smf(V_AV, T, t, WV)] for t in range(6) for T in range(2)], fills)
    stamp(3)
    def sxm(kt):
        L = []
        for u in range(4):
            d = SX + 4 * kt; j = kt * 4 + u
            L.append([("w", f"Fa{2*u+1}"), ("w", f"KX{j}"),
                      f"v_mfma_f32_16x16x32_bf16 {v(d,4)}, {KXR(j)}, {F(u)}, {'0' if u == 0 else v(d,4)}"])
        return L
    smm = [[f"v_mfma_f32_16x16x32_bf16 {v(SM,4)}, {F(u)}, {F(u)}, {'0' if u == 0 else v(SM,4)}"] for u in range(4)]
    m, t1 = V_T, V_T + 1
    ta, tb = V_T + 2, V_T + 3
    xs = list(range(SX, SX + 8))
    def pexp(k): return [f"v_exp_f32 v{ta}, v{xs[2*k]}", f"v_exp_f32 v{tb}, v{xs[2*k+1]}", f"v_cvt_pk_bf16_f32 v{PX+k}, v{ta}, v{tb}"]
    vx = [("ds", "VX0", f"ds_read_b128 {v(VXR[0],4)}, {v(V_W2K)} offset:{L_VX+par*8192}"),
          ("ds", "VX1", f"ds_read_b128 {v(VXR[1],4)}, {v(V_W2K)} offset:{L_VX+par*8192+1024}")]
    w2, w3, w4, w5 = wo_ld(0), wo_ld(1), wo_ld(2), wo_ld(3)
    vb = [[smf(V_AV, T, t, WV)] for t in range(6, 8) for T in range(2)]
    vp = post(V_AV, V_X, V_X + 1)
    e0, e1, e2, e3 = pexp(0), pexp(1), pexp(2), pexp(3)
    pm = [f"v_mul_f32 v{SM+2}, {s(S_SCALE)}, v{SM+2}", f"v_mul_f32 v{SM+3}, {s(S_SCALE)}, v{SM+3}",
          f"v_exp_f32 v{SM}, v{SM+2}", f"v_exp_f32 v{SM+1}, v{SM+3}",
          f"v_cvt_pk_bf16_f32 v{V_PA}, v{SM}, v{SM+1}", f"v_cvt_pk_bf16_f32 v{V_PB+1}, v{SM}, v{SM+1}"]
    ck = [f"v_max3_f32 v{m}, |v{xs[0]}|, |v{xs[1]}|, |v{xs[2]}|", f"v_max3_f32 v{m}, v{m}, |v{xs[3]}|, v{SM+2}",
          f"v_max3_f32 v{t1}, |v{xs[4]}|, |v{xs[5]}|, v{SM+3}", f"v_max3_f32 v{m}, v{m}, |v{xs[6]}|, |v{xs[7]}|",
          f"v_max_f32 v{m}, v{m}, v{t1}", f"v_cmp_lt_f32 vcc, 0x42700000, v{m}"]
    main = sxm(0) + smm + sxm(1) + vb
    fills = {1: [w4[0]], 2: [w4[1]], 3: [vx[0]], 4: [vx[1]], 7: ["s_nop 1", e0[0]], 8: [e0[1], w2[0]], 9: [w2[1], e0[2], e1[0]], 10: [w3[0], e1[1]], 11: [w3[1], e1[2], ck[0]],
             12: pm[0:2], 13: pm[2:4] + [ck[1], w5[0]], 14: pm[4:6], 15: [w5[1]]}
    run(main, fills)
    stamp(4)
    for x in ck[2:] + e2 + e3: emit(x)
    A(f"s_and_b64 vcc, vcc, {s(S_MK3,2)}")
    A(f"s_cbranch_scc1 L_rec_fb_{sfx}")
    A.label(f"L_rec_fbret_{sfx}")
    emit(("w", "VX1"))
    for x in vp[:2]: A(x)
    A(f"v_mfma_f32_16x16x32_bf16 {v(LA,4)}, {v(V_ONES,4)}, {v(PX,4)}, 0")
    A(vp[2])
    A(f"v_mfma_f32_16x16x32_bf16 {v(OA,4)}, {v(VXR[0],4)}, {v(PX,4)}, 0")
    A(vp[3])
    A(f"v_mfma_f32_16x16x32_bf16 {v(OA+4,4)}, {v(VXR[1],4)}, {v(PX,4)}, 0")
    for x in vp[4:]: A(x)
    A(f"v_mfma_f32_16x16x16_bf16 {v(LA,4)}, {v(V_ONES,2)}, {v(V_PA,2)}, {v(LA,4)}")
    if "o1" not in EXP: emit(("ds", "XW", f"ds_write2_b32 {v(V_XW)}, v{V_X}, v{V_X+1} offset0:0 offset1:64"))
    A(f"v_mfma_f32_16x16x16_bf16 {v(OA,4)}, {v(V_X,2)}, {v(V_PA,2)}, {v(OA,4)}")
    A(f"v_mfma_f32_16x16x16_bf16 {v(OA+4,4)}, {v(V_X,2)}, {v(V_PB,2)}, {v(OA+4,4)}")
    if "nocomm" in EXP: stamp(7)
    for k in range(4): A(f"v_mov_b64 {v(96+2*k,2)}, 0")
    A(f"v_rcp_f32 v{t1}, v{LA}")
    if "o1" not in EXP:
        for x in wo_ld(4): emit(x)
    if "o2" in EXP: A(f"s_mov_b64 exec, {s(S_MK3,2)}")
    for r in range(4): A(f"v_mul_f32 v{OA+r}, v{OA+r}, v{t1}")
    for k in range(2): A(f"v_cvt_pk_bf16_f32 v{V_T+2+k}, v{OA+2*k}, v{OA+2*k+1}")
    emit(("ds", "OW0", f"ds_write_b64 {v(V_OW)}, {v(V_T+2,2)}"))
    for r in range(4, 8): A(f"v_mul_f32 v{OA+r}, v{OA+r}, v{t1}")
    for k in range(2): A(f"v_cvt_pk_bf16_f32 v{V_T+k}, v{OA+4+2*k}, v{OA+5+2*k}")
    emit(("ds", "OW", f"ds_write_b64 {v(V_OW)}, {v(V_T,2)} offset:512"))
    if "o2" in EXP: A("s_mov_b64 exec, -1")
    A(f"v_mfma_f32_32x32x8_bf16 {v(V_ACC,16)}, {v(V_ZZ,2)}, {v(V_ZZ,2)}, 0")
    for k in range(4): A(f"v_mov_b64 {v(104+2*k,2)}, 0")
    emit(("w", "OW"))
    A("s_barrier")
    stamp(5)
    OF = 120
    emit(("ds", "OF0", f"ds_read_b128 {v(OF,4)}, {v(V_L16)} offset:{L_O}"))
    emit(("ds", "OF1", f"ds_read_b128 {v(OF+4,4)}, {v(V_L16)} offset:{L_O+1024}"))
    if "o1" in EXP:
        for x in wo_ld(4): emit(x)
        emit(("ds", "XW", f"ds_write2_b32 {v(V_XW)}, v{V_X}, v{V_X+1} offset0:0 offset1:64"))
    def post_tile(T):
        b = V_ACC + 4 * T
        d = (V_T if T < 4 else V_ACC) + (T & 3)
        L = [f"v_add_f32 v{b}, v{b}, v{b+2}", f"v_add_f32 v{b+1}, v{b+1}, v{b+3}", f"v_cvt_pk_bf16_f32 v{d}, v{b}, v{b+1}"]
        if (T & 3) == 0: L.append(f"v_and_or_b32 v{d}, v{d}, -2, {phase}")
        return L
    for f in range(16):
        T, tp = f >> 1, f & 1
        if f < 2: emit(("w", f"OF{f}"))
        if f < 5 or f >= 12: emit(("w", f"W{f}"))
        A(f"v_smfmac_f32_16x16x64_bf16 {v(V_ACC+4*T,4)}, {v(OF+4*tp,4)}, {wreg(f)}, {idx}")
        if f == PRM.get("sf", 1) and "nocomm" in EXP: stamp(8)
        if 1 <= f < 9: emit(wo_ld(12 + (f - 1) // 2)[(f - 1) & 1])
        if tp == 1 and T >= 2:
            for x in post_tile(T - 2): A(x)
            if T - 2 == 3:
                A(f"global_store_dwordx4 {v(V_PST)}, {v(V_T,4)}, {s(S_PST+4*par,2)}{mode}")
    for T in (6, 7):
        for x in post_tile(T): A(x)
    A(f"global_store_dwordx4 {v(V_PST)}, {v(V_ACC,4)}, {s(S_PST+4*par+2,2)}{mode}")
    if "ack" in EXP:
        stamp(5)
        A("s_waitcnt vmcnt(0)")
    stamp(6)
    RA, SEL, D = 44, 60, 64
    kv_read(A, KP)
    for k in range(4): A(f"v_cndmask_b32 v{SEL+k}, 0, {v(V_SELV)}, {s(S_SELM+2*k,2)}")
    A(f"v_mfma_f32_32x32x8_bf16 {v(V_ACC,16)}, {v(V_ZZ,2)}, {v(V_ZZ,2)}, 0")
    for k in range(4): A(f"v_mov_b64 {v(96+2*k,2)}, 0")
    for x in early_ld(3) + early_ld(4) + early_ld(0) + early_ld(2): A(x)
    A(f"v_mov_b32 v{KP+4}, -1")
    if k4 == 1:
        A(f"""s_add_u32 {s(S_FLO)}, {s(S_FLO)}, 4096
        s_lshl_b32 {s(S_T0)}, {s(S_H)}, 7
        s_add_u32 {s(S_T0)}, {s(S_T0)}, {15*4096}
        s_min_u32 {s(S_FLO)}, {s(S_FLO)}, {s(S_T0)}
        v_mov_b32 v{KP+7}, {s(S_FLO)}""")
    A("s_waitcnt lgkmcnt(8)")
    A(f"v_min_u32 v{KP}, -2, v{KP}")
    def delay(n):
        for _ in range(n): A("s_nop 3")
    if "nocomm" in EXP:
        A(f"ds_read_b128 {v(V_M,4)}, {v(V_W2K)} offset:{L_VX+par*8192}")
        A(f"ds_read_b128 {v(V_M+4,4)}, {v(V_W2K)} offset:{L_VX+par*8192+1024}")
        for P in range(1, 4): A(f"v_xor_b32 v{V_T+P-1}, {P*2048}, {v(V_W2K)}")
        for x in early_ld(1): A(x)
        A("s_waitcnt vmcnt(2) lgkmcnt(0)")
        A(f"ds_write_b128 {v(V_W2K)}, {v(V_M,4)} offset:{L_MEM}")
        A(f"ds_write_b128 {v(V_W2K)}, {v(V_M+4,4)} offset:{L_MEM+1024}")
        stamp(9)
        A(f"s_branch L_rec_acc_{sfx}")
    lz = A.uid("Lz")
    A(f"s_cmp_lt_u32 {s(S_W)}, 2")
    A(f"s_cbranch_scc1 {lz}")
    delay(PRM["dB"])
    A.label(lz)
    delay(PRM["dA"])
    RB = 52
    oolq = []
    def pretry(name, ret, ld, inval, R0, R1, R2, fin):
        def blk():
            INV = s(S_SRC, 2)
            A.label(name)
            A(f"s_mov_b64 {INV}, vcc")
            A(f"s_mov_b64 exec, vcc")
            ld(R1)
            for _ in range(PRM["dr"]): A("s_nop 3")
            ld(R2)
            A.label(name + "_l")
            for R in (R1, R2):
                if stamps and "rt" not in EXP: A("s_add_u32 s99, s99, 1")
                A("s_waitcnt vmcnt(2)")
                inval(R)
                A(f"s_andn2_b64 exec, {INV}, vcc")
                for k in range(4): A(f"v_mov_b64 {v(R0+2*k,2)}, {v(R+2*k,2)}")
                A(f"s_and_b64 {INV}, {INV}, vcc")
                A(f"s_cbranch_scc0 {name}_d")
                A(f"s_mov_b64 exec, {INV}")
                ld(R)
            spin_guard(A)
            A(f"s_branch {name}_l")
            A.label(name + "_d")
            A("s_mov_b64 exec, -1")
            fin()
            A(f"s_branch {ret}")
        oolq.append(blk)
    def ld_in(R):
        A(f"global_load_dwordx4 {v(R,4)}, {v(V_INL)}, {s(INB(par),2)} {ldf}")
        A(f"global_load_dwordx4 {v(R+4,4)}, {v(V_INL)}, {s(INB(par),2)} offset:{1024 if 'in64' in EXP else 2048} {ldf}")
    def red_chk(R, n_after):
        A(f"s_waitcnt vmcnt({n_after+1})")
        A(f"v_mfma_f32_16x16x32_bf16 {v(D,4)}, {v(R,4)}, {v(SEL,4)}, 0")
        A(f"s_waitcnt vmcnt({n_after})")
        A(f"v_mfma_f32_16x16x32_bf16 {v(D,4)}, {v(R+4,4)}, {v(SEL,4)}, {v(D,4)}")
        A(f"v_and_b32 v117, v{R}, v{R+4}" if phase else f"v_or_b32 v117, v{R}, v{R+4}")
        A("v_and_b32 v117, 1, v117")
        A(f"v_cmp_ne_u32 vcc, {phase}, v117")
    A(f"s_mov_b32 {s(S_SPIN)}, 0")
    if PRM["dd"]:
        ld_in(RA)
        delay(PRM["dd"])
        A.label(f"L_p2_{sfx}")
        ld_in(RB)
        if stamps and "rt" not in EXP: A("s_add_u32 s99, s99, 1")
        red_chk(RA, 2)
        A(f"s_cbranch_vccz L_p2d_{sfx}")
        ld_in(RA)
        spin_guard(A)
        if stamps and "rt" not in EXP: A("s_add_u32 s99, s99, 1")
        red_chk(RB, 2)
        A(f"s_cbranch_vccnz L_p2_{sfx}")
        A.label(f"L_p2d_{sfx}")
    else:
        if "mr" in EXP: A("s_mov_b64 vcc, -1")
        A.label(f"L_p2_{sfx}")
        if stamps and "rt" not in EXP: A("s_add_u32 s99, s99, 1")
        if "mr" in EXP: A("s_mov_b64 exec, vcc")
        ld_in(RA)
        if "mr" in EXP: A("s_mov_b64 exec, -1")
        spin_guard(A)
        red_chk(RA, 0)
        if "pr" in EXP:
            A(f"s_cbranch_vccnz L_p2r_{sfx}")
            A.label(f"L_p2ok_{sfx}")
            def inv2(R):
                A(f"v_and_b32 v117, v{R}, v{R+4}" if phase else f"v_or_b32 v117, v{R}, v{R+4}")
                A("v_and_b32 v117, 1, v117")
                A(f"v_cmp_ne_u32 vcc, {phase}, v117")
            def fin2():
                A("s_nop 1")
                A(f"v_mfma_f32_16x16x32_bf16 {v(D,4)}, {v(RA,4)}, {v(SEL,4)}, 0")
                A(f"v_mfma_f32_16x16x32_bf16 {v(D,4)}, {v(RA+4,4)}, {v(SEL,4)}, {v(D,4)}")
                A("s_nop 6")
            pretry(f"L_p2r_{sfx}", f"L_p2ok_{sfx}", ld_in, inv2, RA, 52, 120, fin2)
        else:
            A(f"s_cbranch_vccnz L_p2_{sfx}")
    stamp(7)
    A(f"""v_permlane32_swap_b32 v{D}, v{D+2}
    v_permlane32_swap_b32 v{D+1}, v{D+3}
    v_add_f32 v{D}, v{D}, v{D+2}
    v_add_f32 v{D+1}, v{D+1}, v{D+3}
    v_mov_b32 v{D+2}, v{D}
    v_mov_b32 v{D+3}, v{D+1}
    v_permlane16_swap_b32 v{D}, v{D+2}
    v_permlane16_swap_b32 v{D+1}, v{D+3}
    v_add_f32 v{D}, v{D}, v{D+2}
    v_add_f32 v{D+1}, v{D+1}, v{D+3}
    v_cvt_pk_bf16_f32 v{D}, v{D}, v{D+1}
    v_min_u32 v{D}, -2, v{D}""")
    if "mex" in EXP: A(f"s_mov_b64 exec, {s(S_MEX,2)}")
    A(f"global_store_dword {v(V_MST)}, v{D}, {s(S_MEMX+2*k4,2)}{mode}")
    if "mex" in EXP: A("s_mov_b64 exec, -1")
    if "ack2" in EXP:
        stamp(7)
        A("s_waitcnt vmcnt(0)")
    stamp(8)
    if k4 == 2:
        A(f"v_readfirstlane_b32 {s(S_FLAG)}, {v(V_FLAG)}")
    for x in early_ld(1): A(x)
    for P in range(1, 4): A(f"v_xor_b32 v{V_T+P-1}, {P*2048}, {v(V_W2K)}")
    lz = A.uid("Lz")
    A(f"s_cmp_ge_u32 {s(S_W)}, 2")
    A(f"s_cbranch_scc1 {lz}")
    delay(PRM["dB"])
    A.label(lz)
    delay(PRM["dGA"])
    mx = s(S_MEMG + 2 * k4, 2)
    def ld_g(R):
        A(f"global_load_dwordx4 {v(R,4)}, {v(V_W2K)}, {mx} {ldf}")
        A(f"global_load_dwordx4 {v(R+4,4)}, {v(V_W2K)}, {mx} offset:1024 {ldf}")
    def g_chk(R, n_after):
        A(f"""s_waitcnt vmcnt({n_after+1})
        ds_write_b128 {v(V_W2K)}, {v(R,4)} offset:{L_MEM}
        v_max3_u32 v117, v{R}, v{R+1}, v{R+2}
        s_waitcnt vmcnt({n_after})
        ds_write_b128 {v(V_W2K)}, {v(R+4,4)} offset:{L_MEM+1024}
        v_max3_u32 v118, v{R+3}, v{R+4}, v{R+5}
        v_max3_u32 v117, v117, v{R+6}, v{R+7}
        v_max_u32 v117, v117, v118
        v_cmp_eq_u32 vcc, -1, v117""")
    A(f"s_mov_b32 {s(S_SPIN)}, 0")
    if PRM["dd3"]:
        RC = 120
        ld_g(RA)
        delay(PRM["dd3"])
        A.label(f"L_p3_{sfx}")
        ld_g(RC)
        if stamps and "rt" not in EXP: A("s_add_u32 s99, s99, 1")
        g_chk(RA, 2)
        A(f"s_cbranch_vccz L_p3d_{sfx}")
        spin_guard(A)
        if stamps and "rt" not in EXP: A("s_add_u32 s99, s99, 1")
        g_chk(RC, 0)
        A(f"s_cbranch_vccz L_p3c_{sfx}")
        ld_g(RA)
        delay(PRM["dd3"])
        A(f"s_branch L_p3_{sfx}")
        A.label(f"L_p3c_{sfx}")
        for k in range(4): A(f"v_mov_b64 {v(RA+2*k,2)}, {v(RC+2*k,2)}")
        A.label(f"L_p3d_{sfx}")
    else:
        if PRM["dEL"]:
            A(f"global_load_dwordx4 {v(RA,4)}, {v(V_W2K)}, {mx} {ldf}")
            delay(PRM["dEL"])
            A(f"global_load_dwordx4 {v(RA+4,4)}, {v(V_W2K)}, {mx} offset:1024 {ldf}")
            A(f"s_branch L_p3b_{sfx}")
        if "mr" in EXP: A("s_mov_b64 vcc, -1")
        A.label(f"L_p3_{sfx}")
        if "mr" in EXP: A("s_mov_b64 exec, vcc")
        ld_g(RA)
        if "mr" in EXP: A("s_mov_b64 exec, -1")
        spin_guard(A)
        A.label(f"L_p3b_{sfx}")
        if stamps and "rt" not in EXP: A("s_add_u32 s99, s99, 1")
        g_chk(RA, 0)
        if "pr" in EXP:
            A(f"s_cbranch_vccnz L_p3r_{sfx}")
            A.label(f"L_p3ok_{sfx}")
            def inv3(R):
                A(f"""v_max3_u32 v117, v{R}, v{R+1}, v{R+2}
                v_max3_u32 v118, v{R+3}, v{R+4}, v{R+5}
                v_max3_u32 v117, v117, v{R+6}, v{R+7}
                v_max_u32 v117, v117, v118
                v_cmp_eq_u32 vcc, -1, v117""")
            def fin3():
                A(f"ds_write_b128 {v(V_W2K)}, {v(RA,4)} offset:{L_MEM}")
                A(f"ds_write_b128 {v(V_W2K)}, {v(RA+4,4)} offset:{L_MEM+1024}")
            pretry(f"L_p3r_{sfx}", f"L_p3ok_{sfx}", ld_g, inv3, RA, 104, 120, fin3)
        else:
            A(f"s_cbranch_vccnz L_p3_{sfx}")
    stamp(9)
    if dbg:
        A(f"s_add_u32 {s(S_T0)}, {s(S_STEP)}, 1")
        A(f"s_lshl_b32 {s(S_T0)}, {s(S_T0)}, 13")
        A(f"s_add_u32 {s(S_T0)}, {s(S_T0)}, {WS_DBG}")
        add64(A, S_SRC, S_WS, s(S_T0))
        for R_, o in ((RA, 0), (RA + 4, 1024)):
            A(f"global_store_dwordx4 {v(V_W2K)}, {v(R_,4)}, {s(S_SRC,2)} offset:{o}")
    if k4 == 2:
        A(f"s_cmp_eq_u32 {s(S_FLAG)}, 1")
        A(f"s_cbranch_scc1 L_rec_fok_{sfx}")
        if MINI:
            A(f"s_cmp_eq_u32 {s(S_STEP)}, 2")
            A(f"s_cbranch_scc1 L_rec_fok_{sfx}")
        flag_wait(A, f"L_rec_fw_{sfx}", 117)
        A.label(f"L_rec_fok_{sfx}")
    A.label(f"L_rec_acc_{sfx}")
    if stamps and "rt" in EXP:
        A("s_waitcnt lgkmcnt(0)")
        if k4 == 0:
            A(f"s_cmp_eq_u32 {s(S_STEP)}, 40")
            A(f"s_cbranch_scc0 L_rec_join_{sfx}")
            for k in range(NST): A(f"s_mov_b32 s{90+k}, s{70+2*k}")
    elif stamps:
        A("s_waitcnt lgkmcnt(0)")
        for k in range(NST - 1):
            A(f"s_sub_u32 s68, s{72+2*k}, s{70 if 'nocomm' in EXP else 70+2*k}")
            A(f"s_add_u32 s{90+k}, s{90+k}, s68")
        if k4 == 3:
            A(f"s_cmp_eq_u32 {s(S_STEP)}, 7")
            A(f"s_cbranch_scc0 L_rec_join_{sfx}")
            for k in range(NST): A(f"s_mov_b32 s{90+k}, 0")
    A.label(f"L_rec_join_{sfx}")
    A(f"s_add_u32 {s(S_STEP)}, {s(S_STEP)}, 1")
    def ool():
        for b in oolq: b()
        A.label(f"L_rec_fb_{sfx}")
        A(f"""v_max3_f32 v{m}, v{xs[0]}, v{xs[1]}, v{xs[2]}
        v_max3_f32 v{t1}, v{xs[3]}, v{xs[4]}, v{xs[5]}
        v_max3_f32 v{m}, v{m}, v{xs[6]}, v{xs[7]}
        v_max3_f32 v{m}, v{m}, v{SM+2}, v{SM+3}
        v_max_f32 v{m}, v{m}, v{t1}
        v_mov_b32 v{t1}, v{m}
        v_permlane16_swap_b32 v{m}, v{t1}
        v_max_f32 v{m}, v{m}, v{t1}
        v_mov_b32 v{t1}, v{m}
        v_permlane32_swap_b32 v{m}, v{t1}
        v_max_f32 v{m}, v{m}, v{t1}""")
        for r in xs + [SM + 2, SM + 3]: A(f"v_sub_f32 v{r}, v{r}, v{m}")
        for x in e0 + e1 + e2 + e3 + pm[2:]: A(x)
        A("s_nop 1")
        A(f"s_branch L_rec_fbret_{sfx}")
    return ool

def gen_loop(A, dbg=False, timing=False, stamps=False, n_init=0):
    gen_preloop(A, timing, stamps, n_init)
    A(f"s_cmp_eq_u32 {s(S_MODE)}, 0")
    A("s_cbranch_scc0 L_rec_step_s0")
    for mode in (FASTST, " sc1"):
        if PRM.get("al", 0):
            if mode != " sc1": A("s_branch L_rec_step_f0")
            A.lines.append(".p2align 6")
            for _ in range(PRM["al"] - 1): A("s_nop 0")
        n0 = len(A.lines)
        ools = [gen_step(A, k4, mode, dbg, stamps) for k4 in range(4)]
        import re as _re
        pats = {"x_st": r"global_store_dwordx4 v6,", "x_kv": r"global_store_dwordx4 v9,|global_store_dword v7,", "x_wo": r"ds_read_b128 .*, v11 ",
                "x_bar": r"s_barrier", "x_exp": r"v_exp_f32", "x_z": r"v_mfma_f32_32x32x8|v_mov_b64", "x_kx": r"ds_read_b128 .*, v0 offset:(8|9|1[0-9]|2[0-3])\d\d\d$",
                "x_tr": r"ds_read_b64_tr", "x_add": r"v_add_f32", "x_cvt": r"v_cvt_pk", "x_smf": r"v_smfmac", "x_mf": r"v_mfma_f32_16x16", "x_dsw": r"ds_write"}
        for k, p in pats.items():
            if k in EXP: A.lines[n0:] = [l for l in A.lines[n0:] if not _re.search(p, l)]
        A(f"s_branch L_rec_step_{'s' if mode == ' sc1' else 'f'}0")
        for o in ools: o()
    A.label("L_rec_last")
    M = lambda t: v(V_M + 4 * t, 4)
    smf = lambda acc, T, t, W: f"v_smfmac_f32_16x16x64_bf16 {v(acc+4*T,4)}, {M(t)}, {W(T,t)}, {v(V_IDX)}"
    A("s_waitcnt lgkmcnt(0)")
    for k, (t, T) in enumerate(((0, 0), (0, 1), (1, 0), (1, 1))): A(smf(V_AK, T, t, WK).replace(EARLY[k], v(EARLY_STG[k], 8)))
    A("s_barrier")
    for t in range(2, 8): A(f"ds_read_b128 {M(t)}, v{V_T+(t>>1)-1} offset:{L_MEM+(t&1)*1024}")
    A(f"global_store_dwordx4 {v(V_KVO)}, {v(112,4)}, {s(S_KVB,2)} sc1")
    for t in range(2):
        for T in range(2): A(smf(V_AV, T, t, WV))
    A(f"v_add_u32 {v(V_KVO)}, 0x20000, {v(V_KVO)}")
    for t in range(2, 8):
        A(f"s_waitcnt lgkmcnt({7-t})")
        for T in range(2): A(smf(V_AK, T, t, WK))
    def post(acc, d0, d1):
        return [f"v_add_f32 v{acc}, v{acc}, v{acc+2}", f"v_add_f32 v{acc+1}, v{acc+1}, v{acc+3}",
                f"v_add_f32 v{acc+4}, v{acc+4}, v{acc+6}", f"v_add_f32 v{acc+5}, v{acc+5}, v{acc+7}",
                f"v_cvt_pk_bf16_f32 v{d0}, v{acc}, v{acc+1}", f"v_cvt_pk_bf16_f32 v{d1}, v{acc+4}, v{acc+5}"]
    for t in range(2, 8):
        for T in range(2): A(smf(V_AV, T, t, WV))
        if t == 6:
            for x in post(V_AK, V_T + 2, V_T + 3): A(x)
            A(f"ds_write2_b32 {v(V_QKW)}, v{V_T+2}, v{V_T+3} offset0:1 offset1:129")
    for x in post(V_AV, V_X, V_X + 1): A(x)
    A(f"ds_write2_b32 {v(V_XW)}, v{V_X}, v{V_X+1} offset0:0 offset1:64")
    KP = 44
    kv_read(A, KP)
    A(f"""s_waitcnt lgkmcnt(0)
    v_min_u32 v{KP}, -2, v{KP}
    global_store_dwordx4 {v(V_KVO)}, {v(KP,4)}, {s(S_KVB,2)} sc1
    """)
    trace(A, 3, 56)
    if timing:
        A(f"""s_memtime s[68:69]
        s_waitcnt lgkmcnt(0)
        s_sub_u32 s68, s68, s66
        v_mov_b32 v44, s68
        s_lshl_b32 {s(S_T0)}, {s(S_H)}, 2
        s_add_u32 {s(S_T0)}, {s(S_T0)}, {WS_DBG + (3<<20)}
        v_mov_b32 v45, {s(S_T0)}
        global_store_dword v45, v44, {s(S_WS,2)}""")
    if stamps:
        A(f"""s_lshl_b32 {s(S_T0)}, {s(S_H)}, 2
        s_add_u32 {s(S_T0)}, {s(S_T0)}, {s(S_W)}
        s_lshl_b32 {s(S_T0)}, {s(S_T0)}, 6
        s_add_u32 {s(S_T0)}, {s(S_T0)}, {WS_DBG + (1<<20)}""")
        add64(A, S_SRC, S_WS, s(S_T0))
        for k in range(NST):
            A(f"v_mov_b32 v46, s{90+k}")
            A(f"global_store_dword {v(V_ZZ)}, v46, {s(S_SRC,2)} offset:{4*k}")
    A("s_branch L_end")

HEADER = """.amdgcn_target "amdgcn-amd-amdhsa--gfx950"
.text
.globl {name}
.p2align 8
.type {name},@function
{name}:
"""
FOOTER = """.section .rodata,"a"
.p2align 6
.amdhsa_kernel {name}
  .amdhsa_next_free_vgpr 512
  .amdhsa_next_free_sgpr 102
  .amdhsa_accum_offset 256
  .amdhsa_group_segment_fixed_size 0
  .amdhsa_kernarg_size 128
  .amdhsa_user_sgpr_count 2
  .amdhsa_user_sgpr_kernarg_segment_ptr 1
  .amdhsa_system_sgpr_workgroup_id_x 1
.end_amdhsa_kernel
"""

def gen_standalone(dbg=True, timing=True, mode=0, stamps=False):
    A = Asm(); TB = Tables()
    A(f"""
    s_cmp_ge_u32 s2, 256
    s_cbranch_scc1 L_end
    s_load_dwordx2 {s(S_MEM0,2)}, s[0:1], 8
    s_load_dwordx4 {s(S_WQ,4)}, s[0:1], 16
    s_load_dwordx4 {s(S_WV,4)}, s[0:1], 32
    s_load_dwordx2 {s(S_DBG,2)}, s[0:1], 112
    s_load_dwordx2 {s(S_WS,2)}, s[0:1], 120
    s_getreg_b32 s3, hwreg(HW_REG_XCC_ID)
    s_and_b32 s3, s3, 7
    s_waitcnt lgkmcnt(0)
    s_cmp_eq_u32 s3, 0
    s_cbranch_scc0 L_end
    v_mov_b32 v2, 0
    v_mov_b32 v3, 1
    v_cmp_eq_u32 vcc, 0, v0
    s_and_saveexec_b64 s[4:5], vcc
    s_cbranch_execz L_tk
    global_atomic_add v4, v2, v3, {s(S_DBG,2)} sc0
    s_waitcnt vmcnt(0)
    ds_write_b32 v2, v4
    s_waitcnt lgkmcnt(0)
    L_tk:
    s_mov_b64 exec, -1
    s_barrier
    ds_read_b32 v4, v2
    s_waitcnt lgkmcnt(0)
    v_readfirstlane_b32 {s(S_H)}, v4
    s_barrier
    s_cmp_ge_u32 {s(S_H)}, 32
    s_cbranch_scc1 L_end
    s_mov_b32 {s(S_MODE)}, {mode}
    """)
    gen_prologue(A, TB)
    gen_loop(A, dbg, timing, stamps)
    A.label("L_end")
    A("s_waitcnt vmcnt(0)")
    A("s_endpgm")
    name = "rec_kernel"
    return f"; @launch grid=(256,1,1) block=(256,1,1) lds={LDS_TOTAL}\n" + HEADER.format(name=name) + A.text() + TB.text() + FOOTER.format(name=name)

if __name__ == "__main__":
    open("rec.s", "w").write(gen_standalone())
```

```python
from asmlib import *
from layout import *
import gen_rec, gen_p1, gen_p2
from gen_rec import *
NAME = "gated_mix__memory_aug_recurrent_mem_tr__moe_arch_mod__prompt_kernel"

FAKE_XCC = ""
def dispatcher(A, roles):
    if "dbgt" in gen_rec.EXP: A("s_memrealtime s[98:99]")
    A(f"""
    s_cmp_ge_u32 s2, 256
    s_cbranch_scc1 L_end
    s_load_dwordx4 s[4:7], s[0:1], 0
    s_load_dwordx4 {s(S_WQ,4)}, s[0:1], 16
    s_load_dwordx4 {s(S_WV,4)}, s[0:1], 32
    s_load_dwordx2 {s(S_DBG,2)}, s[0:1], 112
    s_load_dwordx2 {s(S_WS,2)}, s[0:1], 120
    s_getreg_b32 s3, hwreg(HW_REG_XCC_ID)
    s_and_b32 s3, s3, 7
    {FAKE_XCC}
    s_lshl_b32 {s(S_T0)}, s3, 2
    s_cmp_eq_u32 s3, 0
    s_cselect_b32 {s(S_T0)}, {DBG_XCC0}, {s(S_T0)}
    v_mov_b32 v2, {s(S_T0)}
    v_mov_b32 v3, 1
    v_mov_b32 v5, 0
    s_waitcnt lgkmcnt(0)
    v_cmp_eq_u32 vcc, 0, v0
    s_and_saveexec_b64 {s(S_SRC,2)}, vcc
    s_cbranch_execz L_tk
    global_atomic_add v4, v2, v3, {s(S_DBG,2)} sc0
    s_waitcnt vmcnt(0)
    ds_write_b32 v5, v4
    s_waitcnt lgkmcnt(0)
    L_tk:
    s_mov_b64 exec, -1
    s_barrier
    ds_read_b32 v4, v5
    s_waitcnt lgkmcnt(0)
    v_readfirstlane_b32 {s(S_T1)}, v4
    s_barrier
    s_cmp_lt_u32 {s(S_T1)}, 32
    s_cbranch_scc1 L_roles
    """)
    A(f"""v_mov_b32 v2, {DBG_OVF}
    v_cmp_eq_u32 vcc, 0, v0
    s_and_saveexec_b64 {s(S_SRC,2)}, vcc
    s_cbranch_execz L_tk2
    global_atomic_add v4, v2, v3, {s(S_DBG,2)} sc0
    s_waitcnt vmcnt(0)
    ds_write_b32 v5, v4
    s_waitcnt lgkmcnt(0)
    L_tk2:
    s_mov_b64 exec, -1
    s_barrier
    ds_read_b32 v4, v5
    s_waitcnt lgkmcnt(0)
    v_readfirstlane_b32 {s(S_T2)}, v4
    s_barrier
    s_mov_b32 {s(S_SPIN)}, 0""")
    A.label("L_ovf_w")
    spin_guard(A)
    load_counters(A, 6, 70)
    A(f"""s_cmp_ge_u32 {s(S_T0)}, 256
    s_cbranch_scc0 L_ovf_w""")
    for x in range(8):
        A(f"""s_min_u32 {s(S_T0)}, s{70+x}, 32
        s_sub_u32 {s(S_T3)}, 32, {s(S_T0)}
        s_mov_b32 s3, {x}
        s_add_u32 {s(S_T1)}, {s(S_T0)}, {s(S_T2)}
        s_cmp_lt_u32 {s(S_T2)}, {s(S_T3)}
        s_cbranch_scc1 L_roles
        s_sub_u32 {s(S_T2)}, {s(S_T2)}, {s(S_T3)}""")
    A("s_branch L_end")
    A.label("L_roles")
    gen_rec.trace(A, 0, 6)
    A(f"s_cmp_eq_u32 s3, 0")
    A(f"s_cbranch_scc1 {'L_role_rec' if 'rec' in roles else 'L_end'}")
    A(f"s_cmp_le_u32 s3, 4")
    A(f"s_cbranch_scc1 {'L_role_p1' if 'p1' in roles else 'L_end'}")
    A(f"s_branch {'L_role_p2' if 'p2' in roles else 'L_end'}")

def gen(roles=("rec", "p1", "p2"), n_init=96, dbg=False, timing=False, stamps=False, name=NAME):
    A = Asm(); TB = Tables()
    dispatcher(A, roles)
    if "p1" in roles:
        A.label("L_role_p1")
        if "cpf" in gen_rec.EXP: code_prefetch(A, None, 5, 200, 201)
        for _ in range(gen_rec.PRM.get("slp1", 0)): A("s_sleep 32")
        A(f"""s_sub_u32 {s(S_T0)}, s3, 1
        s_lshl_b32 {s(S_T0)}, {s(S_T0)}, 3
        s_and_b32 {s(S_H)}, {s(S_T1)}, 7
        s_add_u32 {s(S_H)}, {s(S_H)}, {s(S_T0)}
        s_lshr_b32 {s(gen_p1.S_TBK)}, {s(S_T1)}, 3""")
        sv = gen_rec.DBGT; gen_rec.DBGT = {}
        gen_p1.gen_p1(A, TB, n_init)
        gen_rec.DBGT = sv
    if "p2" in roles:
        A.label("L_role_p2")
        if "cpf" in gen_rec.EXP: code_prefetch(A, None, 7, 200, 201)
        for _ in range(gen_rec.PRM.get("slp2", 0)): A("s_sleep 32")
        A(f"s_sub_u32 {s(gen_p2.S_GRP)}, s3, 5")
        A(f"s_mov_b32 {s(gen_p2.S_TK)}, {s(S_T1)}")
        sv = gen_rec.DBGT; gen_rec.DBGT = {2: 52}
        gen_p2.gen_p2(A, TB, n_init)
        gen_rec.DBGT = sv
    if "rec" in roles:
        A.label("L_role_rec")
        if "cpf" in gen_rec.EXP: code_prefetch(A, None, 6, 90, 91)
        A(f"s_mov_b32 {s(S_H)}, {s(S_T1)}")
        A(f"s_mov_b32 {s(S_MODE)}, 0")
        gen_prologue(A, TB)
        gen_loop(A, dbg, timing, stamps, n_init)
    A.label("L_end")
    A("s_waitcnt vmcnt(0)")
    A("s_endpgm")
    return f"; @launch grid=(256,1,1) block=(256,1,1) lds={LDS_TOTAL}\n" + HEADER.format(name=name) + A.text() + TB.text() + FOOTER.format(name=name)

if __name__ == "__main__":
    open("main.s", "w").write(gen(name="main_kernel"))
    hdr = open("gated_mix__memory_aug_recurrent_mem_tr__moe_arch_mod__prompt.s.ref").read().split("; @launch")[0]
    open("gated_mix__memory_aug_recurrent_mem_tr__moe_arch_mod__prompt.s", "w").write(hdr + gen())
```

```python
from asmlib import *
from layout import *
from gen_rec import add64, f32bits, dec, spin_guard, S_WQ, S_WK, S_WV, S_WS, S_DBG, S_H, S_W, S_SPIN, S_T0, S_T1, S_T2, S_T3, S_SRC, S_TB, LT
import math
import gen_rec
S_X = 4
S_TBK = 22
S_IT = 23
S_C = 24
S_SEG = 25
S_O = 28
ACC = 64
XF = 0
WF = 128
NRING = 8
LEADC = 4
from gen_p2 import wait_counter
from gen_rec import code_prefetch

def gen_p1(A, TB, n_init):
    A.comment("=== phase 1 role ===")
    A.label("L_p1")
    def f_xo(tid):
        w, l = tid >> 6, tid & 63
        return (32 * w + (l & 31)) * 1024 + (l >> 5) * 16
    def f_dma(tid):
        w, l, n, g = dec(tid)
        return (16 * w + g) * 8192 + ((n ^ (g << 2)) * 16)
    def f_tr(ft):
        def f(tid):
            w, l, n, G = dec(tid); r, c = n >> 2, n & 3
            return (8 * (G >> 1) + r) * 256 + ((ft ^ r) * 64) + (G & 1) * 32 + 8 * c
        return f
    def f_ko(tid):
        l = tid & 63; tok, hi = l & 31, l >> 5
        return (tid >> 6) * 32 * 8192 + (tok >> 4) * 4096 + (hi * 16 + (tok & 15)) * 16
    def f_vo(tid):
        l = tid & 63; e, hi = l & 31, l >> 5
        return (tid >> 6) * 32 * 8192 + (e >> 4) * 1024 + (hi * 16 + (e & 15)) * 16
    g0 = TB.add([f_xo, f_dma, f_ko, f_vo])
    g1 = TB.add([f_tr(0), f_tr(1), f_tr(2), f_tr(3)])
    g2 = TB.add([lambda t: (t >> 6) * 32 * 8192 + (t & 63) * 16, lambda t: (t & 31) - 4 * ((t >> 5) & 1),
                 lambda t: (t >> 6) * 32 * 128 + (t & 31) * 4, lambda t: 0])
    V_XO, V_DMA, V_KO, V_VO, V_TR, V_LIN, V_THR, V_STO, V_Z = 4, 5, 6, 7, 8, 12, 13, 14, 15
    V_TRB = 16
    A(f"""v_lshrrev_b32 v1, 6, v0
    v_lshlrev_b32 v2, 4, v0
    s_nop 0
    v_readfirstlane_b32 {s(S_W)}, v1""")
    TB.base(A, S_TB)
    for g, r in [(g0, 4), (g1, 8), (g2, 12)]: TB.load(A, g, r, 2, S_TB, S_SRC)
    A(f"s_mov_b32 {s(S_C)}, {f32bits(128**-0.5 * math.log2(math.e)):#x}")
    A(f"s_mov_b32 {s(S_IT)}, 0")
    A(f"s_lshl_b32 {s(S_T0)}, {s(S_H)}, 8")
    for b in (S_WQ, S_WK, S_WV): add64(A, b, b, s(S_T0))
    code_prefetch(A, "L_p1_task", 6, 26, 21)
    A("s_waitcnt vmcnt(1)")
    gen_rec.trace(A, 1, 32)
    if gen_rec.TRACE:
        A(f"v_mov_b32 v33, {s(S_TBK)}")
        A(f"global_store_dword v32, v33, {s(S_WS,2)} offset:4")

    if n_init:
        def f_md(tid):
            w, l = tid >> 6, tid & 63
            return (128 * w + (l >> 3)) * 8192 + (l & 7) * 16
        def f_mt(tid):
            w, l, n, G = dec(tid); r, c = n >> 2, n & 3
            return (8 * (G >> 1) + r) * 128 + (G & 1) * 32 + 8 * c
        gm = TB.add([f_md, f_mt, lambda t: 0, lambda t: 0])
        TB.load(A, gm, 20, 2, S_TB, S_SRC)
        V_MD, V_MT = 20, 21
        S_MB = 40
        A(f"""s_and_b32 {s(S_T0)}, {s(S_TBK)}, 1
        s_lshl_b32 {s(S_T0)}, {s(S_T0)}, 7
        s_cmp_lt_u32 {s(S_TBK)}, 2
        s_cselect_b32 {s(S_MB)}, {s(S_WK)}, {s(S_WV)}
        s_cselect_b32 {s(S_MB+1)}, {s(S_WK+1)}, {s(S_WV+1)}""")
        add64(A, S_MB, S_MB, s(S_T0))
        A(f"s_lshl_b32 {s(S_T2)}, {s(S_W)}, 14")
        A("s_waitcnt vmcnt(0)")
        for i in range(16):
            A(f"s_add_u32 m0, {s(S_T2)}, {i*1024}")
            A("s_nop 0")
            A(f"global_load_lds_dwordx4 v{V_MD}, {s(S_MB,2)}")
            add64(A, S_MB, S_MB, 8 * 8192)
        M2 = "mini2" in gen_rec.EXP
        for ks in range(32): A(f"global_load_dwordx4 {a(4*ks,4)}, {v(V_XO)}, {s(S_X,2)} offset:{32*ks}")
        add64(A, S_MB, S_X, 131072)
        A("s_waitcnt vmcnt(32)")
        A("s_barrier")
        A.label("L_mini_loop")
        NSG = gen_rec.PRM.get("nsg", 1)
        if NSG == 2:
            for ks in range(24): A(f"global_load_dwordx4 {a(128+4*ks,4)}, {v(V_XO)}, {s(S_MB,2)} offset:{32*ks}")
        macc = lambda sg, ft: v(ACC + 32 * sg + 16 * ft, 16)
        for isv in range(2):
            lab = A.uid("Lmi")
            if isv == 0:
                A(f"s_cmp_lt_u32 {s(S_TBK)}, 2")
                A(f"s_cbranch_scc0 L_mini_v")
            else:
                A.label("L_mini_v")
            for sg in range(NSG):
                if NSG == 1: pass
                elif sg == 0:
                    A("s_waitcnt vmcnt(24)")
                    for ks in range(24, 32): A(f"global_load_dwordx4 {a(128+4*ks,4)}, {v(V_XO)}, {s(S_MB,2)} offset:{32*ks}")
                else:
                    A("s_waitcnt vmcnt(0)")
                lt = LT(A)
                seq = [(ks, ft) for ks in range(32) for ft in range(2)]
                def rd(i):
                    ks, ft = seq[i]; r = 32 + 4 * (i % 8)
                    for qd in range(2):
                        A(lt.op(f"r{i}", f"ds_read_b64_tr_b16 {v(r+2*qd,2)}, v{V_MT} offset:{(16*ks+4*qd)*128+ft*64}"))
                for i in range(6): rd(i)
                for i, (ks, ft) in enumerate(seq):
                    if i + 6 < len(seq): rd(i + 6)
                    w_ = lt.wait(f"r{i}")
                    if w_: A(w_)
                    if NSG == 1 and ft == 0 and ks % 4 == 0: A(f"s_waitcnt vmcnt({28-ks})")
                    wf, xf = v(32 + 4 * (i % 8), 4), a(128 * sg + 4 * ks, 4)
                    cin = "0" if ks == 0 else macc(sg, ft)
                    if isv == 0: A(f"v_mfma_f32_32x32x16_bf16 {macc(sg,ft)}, {wf}, {xf}, {cin}")
                    else: A(f"v_mfma_f32_32x32x16_bf16 {macc(sg,ft)}, {xf}, {wf}, {cin}")
            A("s_nop 7")
            A("s_nop 3")
            for sg in range(NSG):
                A(f"""s_lshl_b32 {s(S_T0)}, {s(S_IT)}, 7
                s_add_u32 {s(S_T0)}, {s(S_T0)}, {s(S_H)}
                s_add_u32 {s(S_T0)}, {s(S_T0)}, {128*sg}
                s_lshl_b32 {s(S_T0)}, {s(S_T0)}, 13
                s_and_b32 {s(S_T1)}, {s(S_TBK)}, 1
                s_lshl_b32 {s(S_T1)}, {s(S_T1)}, {11 if isv == 0 else 12}
                s_add_u32 {s(S_T0)}, {s(S_T0)}, {s(S_T1)}
                s_add_u32 {s(S_T0)}, {s(S_T0)}, {WS_VX if isv else WS_KX}""")
                add64(A, S_MB, S_WS, s(S_T0))
                for ft in range(2):
                    b = ACC + 32 * sg + 16 * ft
                    if isv == 0:
                        for k in range(16): A(f"v_mul_f32 v{b+k}, {s(S_C)}, v{b+k}")
                        for k in range(8): A(f"v_cvt_pk_bf16_f32 v{b+k}, v{b+2*k}, v{b+2*k+1}")
                        for f in range(2): A(f"global_store_dwordx4 {v(V_KO)}, {v(b+4*f,4)}, {s(S_MB,2)} offset:{ft*1024+f*512} sc1")
                    else:
                        for k, q in enumerate((0, 2, 1, 3)):
                            A(f"v_cvt_pk_bf16_f32 v{b+2*k}, v{b+4*q}, v{b+4*q+1}")
                            A(f"v_cvt_pk_bf16_f32 v{b+2*k+1}, v{b+4*q+2}, v{b+4*q+3}")
                        for f in range(2): A(f"global_store_dwordx4 {v(V_VO)}, {v(b+4*f,4)}, {s(S_MB,2)} offset:{ft*2048+f*512} sc1")
            if isv == 0: A("s_branch L_mini_done")
        A.label("L_mini_done")
        A(f"""v_mov_b32 v32, -1
        v_mov_b32 v33, -1
        v_mov_b32 v34, -1
        v_mov_b32 v35, -1
        v_and_b32 v36, 0x3ff, v12
        s_lshl_b32 {s(S_T0)}, {s(S_W)}, 5
        s_add_u32 {s(S_T0)}, {s(S_T0)}, {s(S_H)}
        s_lshl_b32 {s(S_T1)}, {s(S_IT)}, 7
        s_add_u32 {s(S_T0)}, {s(S_T0)}, {s(S_T1)}
        s_lshl_b32 {s(S_T0)}, {s(S_T0)}, 12
        s_lshl_b32 {s(S_T1)}, {s(S_TBK)}, 10
        s_add_u32 {s(S_T0)}, {s(S_T0)}, {s(S_T1)}
        s_add_u32 {s(S_T0)}, {s(S_T0)}, {WS_KV}""")
        add64(A, S_MB, S_WS, s(S_T0))
        A(f"global_store_dwordx4 v36, v[32:35], {s(S_MB,2)} sc1")
        if NSG == 2:
            add64(A, S_MB, S_MB, 128 * 4096)
            A(f"global_store_dwordx4 v36, v[32:35], {s(S_MB,2)} sc1")
        A(f"""s_waitcnt vmcnt(0)
        s_barrier
        s_cmp_eq_u32 {s(S_W)}, 0
        s_cbranch_scc0 L_mini_nf""")
        wait_counter(A, DBG_INIT, n_init, 60, V_Z)
        A(f"""s_lshl_b32 {s(S_T0)}, {s(S_H)}, 2
        s_add_u32 {s(S_T0)}, {s(S_T0)}, {s(S_TBK)}
        s_lshl_b32 {s(S_T0)}, {s(S_T0)}, 7
        s_add_u32 {s(S_T0)}, {s(S_T0)}, {WS_FLAGS+FL_MINI}
        s_lshl_b32 {s(S_T1)}, {s(S_IT)}, 6
        s_add_u32 {s(S_T0)}, {s(S_T0)}, {s(S_T1)}
        v_mov_b32 v60, {s(S_T0)}
        v_mov_b32 v61, 1
        global_store_dword v60, v61, {s(S_WS,2)} sc1""")
        A.label("L_mini_nf")
        if M2:
            A(f"s_cmp_eq_u32 {s(S_IT)}, 0")
            A("s_cbranch_scc0 L_mini_end")
            A(f"s_mov_b32 {s(S_IT)}, 1")
            add64(A, S_MB, S_X, 131072)
            for ks in range(32): A(f"global_load_dwordx4 {a(4*ks,4)}, {v(V_XO)}, {s(S_MB,2)} offset:{32*ks}")
            A("s_branch L_mini_loop")
            A.label("L_mini_end")
            A(f"s_mov_b32 {s(S_IT)}, 0")
        gen_rec.trace(A, 3 + 0, 32) if False else None
    A.label("L_p1_task")
    S_XB = 38
    A(f"s_lshl_b32 {s(S_T0)}, {s(S_TBK)}, 17")
    add64(A, S_XB, S_X, s(S_T0))
    def dma(c):
        buf = c % 3
        L = []
        L.append("\n".join(f"global_load_dwordx4 {a(XF+4*ks,4)}, {v(V_XO)}, {s(S_XB,2)} offset:{32*ks}" for ks in range(4*c, 4*c+4)) + f"\ns_lshl_b32 {s(S_T2)}, {s(S_W)}, 12")
        L.append(f"s_add_u32 {s(S_T2)}, {s(S_T2)}, {buf*49152}")
        for m, b in enumerate((S_WQ, S_WK, S_WV)):
            for i in range(4):
                L.append(f"s_add_u32 {s(S_SRC)}, {s(b)}, {(64*c+4*i)*8192}")
                L.append(f"s_addc_u32 {s(S_SRC+1)}, {s(b+1)}, 0")
                L.append(f"s_add_u32 m0, {s(S_T2)}, {m*16384+i*1024}")
                L.append(f"s_nop 0\nglobal_load_lds_dwordx4 {v(V_DMA)}, {s(S_SRC,2)}" if "nodma" not in gen_rec.EXP else "s_nop 0")
        return L
    for c in range(2):
        for x in dma(c): A(x)
    A(f"""s_lshl_b32 {s(S_T0)}, {s(S_TBK)}, 7
    s_add_u32 {s(S_T0)}, {s(S_T0)}, {s(S_H)}
    s_lshl_b32 {s(S_T1)}, {s(S_T0)}, 13""")
    add64(A, S_O, S_WS, s(S_T1))
    add64(A, S_O + 2, S_O, WS_VX + 4096)
    add64(A, S_O + 4, S_O, WS_Q + 4096)
    add64(A, S_O + 6, S_O, WS_OX + 4096)
    A(f"s_lshl_b32 {s(S_T1)}, {s(S_T0)}, 7")
    A(f"s_add_u32 {s(S_T1)}, {s(S_T1)}, {WS_ST}")
    add64(A, S_O + 8, S_WS, s(S_T1))
    acc = lambda t: v(ACC + 16 * t, 16)
    A(f"""s_lshl_b32 {s(S_T1)}, {s(S_W)}, 5
    s_add_u32 {s(S_T1)}, {s(S_T1)}, {s(S_T0)}
    s_lshl_b32 {s(S_T1)}, {s(S_T1)}, 12
    s_add_u32 {s(S_T1)}, {s(S_T1)}, {WS_KV}""")
    add64(A, S_O + 12, S_WS, s(S_T1))
    for c in range(8):
        buf = c % 3
        for ft in range(4): A(f"v_add_u32 v{V_TRB+ft}, {buf*49152}, v{V_TR+ft}")
        A("s_waitcnt vmcnt(16)" if c < 7 else "s_waitcnt vmcnt(0)")
        A("s_barrier")
        if "ctrace" in gen_rec.EXP:
            ln = A.uid("Lct")
            A(f"s_cmp_eq_u32 {s(S_IT)}, 0")
            A(f"s_cbranch_scc0 {ln}")
            A("s_add_u32 s2, s2, 256")
            gen_rec.trace(A, c, 60)
            A("s_sub_u32 s2, s2, 256")
            A.label(ln)
        if False:
            ln = A.uid("Lld")
            A(f"""s_cmp_eq_u32 {s(S_TBK)}, 0
            s_cbranch_scc0 {ln}
            s_cmp_eq_u32 {s(S_W)}, 3
            s_cbranch_scc0 {ln}""")
            wait_counter(A, DBG_INIT, n_init, 60, V_Z)
            A(f"""s_lshl_b32 {s(S_T0)}, {s(S_H)}, 7
            s_add_u32 {s(S_T0)}, {s(S_T0)}, {WS_FLAGS+FL_P1+64}
            v_mov_b32 v60, {s(S_T0)}
            v_mov_b32 v61, 1
            global_store_dword v60, v61, {s(S_WS,2)} sc1""")
            A.label(ln)
        lt = LT(A)
        seq = [(kk, t) for kk in range(4) for t in range(12)]
        def rd(i):
            kk, t = seq[i]; m, ft = t >> 2, t & 3
            r = WF + 4 * (i % NRING)
            for qd in range(2 if "nord" not in gen_rec.EXP else 0):
                A(lt.op(f"r{i}", f"ds_read_b64_tr_b16 {a(r+2*qd,2)}, v{V_TRB+ft} offset:{m*16384+(16*kk+4*qd)*256}"))
        PRE = NRING - 2
        for i in range(PRE): rd(i)
        dm = dma(c + 2) if c + 2 < 8 else []
        units = [dm[:6]] + [dm[2 + 4 * k: 6 + 4 * k] for k in range(1, 12)] if dm else []
        for i, (kk, t) in enumerate(seq):
            if i + PRE < len(seq): rd(i + PRE)
            w_ = lt.wait(f"r{i}") if "nord" not in gen_rec.EXP else None
            if w_: A(w_)
            ks = 4 * c + kk
            wf, xf = a(WF + 4 * (i % NRING), 4), a(XF + 4 * ks, 4)
            cin = "0" if ks == 0 else acc(t)
            if "nomf" in gen_rec.EXP and ks > 0: pass
            elif t < 8: A(f"v_mfma_f32_32x32x16_bf16 {acc(t)}, {wf}, {xf}, {cin}")
            else: A(f"v_mfma_f32_32x32x16_bf16 {acc(t)}, {xf}, {wf}, {cin}")
            if i % 4 == 1 and units and i // 4 < len(units):
                for x in units[i // 4]: A(x)
    A(f"s_add_u32 {s(S_T3)}, {s(S_IT)}, 8")
    gen_rec.trace(A, s(S_T3), 32)
    A("s_nop 7")
    A("s_nop 3")
    SA, PF = 32, 48
    def packq(b, d):
        for k, q in enumerate((0, 2, 1, 3)):
            A(f"v_cvt_pk_bf16_f32 v{d+2*k}, v{b+4*q}, v{b+4*q+1}")
            A(f"v_cvt_pk_bf16_f32 v{d+2*k+1}, v{b+4*q+2}, v{b+4*q+3}")
    def flag(which, first_wait):
        ln = A.uid("Lp1n")
        A(f"""s_waitcnt vmcnt(0)
        s_barrier
        s_cmp_eq_u32 {s(S_W)}, 0
        s_cbranch_scc0 {ln}""")
        if first_wait:
            A(f"""s_cmp_eq_u32 {s(S_IT)}, 0
            s_cbranch_scc0 L_p1_fl
            s_mov_b32 {s(S_SPIN)}, 0""")
            A.label("L_p1_iw")
            A(f"global_load_dword v60, {v(V_Z)}, {s(S_DBG,2)} offset:{DBG_INIT} sc1")
            spin_guard(A)
            A(f"""s_waitcnt vmcnt(0)
            v_readfirstlane_b32 {s(S_T0)}, v60
            s_cmp_ge_u32 {s(S_T0)}, {n_init}
            s_cbranch_scc0 L_p1_iw""")
            A.label("L_p1_fl")
        A(f"""s_lshl_b32 {s(S_T0)}, {s(S_TBK)}, 5
        s_add_u32 {s(S_T0)}, {s(S_T0)}, {s(S_H)}
        s_lshl_b32 {s(S_T0)}, {s(S_T0)}, 7
        s_add_u32 {s(S_T0)}, {s(S_T0)}, {WS_FLAGS+which}
        v_mov_b32 v60, {s(S_T0)}
        v_mov_b32 v61, 1
        global_store_dword v60, v61, {s(S_WS,2)} sc1""")
        A.label(ln)
    A("""v_mov_b32 v32, -1
    v_mov_b32 v33, -1
    v_mov_b32 v34, -1
    v_mov_b32 v35, -1
    v_and_b32 v36, 0x3ff, v12""")
    if n_init:
        A(f"s_cmp_lt_u32 {s(S_TBK)}, {2 if 'mini2' in gen_rec.EXP else gen_rec.PRM.get('nsg', 1)}")
        A("s_cbranch_scc1 L_p1_nosent")
    for k in range(4): A(f"global_store_dwordx4 v36, v[32:35], {s(S_O+12,2)} offset:{1024*k} sc1")
    A.label("L_p1_nosent")
    for t in range(4):
        b = ACC + 64 + 16 * t
        for k in range(16): A(f"v_mul_f32 v{b+k}, {s(S_C)}, v{b+k}")
        for k in range(8): A(f"v_cvt_pk_bf16_f32 v{b+k}, v{b+2*k}, v{b+2*k+1}")
        for f in range(2):
            A(f"global_store_dwordx4 {v(V_KO)}, {v(b+4*f,4)}, {s(S_O,2)} offset:{t*1024+f*512} sc1")
    for t in range(4):
        b = ACC + 128 + 16 * t
        packq(b, b)
        for f in range(2): A(f"global_store_dwordx4 {v(V_VO)}, {v(b+4*f,4)}, {s(S_O+2,2)} offset:{t*2048+f*512-4096} sc1")
    for t in range(4):
        b = ACC + 16 * t
        for k in range(8): A(f"v_cvt_pk_bf16_f32 v{b+k}, v{b+2*k}, v{b+2*k+1}")
        for f in range(2):
            A(f"v_mfma_f32_32x32x16_bf16 {v(SA,16)}, {v(ACC+64+16*t+4*f,4)}, {v(b+4*f,4)}, {'0' if t == 0 and f == 0 else v(SA,16)}")
    flag(FL_P1, True)
    A(f"s_add_u32 {s(S_T3)}, {s(S_IT)}, 12")
    gen_rec.trace(A, s(S_T3), 60)
    for t in range(4):
        b = ACC + 16 * t
        for f in range(2): A(f"global_store_dwordx4 {v(V_LIN)}, {v(b+4*f,4)}, {s(S_O+4,2)} offset:{(2*t+f)*1024-4096} sc1")
    NEG, m, t1, l = 56, 57, 58, 59
    A(f"v_mov_b32 v{NEG}, 0xf149f2ca")
    for r in range(16):
        key = (r & 3) + 8 * (r >> 2)
        A(f"v_cmp_le_i32 vcc, {key}, {v(V_THR)}")
        A(f"v_cndmask_b32 v{SA+r}, v{NEG}, v{SA+r}, vcc")
    A(f"v_max3_f32 v{m}, v{SA}, v{SA+1}, v{SA+2}")
    for r in range(3, 15, 2): A(f"v_max3_f32 v{m}, v{m}, v{SA+r}, v{SA+r+1}")
    A(f"""v_max_f32 v{m}, v{m}, v{SA+15}
    v_mov_b32 v{t1}, v{m}
    v_permlane32_swap_b32 v{m}, v{t1}
    v_max_f32 v{m}, v{m}, v{t1}""")
    for r in range(16): A(f"v_sub_f32 v{SA+r}, v{SA+r}, v{m}")
    for r in range(16): A(f"v_exp_f32 v{SA+r}, v{SA+r}")
    packq(SA, PF)
    for t in range(4):
        b = ACC + 128 + 16 * t
        for f in range(2):
            A(f"v_mfma_f32_32x32x16_bf16 {acc(t)}, {v(b+4*f,4)}, {v(PF+4*f,4)}, {'0' if f == 0 else acc(t)}")
    A(f"v_add_f32 v{l}, v{SA}, v{SA+1}")
    for r in range(2, 16): A(f"v_add_f32 v{l}, v{l}, v{SA+r}")
    A(f"""v_mov_b32 v{t1}, v{l}
    v_permlane32_swap_b32 v{l}, v{t1}
    v_add_f32 v{l}, v{l}, v{t1}
    v_log_f32 v{t1}, v{l}
    v_rcp_f32 v{l}, v{l}
    v_add_f32 v{t1}, v{t1}, v{m}
    global_store_dword {v(V_STO)}, v{t1}, {s(S_O+8,2)} sc1""")
    for t in range(4):
        b = ACC + 16 * t
        for k in range(16): A(f"v_mul_f32 v{b+k}, v{b+k}, v{l}")
        for k in range(8): A(f"v_cvt_pk_bf16_f32 v{b+k}, v{b+2*k}, v{b+2*k+1}")
        for f in range(2): A(f"global_store_dwordx4 {v(V_LIN)}, {v(b+4*f,4)}, {s(S_O+6,2)} offset:{(2*t+f)*1024-4096} sc1")
    flag(FL_P1B, False)
    A.label("L_p1_next")
    A(f"s_add_u32 {s(S_T3)}, {s(S_IT)}, 4")
    gen_rec.trace(A, s(S_T3), 32)
    A(f"""s_add_u32 {s(S_TBK)}, {s(S_TBK)}, 4
    s_add_u32 {s(S_IT)}, {s(S_IT)}, 1
    s_cmp_lt_u32 {s(S_IT)}, 4
    s_cbranch_scc1 L_p1_task
    s_branch L_end""")
```

```python
from asmlib import *
from layout import *
import gen_rec
from gen_rec import add64, f32bits, dec, spin_guard, S_WO, S_WS, S_DBG, S_H, S_W, S_SPIN, S_T0, S_T1, S_T2, S_T3, S_SRC, S_TB, LT
import math
S_X = 4
S_GRP, S_KS, S_NS, S_TK = 22, 23, 24, 25
S_C = 26
S_SEG = 28
S_PH = 29
S_OUT, S_WR, S_WG, S_WU, S_WD, S_GW = 30, 32, 34, 36, 38, 40
S_IDX = 42
S_RS = 66
S_B0, S_B1, S_B2, S_B3 = 74, 76, 78, 80
S_PAR = 82
S_FIRST = 83
S_OB = 84
LOG2E = math.log2(math.e)

def wait_counter(A, off, n, vt, vz):
    l, l2 = A.uid("Lwc"), A.uid("Lwc")
    A(f"s_mov_b32 {s(S_SPIN)}, 0")
    A(f"s_branch {l2}")
    A.label(l)
    A("s_sleep 8")
    A.label(l2)
    A(f"global_load_dword v{vt}, v{vz}, {s(S_DBG,2)} offset:{off} sc1")
    spin_guard(A)
    A(f"""s_waitcnt vmcnt(0)
    v_readfirstlane_b32 {s(S_T0)}, v{vt}
    s_cmp_ge_u32 {s(S_T0)}, {n}
    s_cbranch_scc0 {l}""")

def wait_flags(A, vaddr, vt, sleep=2):
    l, l2 = A.uid("Lwf"), A.uid("Lwf")
    A(f"s_mov_b32 {s(S_SPIN)}, 0")
    A(f"s_branch {l2}")
    A.label(l)
    A(f"s_sleep {sleep}")
    A.label(l2)
    A(f"global_load_dword v{vt}, v{vaddr}, {s(S_WS,2)} sc1")
    spin_guard(A)
    A(f"""s_waitcnt vmcnt(0)
    v_cmp_ne_u32 vcc, 1, v{vt}
    s_cbranch_vccnz {l}""")

def set_flag(A, soff, vt):
    ln = A.uid("Lsf")
    A(f"""s_waitcnt vmcnt(0)
    s_barrier
    s_cmp_eq_u32 {s(S_W)}, 0
    s_cbranch_scc0 {ln}
    v_mov_b32 v{vt}, {soff}
    v_mov_b32 v{vt+1}, 1
    global_store_dword v{vt}, v{vt+1}, {s(S_WS,2)} sc1""")
    A.label(ln)

def rbf(A, d, x):
    A(f"v_cvt_pk_bf16_f32 v{d}, v{x}, v{x}")
    A(f"v_and_b32 v{d}, 0xffff0000, v{d}")

def sigmoid(A, d, x):
    A(f"v_mul_f32 v{d}, {f32bits(-LOG2E):#x}, v{x}")
    A(f"v_exp_f32 v{d}, v{d}")
    A(f"v_add_f32 v{d}, 1.0, v{d}")
    A(f"v_rcp_f32 v{d}, v{d}")

def allreduce(A, op, r, t):
    for c in ("quad_perm:[1,0,3,2]", "quad_perm:[2,3,0,1]", "row_ror:4", "row_ror:8"):
        A(f"{op}_dpp v{t}, v{r}, v{r} {c} row_mask:0xf bank_mask:0xf")
        A(f"v_mov_b32 v{r}, v{t}")
    for p in ("v_permlane16_swap_b32", "v_permlane32_swap_b32"):
        A(f"v_mov_b32 v{t}, v{r}")
        A(f"{p} v{r}, v{t}")
        A(f"{op} v{r}, v{r}, v{t}")

def gen_init(A, idx_sgpr, n_wg):
    A.comment("--- init job")
    A(f"""v_lshlrev_b32 v8, 4, v0
    v_mov_b32 v12, 0
    v_mov_b32 v13, 0
    v_mov_b32 v14, 0
    v_mov_b32 v15, 0
    v_mov_b32 v16, -1
    v_mov_b32 v17, -1
    v_mov_b32 v18, -1
    v_mov_b32 v19, -1""")
    for base, units, reg in ((WS_FLAGS, FL_TOTAL // 4096, 12), (WS_P2, 768, 12)):
        l, le = A.uid("Lin"), A.uid("Lin")
        A(f"s_mov_b32 {s(S_T0)}, {idx_sgpr}")
        A.label(l)
        A(f"""s_cmp_ge_u32 {s(S_T0)}, {units}
        s_cbranch_scc1 {le}
        s_lshl_b32 {s(S_T1)}, {s(S_T0)}, 12
        s_add_u32 {s(S_T1)}, {s(S_T1)}, {base}""")
        add64(A, S_SRC, S_WS, s(S_T1))
        A(f"""global_store_dwordx4 v8, {v(reg,4)}, {s(S_SRC,2)} sc1
        s_add_u32 {s(S_T0)}, {s(S_T0)}, {n_wg}
        s_branch {l}""")
        A.label(le)
    ln = A.uid("Lin")
    A(f"""s_waitcnt vmcnt(0)
    s_barrier
    v_cmp_eq_u32 vcc, 0, v0
    s_and_saveexec_b64 {s(S_SRC,2)}, vcc
    s_cbranch_execz {ln}
    v_mov_b32 v16, 1
    global_atomic_add v12, v16, {s(S_DBG,2)} offset:{DBG_INIT}""")
    A.label(ln)
    A("s_mov_b64 exec, -1")

def gen_m1(A, n_init):
    A.comment("--- M1: router/gate")
    A(f"""s_lshl_b32 {s(S_T3)}, {s(S_GRP)}, 5
    s_add_u32 {s(S_T3)}, {s(S_T3)}, {s(S_TK)}
    s_lshl_b32 {s(S_T0)}, {s(S_T3)}, 15
    s_lshl_b32 {s(S_T1)}, {s(S_W)}, 13
    s_add_u32 {s(S_T0)}, {s(S_T0)}, {s(S_T1)}
    s_add_u32 {s(S_T0)}, {s(S_T0)}, 4096""")
    add64(A, S_B0, S_X, s(S_T0))
    A(f"global_load_dwordx4 v[8:11], v2, {s(S_WR,2)}")
    A(f"global_load_dwordx4 v[12:15], v2, {s(S_GW,2)}")
    for k in range(8): A(f"global_load_dwordx4 {v(64+4*k,4)}, v2, {s(S_B0,2)} offset:{1024*k-4096}")
    A("s_waitcnt vmcnt(8)")
    for j in range(4):
        A(f"v_lshlrev_b32 v{16+2*j}, 16, v{8+j}")
        A(f"v_and_b32 v{17+2*j}, 0xffff0000, v{8+j}")
        A(f"v_lshlrev_b32 v{24+2*j}, 16, v{12+j}")
        A(f"v_and_b32 v{25+2*j}, 0xffff0000, v{12+j}")
    RK, GG = 48, 49
    for k in range(8):
        A(f"s_waitcnt vmcnt({7-k})")
        for j in range(4):
            A(f"v_lshlrev_b32 v{32+2*j}, 16, v{64+4*k+j}")
            A(f"v_and_b32 v{33+2*j}, 0xffff0000, v{64+4*k+j}")
        A(f"v_mul_f32 v40, v32, v16")
        for j in range(1, 8): A(f"v_fmac_f32 v40, v{32+j}, v{16+j}")
        for j in range(8): A(f"v_mul_f32 v{32+j}, v{32+j}, v{24+j}")
        for j in range(4): A(f"v_cvt_pk_bf16_f32 v{32+j}, v{32+2*j}, v{33+2*j}")
        A(f"v_dot2_f32_bf16 v41, v32, {s(S_T2)}, 0" if False else "v_mov_b32 v42, 0x3f803f80")
        A("v_dot2_f32_bf16 v41, v32, v42, 0")
        for j in range(1, 4): A(f"v_dot2_f32_bf16 v41, v{32+j}, v42, v41")
        allreduce(A, "v_add_f32", 40, 43)
        allreduce(A, "v_add_f32", 41, 43)
        A(f"v_cmp_eq_u32 vcc, {k}, v1")
        A(f"v_cndmask_b32 v{RK}, v{RK}, v40, vcc")
        A(f"v_cndmask_b32 v{GG}, v{GG}, v41, vcc")
    A(f"""v_cvt_pk_bf16_f32 v50, v{RK}, v{RK}
    v_and_b32 v50, 0xffff0000, v50
    v_ashrrev_i32 v51, 31, v50
    v_or_b32 v51, 0x80000000, v51
    v_xor_b32 v50, v50, v51
    v_and_b32 v50, 0xffff0000, v50
    s_lshl_b32 {s(S_T0)}, {s(S_T3)}, 5
    s_lshl_b32 {s(S_T1)}, {s(S_W)}, 3
    s_add_u32 {s(S_T0)}, {s(S_T0)}, {s(S_T1)}
    v_add_u32 v52, {s(S_T0)}, v1
    v_sub_u32 v53, 0xffff, v52
    v_or_b32 v50, v50, v53""")
    rbf(A, 54, GG)
    sigmoid(A, 55, 54)
    rbf(A, 54, 55)
    A("v_sub_f32 v55, 1.0, v54")
    rbf(A, 55, 55)
    A(f"""v_lshlrev_b32 v56, 2, v52
    v_add_u32 v56, {WS_RKEY}, v56
    v_lshlrev_b32 v57, 3, v52
    v_add_u32 v57, {WS_G}, v57
    s_mov_b64 exec, 0xff
    global_store_dword v56, v50, {s(S_WS,2)} sc1
    global_store_dwordx2 v57, v[54:55], {s(S_WS,2)} sc1
    s_mov_b64 exec, -1""")
    wait_counter(A, DBG_INIT, n_init, 58, 3)
    A(f"s_lshl_b32 {s(S_T1)}, {s(S_T3)}, 7")
    A(f"s_add_u32 {s(S_T1)}, {s(S_T1)}, {WS_FLAGS+FL_M1}")
    set_flag(A, s(S_T1), 58)

def gen_top8(A, n_init):
    A.comment("--- top8")
    wait_counter(A, DBG_INIT, n_init, 58, 3)
    A(f"v_lshlrev_b32 v8, 7, v1")
    A(f"v_add_u32 v8, {WS_FLAGS+FL_M1}, v8")
    wait_flags(A, 8, 9)
    add64(A, S_B0, S_WS, WS_RKEY + 4096)
    K = 64
    for k in range(8): A(f"global_load_dwordx4 {v(K+4*k,4)}, v2, {s(S_B0,2)} offset:{1024*k-4096} sc1")
    A("s_waitcnt vmcnt(0)")
    A(f"s_mov_b32 {s(S_T1)}, 0")
    for rnd in range(8):
        A(f"v_max3_u32 v8, v{K}, v{K+1}, v{K+2}")
        for j in range(3, 31, 2): A(f"v_max3_u32 v8, v8, v{K+j}, v{K+j+1}")
        A(f"v_max_u32 v8, v8, v{K+31}")
        allreduce(A, "v_max_u32", 8, 9)
        A(f"v_readfirstlane_b32 {s(S_T0)}, v8")
        A(f"s_add_u32 {s(S_T1)}, {s(S_T1)}, {s(S_T0)}")
        A(f"s_mov_b32 {s(S_RS+rnd)}, {s(S_T1)}")
        A(f"s_and_b32 {s(S_T2)}, {s(S_T1)}, 0xffff")
        A(f"s_sub_u32 {s(S_T2)}, 0xffff, {s(S_T2)}")
        A(f"s_and_b32 {s(S_IDX+rnd)}, {s(S_T2)}, 2047")
        if rnd < 7:
            for j in range(32): A(f"v_subrev_u32 v{K+j}, {s(S_T0)}, v{K+j}")

def gen_m2(A, TB, n_init):
    A.comment("--- M2: FFN slice fs = tk (64 cols)")
    def f_dg(tid):
        w, l = tid >> 6, tid & 63
        return (128 * w + (l >> 3)) * 3584 + (l & 7) * 16
    def f_trg(tid):
        w, l, n, g = dec(tid); r, c = n >> 2, n & 3
        return (8 * g + r) * 128 + w * 32 + 8 * c
    def f_trd(tid):
        w, l, n, g = dec(tid); r, c = n >> 2, n & 3
        return (8 * g + r) * 1024 + w * 256 + 8 * c
    def f_hw(tid):
        w, l, n, g = dec(tid); return 131072 + n * 128 + (16 * w + 4 * g) * 2
    g0 = TB.add([f_dg, f_trg, f_trd, f_hw])
    def f_hr(tid):
        w, l, n, g = dec(tid); return 131072 + n * 128 + g * 16
    def f_yo(tid):
        w, l, n, g = dec(tid); return (n & 7) * 2048 + (128 * w + 4 * g) * 4
    g1 = TB.add([f_hr, f_yo, lambda t: ((t & 63) >> 4) * 16, lambda t: t & 7])
    A("v_lshlrev_b32 v4, 4, v0")
    TB.load(A, g0, 16, 4, S_TB, S_SRC)
    TB.load(A, g1, 20, 4, S_TB, S_SRC)
    V_DG, V_TRG, V_TRD, V_HW, V_HR, V_YO, V_G16, V_T7 = range(16, 24)
    A(f"s_lshl_b32 {s(S_T0)}, {s(S_TK)}, 7")
    add64(A, S_B0, S_WG, s(S_T0))
    add64(A, S_B1, S_WU, s(S_T0))
    A(f"s_lshl_b32 {s(S_T2)}, {s(S_W)}, 14")
    A("s_waitcnt vmcnt(0)")
    for m, b in enumerate((S_B0, S_B1)):
        for i in range(16):
            A(f"s_add_u32 m0, {s(S_T2)}, {m*65536+i*1024}")
            A(f"s_nop 0")
            A(f"global_load_lds_dwordx4 v{V_DG}, {s(b,2)}")
            add64(A, b, b, 8 * 3584)
    gen_top8(A, n_init)
    A(f"v_mov_b32 v8, {s(S_IDX)}")
    for k in range(1, 8):
        A(f"v_cmp_eq_u32 vcc, {k}, v{V_T7}")
        A(f"v_mov_b32 v9, {s(S_IDX+k)}")
        A(f"v_cndmask_b32 v8, v8, v9, vcc")
    A(f"v_lshl_add_u32 v8, v8, 10, v{V_G16}")
    XB = 64
    for ks in range(16): A(f"global_load_dwordx4 {v(XB+4*ks,4)}, v8, {s(S_X,2)} offset:{64*ks}")
    A("s_waitcnt vmcnt(0)")
    A("s_barrier")
    AG, AU, WFR = 24, 28, 32
    A(f"v_add_u32 v9, 0x10000, v{V_TRG}")
    for ks in range(16):
        for m, (acc, ad) in enumerate(((AG, V_TRG), (AU, 9))):
            r = WFR + 8 * (ks & 1) + 4 * m
            for qd in range(2): A(f"ds_read_b64_tr_b16 {v(r+2*qd,2)}, v{ad} offset:{(32*ks+4*qd)*128}")
        if ks > 0:
            A("s_waitcnt lgkmcnt(4)")
            for m, acc in enumerate((AG, AU)):
                r = WFR + 8 * ((ks - 1) & 1) + 4 * m
                A(f"v_mfma_f32_16x16x32_bf16 {v(acc,4)}, {v(r,4)}, {v(XB+4*(ks-1),4)}, {'0' if ks == 1 else v(acc,4)}")
    A("s_waitcnt lgkmcnt(0)")
    for m, acc in enumerate((AG, AU)):
        A(f"v_mfma_f32_16x16x32_bf16 {v(acc,4)}, {v(WFR+8+4*m,4)}, {v(XB+60,4)}, {v(acc,4)}")
    A("s_barrier")
    A(f"""s_lshl_b32 {s(S_T0)}, {s(S_TK)}, 16
    s_lshl_b32 {s(S_T2)}, {s(S_W)}, 14
    s_add_u32 {s(S_T0)}, {s(S_T0)}, {s(S_T2)}""")
    add64(A, S_B0, S_WD, s(S_T0))
    for i in range(16):
        A(f"s_add_u32 m0, {s(S_T2)}, {i*1024}")
        A("s_nop 0")
        A(f"global_load_lds_dwordx4 v2, {s(S_B0,2)}")
        add64(A, S_B0, S_B0, 1024)
    for r in range(4):
        rbf(A, AG + r, AG + r)
        sigmoid(A, 48, AG + r)
        A(f"v_mul_f32 v{AG+r}, v{AG+r}, v48")
        rbf(A, AG + r, AG + r)
        rbf(A, AU + r, AU + r)
        A(f"v_mul_f32 v{AG+r}, v{AG+r}, v{AU+r}")
    A(f"""v_cvt_pk_bf16_f32 v48, v{AG}, v{AG+1}
    v_cvt_pk_bf16_f32 v49, v{AG+2}, v{AG+3}
    ds_write_b64 v{V_HW}, v[48:49]
    s_waitcnt vmcnt(0) lgkmcnt(0)
    s_barrier
    ds_read_b128 v[52:55], v{V_HR}
    ds_read_b128 v[56:59], v{V_HR} offset:64""")
    A(f"s_mul_i32 {s(S_T0)}, {s(S_TK)}, 16384")
    A(f"s_add_u32 {s(S_T0)}, {s(S_T0)}, {WS_YP}")
    add64(A, S_B0, S_WS, s(S_T0))
    for T in range(8):
        for kk in range(2):
            for qd in range(2): A(f"ds_read_b64_tr_b16 {v(64+8*T+4*kk+2*qd,2)}, v{V_TRD} offset:{(32*kk+4*qd)*1024+T*32}")
        if T % 2 == 1: A("s_waitcnt lgkmcnt(0)")
    for T in range(8):
        for kk in range(2):
            A(f"v_mfma_f32_16x16x32_bf16 {v(128+4*T,4)}, {v(64+8*T+4*kk,4)}, {v(52+4*kk,4)}, {'0' if kk == 0 else v(128+4*T,4)}")
    for T in range(8): A(f"global_store_dwordx4 v{V_YO}, {v(128+4*T,4)}, {s(S_B0,2)} offset:{64*T} sc1")
    A(f"s_lshl_b32 {s(S_T1)}, {s(S_TK)}, 7")
    A(f"s_add_u32 {s(S_T1)}, {s(S_T1)}, {WS_FLAGS+FL_M2}")
    set_flag(A, s(S_T1), 58)

def gen_m3(A, n_init):
    A.comment("--- M3: rows 2*(tk-28), +1")
    gen_top8(A, n_init)
    A(f"v_min_u32 v8, 27, v1")
    A(f"v_lshlrev_b32 v8, 7, v8")
    A(f"v_add_u32 v8, {WS_FLAGS+FL_M2}, v8")
    wait_flags(A, 8, 9)
    A(f"""s_sub_u32 {s(S_T3)}, {s(S_TK)}, 28
    s_lshl_b32 {s(S_T3)}, {s(S_T3)}, 1
    s_lshr_b32 {s(S_T0)}, {s(S_W)}, 1
    s_add_u32 {s(S_T3)}, {s(S_T3)}, {s(S_T0)}
    s_mov_b32 {s(S_T1)}, {s(S_IDX)}
    s_mov_b32 {s(S_T2)}, {s(S_RS)}""")
    for k in range(1, 8):
        A(f"s_cmp_eq_u32 {s(S_T3)}, {k}")
        A(f"s_cselect_b32 {s(S_T1)}, {s(S_IDX+k)}, {s(S_T1)}")
        A(f"s_cselect_b32 {s(S_T2)}, {s(S_RS+k)}, {s(S_T2)}")
    A(f"""s_and_b32 {s(S_T0)}, {s(S_W)}, 1
    s_lshl_b32 {s(S_T0)}, {s(S_T0)}, 10
    v_add_u32 v8, {s(S_T0)}, v2
    v_lshrrev_b32 v9, 1, v8
    s_lshl_b32 {s(S_T0)}, {s(S_T3)}, 11
    s_add_u32 {s(S_T0)}, {s(S_T0)}, {WS_YP}""")
    add64(A, S_B0, S_WS, s(S_T0))
    for f in range(28):
        A(f"global_load_dwordx4 {v(64+4*f,4)}, v8, {s(S_B0,2)} sc1")
        add64(A, S_B0, S_B0, 16384)
    A(f"s_lshl_b32 {s(S_T0)}, {s(S_T1)}, 10")
    add64(A, S_B1, S_X, s(S_T0))
    A(f"global_load_dwordx2 v[10:11], v9, {s(S_B1,2)}")
    A(f"""s_and_b32 {s(S_T2)}, {s(S_T2)}, 0xffff0000
    v_mov_b32 v12, {s(S_T2)}
    v_ashrrev_i32 v13, 31, v12
    v_not_b32 v13, v13
    v_or_b32 v13, 0x80000000, v13
    v_xor_b32 v12, v12, v13
    v_and_b32 v12, 0xffff0000, v12""")
    sigmoid(A, 13, 12)
    rbf(A, 13, 13)
    A("s_waitcnt vmcnt(0)")
    for f in range(1, 28):
        for r in range(4): A(f"v_add_f32 v{64+r}, v{64+r}, v{64+4*f+r}")
    A("""v_lshlrev_b32 v14, 16, v10
    v_and_b32 v15, 0xffff0000, v10
    v_lshlrev_b32 v16, 16, v11
    v_and_b32 v17, 0xffff0000, v11""")
    for r in range(4):
        rbf(A, 64 + r, 64 + r)
        A(f"v_mul_f32 v{64+r}, v{64+r}, v13")
        rbf(A, 64 + r, 64 + r)
        A(f"v_add_f32 v{64+r}, v{64+r}, v{14+r}")
    A(f"""v_cvt_pk_bf16_f32 v10, v64, v65
    v_cvt_pk_bf16_f32 v11, v66, v67
    s_lshl_b32 {s(S_T0)}, {s(S_T3)}, 10
    s_add_u32 {s(S_T0)}, {s(S_T0)}, {WS_BSEL}""")
    add64(A, S_B0, S_WS, s(S_T0))
    A(f"""global_store_dwordx2 v9, v[10:11], {s(S_B0,2)} sc1
    s_lshl_b32 {s(S_T0)}, {s(S_T3)}, 7
    s_add_u32 {s(S_T0)}, {s(S_T0)}, {WS_IDX}
    v_mov_b32 v12, {s(S_T0)}
    v_mov_b32 v13, {s(S_T1)}
    global_store_dword v12, v13, {s(S_WS,2)} sc1
    s_sub_u32 {s(S_T1)}, {s(S_TK)}, 28
    s_lshl_b32 {s(S_T1)}, {s(S_T1)}, 7
    s_add_u32 {s(S_T1)}, {s(S_T1)}, {WS_FLAGS+FL_M3}""")
    set_flag(A, s(S_T1), 58)

def gen_p2(A, TB, n_init):
    A.comment("=== phase 2 role ===")
    A(f"""s_load_dwordx2 {s(S_OUT,2)}, s[0:1], 104
    s_load_dwordx4 {s(S_WR,4)}, s[0:1], 64
    s_load_dwordx4 {s(S_WU,4)}, s[0:1], 80
    s_load_dwordx2 {s(S_GW,2)}, s[0:1], 96
    v_lshrrev_b32 v4, 6, v0
    v_and_b32 v1, 63, v0
    v_lshlrev_b32 v2, 4, v1
    v_mov_b32 v3, 0
    v_readfirstlane_b32 {s(S_W)}, v4
    s_lshr_b32 {s(S_KS)}, {s(S_TK)}, 2
    s_and_b32 {s(S_NS)}, {s(S_TK)}, 3
    s_mov_b32 {s(S_C)}, {f32bits(128**-0.5 * LOG2E):#x}""")
    TB.base(A, S_TB)
    A(f"""s_lshl_b32 {s(S_T3)}, {s(S_GRP)}, 5
    s_add_u32 {s(S_T3)}, {s(S_T3)}, {s(S_TK)}""")
    gen_init(A, s(S_T3), 96)
    if "pfq" in gen_rec.EXP:
        A(f"""s_lshl_b32 {s(S_T0)}, {s(S_T3)}, 12
        v_lshlrev_b32 v20, 4, v0
        v_add_u32 v20, {s(S_T0)}, v20""")
        for k in range(11):
            A(f"v_min_u32 v21, 0x3ffff0, v20")
            A(f"global_load_dwordx4 {v(200+4*k,4)}, v21, {s(gen_rec.S_WQ,2)}")
            A(f"v_add_u32 v20, {96*4096}, v20")
    A(f"""s_waitcnt lgkmcnt(0)
    s_cmp_eq_u32 {s(S_GRP)}, 2
    s_cbranch_scc1 L_p2_moe""")
    gen_m1(A, n_init)
    A("s_branch L_p2_main")
    A.label("L_p2_moe")
    A(f"s_cmp_ge_u32 {s(S_TK)}, 28")
    A("s_cbranch_scc1 L_p2_m3")
    gen_m2(A, TB, n_init)
    A("s_branch L_p2_main")
    A.label("L_p2_m3")
    gen_m3(A, n_init)
    A.label("L_p2_main")
    gen_rec.trace(A, 1, 8)
    def f_dw(tid):
        w, l, n, g = dec(tid); return g * 1024 + ((n ^ (g << 2)) * 16)
    def f_tr(dt):
        def f(tid):
            w, l, n, G = dec(tid); r, c = n >> 2, n & 3
            return w * 32768 + (4 * (G >> 1) + r) * 256 + ((dt ^ r) * 64) + (G & 1) * 32 + 8 * c
        return f
    def f_k(tid):
        l = tid & 63; key = l & 7; return ((l >> 5) * 16 + 4 * (key >> 1) + 2 + (key & 1)) * 16
    def f_v(tid):
        l = tid & 63; e = l & 31; key = e & 7; return ((e >> 3) * 16 + 4 * (key >> 1) + (key & 1)) * 16
    g0 = TB.add([f_dw, f_k, f_v, lambda t: (t & 31) * 4])
    g1 = TB.add([f_tr(0), f_tr(1), f_tr(2), f_tr(3)])
    g2 = TB.add([lambda t: (t >> 6) * 16384 + (t & 63) * 16, lambda t: (t >> 6) * 4096 + (t & 63) * 16,
                 lambda t: (t & 31) * 1024 + ((t >> 6) & 1) * 16 + ((t >> 5) & 1) * 8, lambda t: (t & 31) * 8])
    V_DW, V_K, V_V, V_ST, V_TR, V_RW, V_RR, V_XO, V_GO = 4, 5, 6, 7, 8, 12, 13, 14, 15
    A("v_lshlrev_b32 v16, 4, v0")
    A("s_barrier")
    for g, r in ((g0, 4), (g1, 8), (g2, 12)): TB.load(A, g, r, 16, S_TB, S_SRC)
    A(f"""s_lshl_b32 {s(S_H)}, {s(S_KS)}, 2
    s_add_u32 {s(S_H)}, {s(S_H)}, {s(S_W)}
    s_lshl_b32 {s(S_T0)}, {s(S_H)}, 17
    s_lshl_b32 {s(S_T1)}, {s(S_NS)}, 8
    s_add_u32 {s(S_T0)}, {s(S_T0)}, {s(S_T1)}""")
    add64(A, S_B0, S_WO, s(S_T0))
    A(f"s_lshl_b32 {s(S_T2)}, {s(S_W)}, 15")
    A("s_waitcnt vmcnt(0)")
    for i in range(32):
        A(f"s_add_u32 m0, {s(S_T2)}, {i*1024}")
        A("s_nop 0")
        A(f"global_load_lds_dwordx4 v{V_DW}, {s(S_B0,2)}")
        add64(A, S_B0, S_B0, 4096)
    A("s_waitcnt vmcnt(0)")
    WOF = lambda dt, k: a((dt * 8 + k) * 4, 4)
    for dt in range(4):
        for k in range(8):
            for qd in range(2):
                A(f"ds_read_b64_tr_b16 {a((dt*8+k)*4+2*qd,2)}, v{V_TR+dt} offset:{(16*k+8*qd)*256}")
            if k % 4 == 3: A("s_waitcnt lgkmcnt(0)")
    wait_counter(A, DBG_INIT, n_init, 16, 3)
    A(f"""v_and_b32 v16, 3, v1
    s_lshl_b32 {s(S_T0)}, {s(S_H)}, 2
    v_add_u32 v16, {s(S_T0)}, v16
    v_lshlrev_b32 v16, 7, v16
    v_add_u32 v16, {WS_FLAGS+FL_MINI+(64 if 'mini2' in gen_rec.EXP else 0)}, v16""")
    wait_flags(A, 16, 17, 8)
    A(f"""s_mov_b32 {s(S_SEG)}, {s(S_GRP)}
    s_mov_b32 {s(S_PAR)}, 0
    s_mov_b32 {s(S_PH)}, 1
    s_mov_b32 {s(S_FIRST)}, 1
    s_mov_b64 {s(S_OB,2)}, {s(S_OUT,2)}
    s_barrier""")
    QF, OXP, KF, VF, OA, OUT, SA = 128, 32, 64, 96, 128, 192, 112
    A.label("L_p2_seg")
    A(f"s_cmp_ge_u32 {s(S_W)}, 2")
    A("s_cbranch_scc1 L_p2_pre_skip")
    A(f"s_cmp_eq_u32 {s(S_FIRST)}, 0")
    A("s_cbranch_scc1 L_p2_nf")
    A(f"""v_and_b32 v16, 3, v1
    v_lshlrev_b32 v16, 7, v16
    v_add_u32 v16, {WS_FLAGS+FL_M3}, v16""")
    wait_flags(A, 16, 17, 8)
    A(f"""v_and_b32 v16, 7, v1
    v_lshlrev_b32 v16, 7, v16
    v_add_u32 v16, {WS_IDX}, v16
    global_load_dword v17, v16, {s(S_WS,2)} sc1
    s_waitcnt vmcnt(0)""")
    for k in range(8): A(f"v_readlane_b32 {s(S_IDX+k)}, v17, {k}")
    A.label("L_p2_nf")
    A(f"""s_lshl_b32 {s(S_T0)}, {s(S_SEG)}, 15
    s_lshl_b32 {s(S_T1)}, {s(S_NS)}, 8
    s_lshl_b32 {s(S_T2)}, {s(S_KS)}, 5
    s_add_u32 {s(S_T1)}, {s(S_T1)}, {s(S_T2)}
    s_add_u32 {s(S_T0)}, {s(S_T0)}, {s(S_T1)}""")
    add64(A, S_B0, S_X, s(S_T0))
    add64(A, S_OB, S_OUT, s(S_T0))
    A(f"s_lshl_b32 {s(S_T0)}, {s(S_SEG)}, 8")
    A(f"s_add_u32 {s(S_T0)}, {s(S_T0)}, {WS_G}")
    add64(A, S_B3, S_WS, s(S_T0))
    A(f"global_load_dwordx2 v[26:27], v{V_XO}, {s(S_B0,2)}")
    A(f"global_load_dwordx2 v[28:29], v{V_GO}, {s(S_B3,2)} sc1")
    A(f"""s_lshl_b32 {s(S_T0)}, {s(S_SEG)}, 5
    v_and_b32 v16, 31, v1
    v_add_u32 v16, {s(S_T0)}, v16
    v_and_b32 v17, 0x3ff, v{V_XO}
    s_add_u32 {s(S_T1)}, {s(S_T1)}, {WS_BSEL}
    v_add_u32 v17, {s(S_T1)}, v17
    s_waitcnt vmcnt(0)""")
    for k in range(8):
        lk = A.uid("Lsel")
        A(f"v_cmp_eq_u32 vcc, {s(S_IDX+k)}, v16")
        A(f"s_cbranch_vccz {lk}")
        A(f"""s_mov_b64 exec, vcc
        v_add_u32 v23, {k*1024}, v17
        global_load_dwordx2 v[26:27], v23, {s(S_WS,2)} sc1
        s_waitcnt vmcnt(0)
        s_mov_b64 exec, -1""")
        A.label(lk)
    A("""v_lshlrev_b32 v96, 16, v26
    v_and_b32 v97, 0xffff0000, v26
    v_lshlrev_b32 v98, 16, v27
    v_and_b32 v99, 0xffff0000, v27""")
    for r in range(4):
        A(f"v_mul_f32 v{96+r}, v{96+r}, v29")
        rbf(A, 96 + r, 96 + r)
    for r in range(4): A(f"v_accvgpr_write_b32 a{160+r}, v{96+r}")
    A("v_accvgpr_write_b32 a164, v28")
    A.label("L_p2_pre_skip")
    A(f"""s_lshr_b32 {s(S_T1)}, {s(S_SEG)}, 2
    s_lshl_b32 {s(S_T1)}, {s(S_T1)}, 5
    s_add_u32 {s(S_T1)}, {s(S_T1)}, {s(S_H)}
    s_lshl_b32 {s(S_T1)}, {s(S_T1)}, 7
    s_add_u32 {s(S_T1)}, {s(S_T1)}, {WS_FLAGS+FL_P1B}
    v_mov_b32 v16, {s(S_T1)}""")
    wait_flags(A, 16, 17, 8)
    A(f"""s_lshl_b32 {s(S_T3)}, {s(S_SEG)}, 5
    s_add_u32 {s(S_T3)}, {s(S_T3)}, {s(S_H)}
    s_lshl_b32 {s(S_T0)}, {s(S_T3)}, 13
    s_add_u32 {s(S_T0)}, {s(S_T0)}, {WS_Q+4096}""")
    add64(A, S_B0, S_WS, s(S_T0))
    add64(A, S_B1, S_B0, WS_OX - WS_Q)
    A(f"s_lshl_b32 {s(S_T0)}, {s(S_T3)}, 7")
    A(f"s_add_u32 {s(S_T0)}, {s(S_T0)}, {WS_ST}")
    add64(A, S_B2, S_WS, s(S_T0))
    A(f"s_lshl_b32 {s(S_T0)}, {s(S_T3)}, 12")
    A(f"s_add_u32 {s(S_T0)}, {s(S_T0)}, {WS_KV}")
    add64(A, S_B3, S_WS, s(S_T0))
    for k in range(8): A(f"global_load_dwordx4 {v(OXP+4*k,4)}, v2, {s(S_B1,2)} offset:{1024*k-4096} sc1")
    for k in range(8): A(f"global_load_dwordx4 {a(QF+4*k,4)}, v2, {s(S_B0,2)} offset:{1024*k-4096} sc1")
    LSE = 18
    A(f"global_load_dword v{LSE}, v{V_ST}, {s(S_B2,2)} sc1")
    A("s_waitcnt vmcnt(9)")
    for j in range(32):
        A(f"v_lshlrev_b32 v{OA+2*j}, 16, v{OXP+j}")
        A(f"v_and_b32 v{OA+2*j+1}, 0xffff0000, v{OXP+j}")
    A(f"s_mov_b32 {s(S_SPIN)}, 0")
    A("v_and_b32 v17, 3, v1")
    A("v_lshlrev_b32 v17, 10, v17")
    if "oldkv" in gen_rec.EXP: A("s_branch L_p2_kv3")
    A("s_branch L_p2_kv2")
    A.label("L_p2_kv1")
    A("s_sleep 1")
    A.label("L_p2_kv2")
    A(f"global_load_dword v16, v17, {s(S_B3,2)} sc1")
    spin_guard(A)
    A("""s_waitcnt vmcnt(0)
    v_cmp_eq_u32 vcc, -1, v16
    s_cbranch_vccnz L_p2_kv1""")
    A.label("L_p2_kv")
    if "oldkv" in gen_rec.EXP: A("s_sleep 4")
    A.label("L_p2_kv3")
    for k in range(8): A(f"global_load_dwordx4 {v(KF+4*k,4)}, v{V_K}, {s(S_B3,2)} offset:{k*512} sc1")
    for et in range(4): A(f"global_load_dwordx4 {v(VF+4*et,4)}, v{V_V}, {s(S_B3,2)} offset:{et*1024} sc1")
    spin_guard(A)
    A("s_waitcnt vmcnt(0)")
    A(f"v_max3_u32 v16, v{KF}, v{KF+4}, v{KF+8}")
    for j in range(3, 11, 2): A(f"v_max3_u32 v16, v16, v{KF+4*j}, v{KF+4*j+4}")
    A(f"""v_max_u32 v16, v16, v{KF+44}
    v_cmp_eq_u32 vcc, -1, v16
    s_cbranch_vccnz L_p2_kv""")
    if gen_rec.TRACE:
        lt_ = A.uid("Ltr")
        A(f"s_cmp_eq_u32 {s(S_W)}, 0")
        A(f"s_cbranch_scc0 {lt_}")
        gen_rec.trace(A, 8, 30)
        A.label(lt_)
    for k in range(8):
        A(f"v_mfma_f32_32x32x16_bf16 {v(SA,16)}, {v(KF+4*k,4)}, {a(QF+4*k,4)}, {'0' if k == 0 else v(SA,16)}")
    A("v_cmp_lt_u32 vcc, 31, v1")
    for et in range(4):
        A(f"v_cndmask_b32 v{VF+4*et}, v{VF+4*et}, v{VF+4*et+2}, vcc")
        A(f"v_cndmask_b32 v{VF+4*et+1}, v{VF+4*et+1}, v{VF+4*et+3}, vcc")
    m, t1, al, l = 19, 20, 21, 22
    for r in range(4): A(f"v_mul_f32 v{SA+r}, {s(S_C)}, v{SA+r}")
    A(f"""v_max3_f32 v{m}, v{SA}, v{SA+1}, v{SA+2}
    v_max3_f32 v{m}, v{m}, v{SA+3}, v{LSE}
    v_mov_b32 v{t1}, v{m}
    v_permlane32_swap_b32 v{m}, v{t1}
    v_max_f32 v{m}, v{m}, v{t1}""")
    for r in range(4): A(f"v_sub_f32 v{SA+r}, v{SA+r}, v{m}")
    A(f"v_sub_f32 v{al}, v{LSE}, v{m}")
    for r in range(4): A(f"v_exp_f32 v{SA+r}, v{SA+r}")
    A(f"""v_exp_f32 v{al}, v{al}
    v_add_f32 v{l}, v{SA}, v{SA+1}
    v_add_f32 v{t1}, v{SA+2}, v{SA+3}
    v_add_f32 v{l}, v{l}, v{t1}
    v_mov_b32 v{t1}, v{l}
    v_permlane32_swap_b32 v{l}, v{t1}
    v_add_f32 v{l}, v{l}, v{t1}
    v_add_f32 v{l}, v{l}, v{al}
    v_rcp_f32 v{l}, v{l}
    s_nop 0
    v_mul_f32 v{al}, v{al}, v{l}""")
    for r in range(4): A(f"v_mul_f32 v{SA+r}, v{SA+r}, v{l}")
    A(f"v_cvt_pk_bf16_f32 v24, v{SA}, v{SA+1}")
    A(f"v_cvt_pk_bf16_f32 v25, v{SA+2}, v{SA+3}")
    for et in range(4):
        for j in range(16): A(f"v_mul_f32 v{OA+16*et+j}, v{OA+16*et+j}, v{al}")
        A(f"v_mfma_f32_32x32x8_bf16 {v(OA+16*et,16)}, {v(VF+4*et,2)}, v[24:25], {v(OA+16*et,16)}")
    for et in range(4):
        for j in range(8): A(f"v_cvt_pk_bf16_f32 v{OXP+8*et+j}, v{OA+16*et+2*j}, v{OA+16*et+2*j+1}")
        for f in range(2):
            k = 2 * et + f
            for dt in range(4):
                A(f"v_mfma_f32_32x32x16_bf16 {v(OUT+16*dt,16)}, {WOF(dt,k)}, {v(OXP+4*k,4)}, {'0' if k == 0 else v(OUT+16*dt,16)}")
    if gen_rec.TRACE:
        lt_ = A.uid("Ltr")
        A(f"s_cmp_eq_u32 {s(S_W)}, 0")
        A(f"s_cbranch_scc0 {lt_}")
        gen_rec.trace(A, 9, 30)
        A.label(lt_)
        A("s_nop 11")
    for dt in range(4):
        for j in range(4): A(f"ds_write_b128 v{V_RW}, {v(OUT+16*dt+4*j,4)} offset:{dt*4096+j*1024}")
    A(f"""s_lshl_b32 {s(S_T0)}, {s(S_GRP)}, 1
    s_add_u32 {s(S_T0)}, {s(S_T0)}, {s(S_PAR)}
    s_lshl_b32 {s(S_T0)}, {s(S_T0)}, 2
    s_add_u32 {s(S_T0)}, {s(S_T0)}, {s(S_NS)}
    s_lshl_b32 {s(S_T0)}, {s(S_T0)}, 17
    s_add_u32 {s(S_T0)}, {s(S_T0)}, {WS_P2}
    s_lshl_b32 {s(S_T1)}, {s(S_W)}, 15
    s_lshl_b32 {s(S_T2)}, {s(S_KS)}, 11
    s_add_u32 {s(S_T1)}, {s(S_T1)}, {s(S_T2)}
    s_add_u32 {s(S_T1)}, {s(S_T1)}, {s(S_T0)}""")
    add64(A, S_B0, S_WS, s(S_T1))
    add64(A, S_B1, S_B0, 16384)
    A(f"""s_lshl_b32 {s(S_T1)}, {s(S_KS)}, 14
    s_lshl_b32 {s(S_T2)}, {s(S_W)}, 10
    s_add_u32 {s(S_T1)}, {s(S_T1)}, {s(S_T2)}
    s_add_u32 {s(S_T1)}, {s(S_T1)}, {s(S_T0)}""")
    add64(A, S_B2, S_WS, s(S_T1))
    A("s_waitcnt lgkmcnt(0)")
    A("s_barrier")
    for sw in range(4):
        for j in range(4): A(f"ds_read_b128 {v(64+16*sw+4*j,4)}, v{V_RR} offset:{sw*16384+j*1024}")
    A("s_waitcnt lgkmcnt(8)")
    for r in range(16): A(f"v_add_f32 v{64+r}, v{64+r}, v{80+r}")
    A("s_waitcnt lgkmcnt(0)")
    for r in range(16): A(f"v_add_f32 v{96+r}, v{96+r}, v{112+r}")
    A("s_barrier")
    for j in range(4):
        for r in range(4): A(f"v_add_f32 v{64+4*j+r}, v{64+4*j+r}, v{96+4*j+r}")
        A(f"v_and_or_b32 v{64+4*j}, v{64+4*j}, -2, {s(S_PH)}")
        A(f"global_store_dwordx4 v2, {v(64+4*j,4)}, {s(S_B0 if j < 2 else S_B1,2)} offset:{(j&1)*1024} sc1")
    if gen_rec.TRACE:
        lt_ = A.uid("Ltr")
        A(f"s_cmp_eq_u32 {s(S_W)}, 0")
        A(f"s_cbranch_scc0 {lt_}")
        gen_rec.trace(A, 10, 30)
        A.label(lt_)
    A(f"s_cmp_ge_u32 {s(S_W)}, 2")
    A("s_cbranch_scc1 L_p2_next")
    if gen_rec.TRACE:
        lt_ = A.uid("Ltr")
        A(f"s_cmp_eq_u32 {s(S_W)}, 0")
        A(f"s_cbranch_scc0 {lt_}")
        gen_rec.trace(A, 11, 30)
        A.label(lt_)
    add64(A, S_B3, S_B2, 8192)
    for r in range(4): A(f"v_accvgpr_read_b32 v{96+r}, a{160+r}")
    A("v_accvgpr_read_b32 v28, a164")
    A("s_waitcnt vmcnt(0)")
    A(f"s_mov_b32 {s(S_SPIN)}, 0")
    A.label("L_p2_fp")
    for src in range(8):
        A(f"global_load_dwordx4 {v(64+4*src,4)}, v2, {s(S_B2 if src < 2 else S_B3,2)} offset:{src*2048 - (0 if src < 2 else 8192)} sc1" if src < 6 else
          f"global_load_dwordx4 {v(64+4*src,4)}, v30, {s(S_B3,2)} offset:{(src-6)*2048} sc1")
        if src == 0: A("v_add_u32 v30, 4096, v2")
    spin_guard(A)
    A("s_waitcnt vmcnt(0)")
    A(f"v_xor_b32 v16, {s(S_PH)}, v64")
    for src in range(1, 8):
        A(f"v_xor_b32 v17, {s(S_PH)}, v{64+4*src}")
        A("v_or_b32 v16, v16, v17")
    A("""v_and_b32 v16, 1, v16
    v_cmp_ne_u32 vcc, 0, v16
    s_cbranch_vccnz L_p2_fp""")
    if gen_rec.TRACE:
        lt_ = A.uid("Ltr")
        A(f"s_cmp_eq_u32 {s(S_W)}, 0")
        A(f"s_cbranch_scc0 {lt_}")
        gen_rec.trace(A, 12, 30)
        A.label(lt_)
    for src in range(1, 8):
        for r in range(4): A(f"v_add_f32 v{64+r}, v{64+r}, v{64+4*src+r}")
    for r in range(4):
        rbf(A, 64 + r, 64 + r)
        A(f"v_mul_f32 v{64+r}, v{64+r}, v28")
        rbf(A, 64 + r, 64 + r)
        A(f"v_add_f32 v{64+r}, v{64+r}, v{96+r}")
    A(f"""v_cvt_pk_bf16_f32 v26, v64, v65
    v_cvt_pk_bf16_f32 v27, v66, v67
    global_store_dwordx2 v{V_XO}, v[26:27], {s(S_OB,2)}{' sc1' if 'osc1' in gen_rec.EXP else (' nt' if 'ont' in gen_rec.EXP else '')}""")
    A.label("L_p2_next")
    A(f"""s_mov_b32 {s(S_FIRST)}, 0
    s_xor_b32 {s(S_PAR)}, {s(S_PAR)}, 1
    s_xor_b32 {s(S_T0)}, {s(S_PAR)}, 1
    s_xor_b32 {s(S_PH)}, {s(S_PH)}, {s(S_T0)}
    s_add_u32 {s(S_SEG)}, {s(S_SEG)}, 3
    s_cmp_lt_u32 {s(S_SEG)}, 64
    s_cbranch_scc1 L_p2_seg""")
    gen_rec.trace(A, 2, 8)
    A("s_branch L_end")
```

```python
from asmlib import *
from layout import *
import math, struct

def f32bits(x): return struct.unpack("<I", struct.pack("<f", x))[0]

S_MEM0, S_WQ, S_WK, S_WV, S_WO, S_WS, S_DBG = 6, 8, 10, 12, 14, 16, 18
S_H, S_W, S_STEP, S_MODE = 20, 21, 22, 23
S_SCALE, S_SEL10, S_SEL01, S_SPIN = 24, 25, 26, 27
S_PST = 28
S_MEMX = 40
S_WS4 = 48
S_KVB = 50
S_FLB = 52
S_T0, S_T1, S_T2, S_T3 = 54, 55, 56, 57
S_KXM0 = 58
S_MK3 = 60
S_SRC = 64
S_TB = 62
S_INB = 4
def INB(par): return 36 + 2 * par
S_SELM = 8
S_MEX = 48
S_MEMG = 76
S_FLO = 4
S_FLAG = 5
(V_L16, V_IDX, V_QKW, V_TR,
 V_TRW, V_OW, V_PST, V_MST,
 V_GATH, V_KVO, V_XR, V_WOR,
 V_W2K, V_XW, V_SELV, V_KXO) = range(16)
V_INL = V_GATH
V_FLAG = V_TRW
V_WO01 = 16
V_ONES = 32
V_ZZ = 36
V_PA = 38
V_PB = 40
V_X = 42
V_M = 44
V_AQ, V_AK, V_AV = 80, 88, 96
V_ACC = 80
V_F = 112
V_T = 76
V_WV = 128

def WQ(T, t): return a((T * 8 + t) * 8, 8)
def WK(T, t): return a(128 + (T * 8 + t) * 8, 8)
def WV(T, t): return v(V_WV + (T * 8 + t) * 8, 8)

EARLY = [WK(0, 0), WK(1, 0), WK(0, 1), WK(1, 1), WQ(0, 0)]
EARLY_STG = [52, 60, 68, 104, 120]
def lds_slot(f): return {0: 2, 1: 3, 2: 4, 3: 5, 4: 6, 12: 12, 13: 13, 14: 14, 15: 15}[f]
def early_slot(k): return 7 + k

def add64(A, d, b, off):
    A(f"s_add_u32 {s(d)}, {s(b)}, {off}")
    A(f"s_addc_u32 {s(d+1)}, {s(b+1)}, 0")

class Tables:
    def __init__(self): self.groups = []
    def add(self, fns, nthreads=256):
        assert len(fns) == 4
        self.groups.append([[int(f(t)) & 0xffffffff for f in fns] for t in range(nthreads)])
        return len(self.groups) - 1
    def text(self):
        out = ['.section .rodata,"a"', ".p2align 8", "L_tables:"]
        for g in self.groups:
            for row in g: out.append("  .long " + ", ".join("%#x" % x for x in row))
        return "\n".join(out) + "\n"
    def base(self, A, sreg):
        A(f"s_getpc_b64 {s(sreg,2)}")
        A(f"s_add_u32 {s(sreg)}, {s(sreg)}, L_tables@rel32@lo+4")
        A(f"s_addc_u32 {s(sreg+1)}, {s(sreg+1)}, L_tables@rel32@hi+12")
    def load(self, A, g, vdst, vtid16, sreg, stmp):
        add64(A, stmp, sreg, g * 4096)
        A(f"global_load_dwordx4 {v(vdst,4)}, {v(vtid16)}, {s(stmp,2)}")

def code_prefetch(A, label, shift, vdst, vt, align=False):
    l = A.uid("Lpc")
    A(f"s_getpc_b64 {s(S_SRC,2)}")
    A.label(l)
    if label is not None:
        A(f"s_add_u32 {s(S_SRC)}, {s(S_SRC)}, {label}-{l}")
        A(f"s_addc_u32 {s(S_SRC+1)}, {s(S_SRC+1)}, 0")
    A(f"v_lshlrev_b32 v{vt}, {shift}, v0")
    if align: A(f"v_and_b32 v{vt}, -4, v{vt}")
    A(f"global_load_dword v{vdst}, v{vt}, {s(S_SRC,2)}")

def dec(tid):
    w, l = tid >> 6, tid & 63
    return w, l, l & 15, l >> 4

def gen_prologue(A, TB):
    A.comment("=== recurrence prologue; s20 = head ===")
    def f_qkw(tid):
        w, l, n, g = dec(tid)
        if "cf" in EXP: return L_QK + w * 1024 + l * 8
        return L_QK + (32 * w + n) * 32 + g * 8
    def f_tr(tid):
        w, l, n, g = dec(tid); r, c = n >> 2, n & 3
        return L_QK + es(0, g, r) * 32 + c * 8
    def f_ow(tid):
        w, l, n, g = dec(tid)
        if n & 2: return L_MEM + l * 8
        return L_O + (w & 1) * 1024 + ((g >> 1) * 16 + n + 2 * (w >> 1)) * 16 + (g & 1) * 8
    def f_pst(tid):
        w, l, n, g = dec(tid)
        if "in64" in EXP: return (w * 8 + (n >> 3) * 4 + g) * 4096 + ((n >> 2) & 1) * 2048 + (n & 3) * 16
        return (w * 8 + (n >> 3) * 4 + g) * 4096 + (n & 7) * 16
    def f_mst(tid):
        w, l, n, g = dec(tid); j, b5 = l & 7, l >> 5; c, qq = j >> 1, j & 1
        cp = ((l >> 3) & 3) % PRM["ncp"]
        return cp * (32768 + PRM["cpo"]) + (w >> 1) * 1024 + (w & 1) * 256 + (2 * (c >> 1) + qq) * 16 + ((c & 1) * 2 + b5) * 4
    def f_kvo(tid):
        return tid * 16
    def f_xr(tid):
        w, l, n, g = dec(tid); key = 2 * (n >> 2) + (n & 1)
        return L_X + (32 * w + g * 8 + key) * 16
    def f_gath(tid):
        w, l, n, g = dec(tid)
        if "pl" in EXP: return (w >> 1) * 0x20000 + (w & 1) * 2048 + (4 * g + (n & 3)) * 64 + (n >> 2) * 16
        if "in64" in EXP: return (w >> 1) * 0x20000 + (w & 1) * 2048 + l * 16
        return (w >> 1) * 0x20000 + (l >> 2) * 128 + (w & 1) * 64 + (l & 3) * 16
    def f_xw(tid):
        w, l, n, g = dec(tid); return L_X + (32 * w + n) * 16 + g * 4
    g0 = TB.add([lambda t: (t & 63) * 16, lambda t: 0xeeee if t & 2 else 0x4444, f_qkw, f_tr])
    g1 = TB.add([lambda t: f_tr(t) + (t >> 6) * 1024, f_ow, f_pst, f_mst])
    def f_kxo(tid):
        w, l, n, g = dec(tid); return (w >> 1) * WS_VX + (w & 1) * 4096 + l * 16
    g2 = TB.add([f_gath, f_kvo, f_xr, lambda t: L_WO + (t >> 6) * 28672 + (t & 63) * 16 - 4096])
    g2b = TB.add([lambda t: (t >> 6) * 2048 + (t & 63) * 16, f_xw, lambda t: 0x3f800000 if t & 1 else 0x3f80, f_kxo])
    fq = lambda d: (d & 1) | (((d >> 4) & 3) << 1)
    fo = lambda e: (e & 1) | (((e >> 2) & 1) << 1) | (((e >> 6) & 1) << 2)
    def f_dq(hi):
        def f(tid):
            w, l, n, g = dec(tid); row = 32 * w + 16 * hi + g
            return g * 8192 + ((n ^ (fq(row) << 1)) * 16)
        return f
    def f_do(odd):
        def f(tid):
            w, l, n, g = dec(tid); row = 32 * w + 4 * odd + g
            return g * 1024 + ((n ^ (fo(row) << 1)) * 16)
        return f
    g3 = TB.add([f_dq(0), f_dq(1), f_do(0), f_do(1)])
    def f_rq(T, hi):
        def f(tid):
            w, l, n, gB = dec(tid); r, c = n >> 2, n & 3
            row = 32 * (r >> 1) + 16 * (gB & 1) + 4 * (gB >> 1) + (r & 1)
            return L_STG + hi * 65536 + row * 256 + ((2 * w + T) ^ fq(row)) * 32 + 8 * c
        return f
    g4 = TB.add([f_rq(0, 0), f_rq(1, 0), f_rq(0, 1), f_rq(1, 1)])
    def f_ro(tid):
        w, l, n, gB = dec(tid); r, c = n >> 2, n & 3
        row = 64 * (r >> 1) + 8 * (gB >> 1) + 4 * (gB & 1) + (r & 1)
        return L_STG + w * 32768 + row * 256 + fo(row) * 32 + 8 * c
    def f_m0(tid):
        l, jj = tid >> 2, tid & 3
        q, half = arow(l & 15)
        return q * 1024 + dslot(0, half, l >> 4, 2 * jj) * 2
    g5 = TB.add([f_ro, f_m0, lambda t: L_MEM + t * 4, lambda t: L_KX + (t >> 6) * 6144 + (t & 63) * 16])
    VD, VR, VRO = 44, 48, 52
    A(f"""
    v_lshrrev_b32 v1, 6, v0
    v_lshlrev_b32 v76, 4, v0
    s_nop 0
    v_readfirstlane_b32 {s(S_W)}, v1
    """)
    code_prefetch(A, "L_rec_step_f0", 6, 78, 77)
    if "pflast" in EXP:
        code_prefetch(A, "L_rec_last", 1, 79, 77, True)
    TB.base(A, S_TB)
    for g, r in [(g0, 0), (g1, 4), (g2, 8), (g2b, 12), (g3, VD), (g4, VR), (g5, VRO)]:
        TB.load(A, g, r, 76, S_TB, S_SRC)
    A(f"""v_bfe_u32 v82, v76, 8, 2
    v_bfe_u32 v83, v76, 4, 4
    v_and_b32 v84, 1, v82
    s_and_b32 {s(S_T0)}, {s(S_W)}, 1
    s_lshl_b32 {s(S_T0)}, {s(S_T0)}, 2
    v_or_b32 v84, {s(S_T0)}, v84
    v_lshlrev_b32 v84, 1, v84
    v_xor_b32 v83, v83, v84
    v_lshlrev_b32 v83, 4, v83
    v_lshl_add_u32 v80, v82, 13, v83
    v_xor_b32 v81, 64, v80""")
    mats = [S_WK, S_WV, S_WQ] if 'kvq' in EXP else [S_WK, S_WQ, S_WV]
    def dma_chunk(ci):
        slot = ci % 4
        if ci < 12:
            base, c = mats[ci // 4], ci % 4
            A(f"s_lshl_b32 {s(S_T0)}, {s(S_W)}, 18")
            A(f"s_lshl_b32 {s(S_T1)}, {s(S_H)}, 8")
            A(f"s_add_u32 {s(S_T0)}, {s(S_T0)}, {s(S_T1)}")
            A(f"s_add_u32 {s(S_T0)}, {s(S_T0)}, {128*c*8192}")
            step = 4 * 8192
            vo = lambda i: 80 + (i >> 2)
        else:
            base, c = S_WO, ci - 12
            A(f"s_lshl_b32 {s(S_T0)}, {s(S_W)}, 15")
            A(f"s_lshl_b32 {s(S_T1)}, {s(S_H)}, 17")
            A(f"s_add_u32 {s(S_T0)}, {s(S_T0)}, {s(S_T1)}")
            A(f"s_add_u32 {s(S_T0)}, {s(S_T0)}, {c*256}")
            step = 4 * 1024
            vo = lambda i: VD + 2 + (i & 1)
        add64(A, S_SRC, base, s(S_T0))
        A(f"s_lshl_b32 {s(S_T2)}, {s(S_W)}, 13")
        A(f"s_add_u32 {s(S_T2)}, {s(S_T2)}, {L_STG + slot*32768}")
        for i in range(8):
            A(f"s_mov_b32 m0, {s(S_T2)}")
            A(f"s_add_u32 {s(S_T2)}, {s(S_T2)}, 1024")
            A(f"global_load_lds_dwordx4 v{vo(i)}, {s(S_SRC,2)}" + (" nt" if PRM.get("wnt", 0) else ""))
            if i < 7: add64(A, S_SRC, S_SRC, step)
    for ci in range(4): dma_chunk(ci)
    A(f"""
    s_mov_b32 {s(S_SCALE)}, {f32bits(128**-0.5 * math.log2(math.e)):#x}
    s_mov_b32 {s(S_SEL10)}, 0x00003f80
    s_mov_b32 {s(S_SEL01)}, 0x3f800000
    s_mov_b32 {s(S_MK3)}, 0x33333333
    s_mov_b32 {s(S_MK3+1)}, 0x33333333
    """)
    for r in range(V_ZZ, V_X + 2): A(f"v_mov_b32 v{r}, 0")
    for par in range(2):
        for z in range(2):
            add64(A, S_PST + 4 * par + 2 * z, S_WS, WS_INBOX + par * 0x40000 + z * 0x20000)
    for r in range(4): add64(A, S_MEMX + 2 * r, S_WS, WS_MEMX + r * 8192)
    A(f"s_mov_b32 {s(S_MEX)}, 0xff")
    A(f"s_mov_b32 {s(S_MEX+1)}, 0xff")
    add64(A, S_KVB, S_WS, WS_KV - 0x20000)
    add64(A, S_FLB, S_WS, WS_FLAGS)
    A(f"""s_and_b32 {s(S_T0)}, {s(S_W)}, 1
    s_lshr_b32 {s(S_T1)}, {s(S_W)}, 1
    s_mul_i32 {s(S_T1)}, {s(S_T1)}, {L_VX-L_KX}
    s_lshl_b32 {s(S_T2)}, {s(S_T0)}, 12
    s_add_u32 {s(S_T1)}, {s(S_T1)}, {s(S_T2)}
    s_add_u32 {s(S_KXM0)}, {s(S_T1)}, {L_KX}
    s_add_u32 {s(S_KXM0+1)}, {s(S_T1)}, {L_KX+8192}
    s_lshl_b32 {s(S_T3)}, {s(S_H)}, 12
    s_waitcnt vmcnt(32)
    v_lshrrev_b32 v56, 12, {v(V_PST)}
    v_add_u32 v56, {s(S_H)}, v56
    v_and_b32 v56, 31, v56
    v_lshl_add_u32 {v(V_PST)}, v56, {6 if 'in64' in EXP else 7}, {v(V_PST)}
    s_lshr_b32 {s(S_T0)}, {s(S_H)}, 3
    s_lshl_b32 {s(S_T0)}, {s(S_T0)}, 11
    s_bfe_u32 {s(S_T1)}, {s(S_H)}, 0x10002
    s_lshl_b32 {s(S_T1)}, {s(S_T1)}, 9
    s_add_u32 {s(S_T0)}, {s(S_T0)}, {s(S_T1)}
    s_and_b32 {s(S_T1)}, {s(S_H)}, 3
    s_lshl_b32 {s(S_T1)}, {s(S_T1)}, 6
    s_add_u32 {s(S_T0)}, {s(S_T0)}, {s(S_T1)}
    v_add_u32 {v(V_MST)}, {s(S_T0)}, {v(V_MST)}
    s_lshl_b32 {s(S_T0)}, {s(S_H)}, 12
    v_add_u32 {v(V_KVO)}, {s(S_T0)}, {v(V_KVO)}
    s_lshl_b32 {s(S_T0)}, {s(S_H)}, 13
    v_add_u32 {v(V_KXO)}, {s(S_T0)}, {v(V_KXO)}
    v_mov_b32 v56, 0
    v_mov_b32 v57, 0
    v_mov_b32 v58, 0
    v_mov_b32 v59, 0
    v_mov_b32 v60, -1
    v_add_u32 v61, {s(S_T3)}, v76
    """)
    def init_stores():
        for pz in range(4): A(f"global_store_dwordx4 v61, v[56:59], {s(S_PST+2*pz,2)} sc1")
        for r in range(4): A(f"global_store_dword {v(V_MST)}, v60, {s(S_MEMX+2*r,2)} sc1")
    def mem0_loads():
        for t in range(8): A(f"global_load_dword v{62+t}, v{VRO+1}, {s(S_MEM0,2)} offset:{128*t}")
    order = [("c", 0, 8), ("c", 1, 8), ("c", 2, 8), ("c", 3, 8)]
    def after(tag):
        k = [i for i, o in enumerate(order) if o[:2] == tag][0]
        return sum(o[2] for o in order[k + 1:])
    for ci in range(12):
        slot = ci % 4
        A(f"s_waitcnt vmcnt({after(('c', ci))})")
        A("s_barrier")
        if ci == 7:
            A(f"""s_cmp_eq_u32 {s(S_W)}, 0
            s_cbranch_scc0 L_rec_noinc
            v_mov_b32 v56, 1
            s_mov_b64 exec, 1
            global_atomic_add {v(V_ZZ)}, v56, {s(S_DBG,2)} offset:{DBG_RECINIT}
            s_mov_b64 exec, -1
            L_rec_noinc:""")
        if "ctrace" in EXP:
            A("s_add_u32 s2, s2, 256")
            trace(A, ci, 86)
            A("s_sub_u32 s2, s2, 256")
        W = ([WK, WV, WQ] if 'kvq' in EXP else [WK, WQ, WV])[ci // 4]
        c = ci % 4
        lend = A.uid("Lwv")
        for wv in range(4):
            lnx = A.uid("Lwv")
            if wv < 3:
                A(f"s_cmp_eq_u32 {s(S_W)}, {wv}")
                A(f"s_cbranch_scc0 {lnx}")
            for tt in range(2):
                t = 2 * (c ^ wv) + tt
                for T in range(2):
                    wreg = W(T, t)
                    kind, lo = wreg[0], int(wreg[2:].split(":")[0])
                    for p4 in range(4):
                        off = (2 * (p4 & 1) + 8 * (p4 >> 1) + 64 * tt) * 256 + (slot & 1) * 32768
                        A(f"ds_read_b64_tr_b16 {kind}[{lo+2*p4}:{lo+2*p4+1}], v{VR + T + 2*(slot>>1)} offset:{off}")
            if wv < 3:
                A(f"s_branch {lend}")
                A.label(lnx)
        A.label(lend)
        if ci == 7:
            for t in range(8): A(f"ds_write_b32 v{VRO+2}, v{62+t} offset:{1024*t}")
        A("s_waitcnt lgkmcnt(0)")
        A("s_barrier")
        dma_chunk(ci + 4)
        order.append(("c", ci + 4, 8))
        if ci == 1:
            init_stores(); order.append(("i", 0, 8))
        if ci == 2:
            mem0_loads(); order.append(("m", 0, 8))
    for par in range(2): add64(A, INB(par), S_PST + 4 * par, s(S_T3))
    for k in range(4):
        A(f"s_mov_b32 {s(S_SELM+2*k)}, {0x03030303 << (2*k):#x}")
        A(f"s_mov_b32 {s(S_SELM+2*k+1)}, {0x03030303 << (2*k):#x}")
    A(f"s_lshl_b32 {s(S_FLO)}, {s(S_H)}, 7")
    A("""s_waitcnt vmcnt(0)
    s_barrier""")
    if "ctrace" in EXP:
        A("s_add_u32 s2, s2, 256")
        trace(A, 12, 86)
        A("s_sub_u32 s2, s2, 256")
    A(f"""v_lshrrev_b32 v56, 4, {v(V_L16)}
    v_and_b32 v56, 3, v56
    s_lshl_b32 {s(S_T0)}, {s(S_H)}, 2
    v_add_u32 v56, {s(S_T0)}, v56
    v_lshlrev_b32 v56, 7, v56
    v_add_u32 v56, {FL_MINI}, v56
    global_load_dwordx2 v[40:41], {v(V_ZZ)}, {s(S_DBG,2)} offset:{DBG_XCC0} sc1
    global_load_dword v42, {v(V_ZZ)}, {s(S_DBG,2)} offset:{DBG_INIT} sc1
    s_waitcnt vmcnt(0)
    global_load_dword v43, v56, {s(S_FLB,2)} sc1""")
    def wo_read(f, reg):
        T, tp = f >> 1, f & 1
        A(f"v_xor_b32 v{VRO+1}, {T*32}, v{VRO}")
        for p4 in range(4):
            off = (32 * tp + 16 * (p4 >> 1) + 2 * (p4 & 1)) * 256
            A(f"ds_read_b64_tr_b16 v[{reg+2*p4}:{reg+2*p4+1}], v{VRO+1} offset:{off}")
    tmp = [32, 44] + [56 + 8 * i for i in range(9)]
    regs = {}
    for f in range(13): regs[f] = {5: 16, 6: 24}.get(f) or tmp.pop(0)
    PK = VRO + 3
    for k, f in enumerate([13, 14, 15]): wo_read(f, 56 + 8 * k)
    A("s_waitcnt lgkmcnt(0)")
    for k in range(6): A(f"ds_write_b128 v{PK}, v[{56+4*k}:{59+4*k}] offset:{1024*k}")
    A("s_waitcnt lgkmcnt(0)")
    for f in range(13):
        wo_read(f, regs[f])
        if f % 3 == 2: A("s_waitcnt lgkmcnt(4)")
    A("s_waitcnt lgkmcnt(0)")
    A("s_barrier")
    for k, w_ in enumerate(EARLY):
        lo = int(w_[2:].split(":")[0])
        A(f"ds_write_b128 {v(V_WOR)}, a[{lo}:{lo+3}] offset:{early_slot(k)*2048}")
        A(f"ds_write_b128 {v(V_WOR)}, a[{lo+4}:{lo+7}] offset:{early_slot(k)*2048+1024}")
    A("s_waitcnt lgkmcnt(0)")
    for f in (0, 1, 2, 3, 4, 12):
        A(f"ds_write_b128 {v(V_WOR)}, v[{regs[f]}:{regs[f]+3}] offset:{lds_slot(f)*2048}")
        A(f"ds_write_b128 {v(V_WOR)}, v[{regs[f]+4}:{regs[f]+7}] offset:{lds_slot(f)*2048+1024}")
    for k, w_ in enumerate(EARLY):
        lo = int(w_[2:].split(":")[0])
        for r in range(8): A(f"v_accvgpr_write_b32 a{lo+r}, v{regs[7+k]+r}")
    A("s_waitcnt lgkmcnt(0)")
    for k in range(6): A(f"ds_read_b128 v[{56+4*k}:{59+4*k}], v{PK} offset:{1024*k}")
    A("s_waitcnt lgkmcnt(0)")
    for k in range(6): A(f"ds_write_b128 {v(V_WOR)}, v[{56+4*k}:{59+4*k}] offset:{13*2048+1024*k}")
    A(f"""s_waitcnt vmcnt(0)
    v_readfirstlane_b32 s70, v40
    v_readfirstlane_b32 s71, v41
    v_readfirstlane_b32 s72, v42
    v_cmp_ne_u32 s[74:75], 1, v43""")
    for r in range(4): A(f"v_mov_b32 v{V_ONES+r}, 0x3f803f80")
    for r in range(V_ZZ, V_X + 2): A(f"v_mov_b32 v{r}, 0")
    A("""s_waitcnt lgkmcnt(0)
    s_barrier""")

def spin_guard(A):
    A(f"s_add_u32 {s(S_SPIN)}, {s(S_SPIN)}, 1")
    A(f"s_cmp_gt_u32 {s(S_SPIN)}, 0x400000")
    A("s_cbranch_scc1 L_end")

NST = 10
TRACE = False
DBGT = {2: 44, 3: 48}
MINI = True
FASTST = ""
FASTLD = "sc1"
def trace(A, tid_, vt):
    if "dbgt" in EXP and isinstance(tid_, int) and tid_ in DBGT:
        ld = A.uid("Ldt")
        A(f"s_cmp_eq_u32 {s(S_W)}, 0")
        A(f"s_cbranch_scc0 {ld}")
        A("s_memrealtime s[100:101]")
        A("s_waitcnt lgkmcnt(0)")
        A(f"v_mov_b32 v{vt+1}, s100")
        A(f"v_mov_b32 v{vt}, {DBGT[tid_]}")
        A("s_mov_b64 exec, 1")
        A(f"global_atomic_umax v{vt}, v{vt+1}, {s(S_DBG,2)}")
        if tid_ == 3:
            A("s_not_b32 s100, s98")
            A(f"v_mov_b32 v{vt+1}, s100")
            A(f"v_mov_b32 v{vt}, 36")
            A(f"global_atomic_umax v{vt}, v{vt+1}, {s(S_DBG,2)}")
        A("s_mov_b64 exec, -1")
        A.label(ld)
        return
    if not TRACE: return
    A("s_memrealtime s[100:101]")
    A("s_waitcnt lgkmcnt(0)")
    A(f"v_mov_b32 v{vt+1}, s100")
    A("s_lshl_b32 s100, s2, 4")
    A(f"s_add_u32 s100, s100, {tid_}")
    A("s_lshl_b32 s100, s100, 2")
    A(f"s_add_u32 s100, s100, {WS_DBG + (2<<20)}")
    A(f"v_mov_b32 v{vt}, s100")
    A(f"global_store_dword v{vt}, v{vt+1}, {s(S_WS,2)}")
EXP = {"in64", "pflast", "oldkv", "o2", "mini2"}
PRM = dict(dA=3, dB=10, dGA=5, dGB=9, ne=2, bq=6, dd=0, dd3=0, dEL=0, ncp=1, cpo=0, dr=5)
def zero_acc(A):
    A(f"v_mfma_f32_32x32x8_bf16 {v(V_ACC,16)}, {v(V_ZZ,2)}, {v(V_ZZ,2)}, 0")
    A(f"v_mfma_f32_32x32x8_bf16 {v(V_ACC+16,16)}, {v(V_ZZ,2)}, {v(V_ZZ,2)}, 0")

def dma4(par):
    return [f"s_mov_b32 m0, {s(S_KXM0+par)}"] + [f"global_load_lds_dwordx4 {v(V_KXO)}, {s(S_WS,2)} offset:{1024*i} sc1" for i in range(4)] + [f"v_add_u32 {v(V_KXO)}, 0x40000, {v(V_KXO)}"]

def kv_read(A, KP):
    A(f"s_lshl_b32 {s(S_T0)}, {s(S_W)}, 10")
    A(f"v_add_u32 v{KP+4}, {s(S_T0)}, {v(V_TR)}")
    A(f"ds_read_b64_tr_b16 v[{KP}:{KP+1}], v{KP+4}")
    A(f"ds_read_b64_tr_b16 v[{KP+2}:{KP+3}], v{KP+4} offset:256")
    A(f"s_mov_b64 exec, {s(S_MK3,2)}")
    A(f"ds_read_b128 {v(KP,4)}, {v(V_XR)}")
    A("s_mov_b64 exec, -1")

def early_ld(k):
    r = EARLY_STG[k]
    return [f"ds_read_b128 {v(r,4)}, {v(V_WOR)} offset:{early_slot(k)*2048}", f"ds_read_b128 {v(r+4,4)}, {v(V_WOR)} offset:{early_slot(k)*2048+1024}"]

def flag_wait(A, name, vt):
    A(f"s_mov_b32 {s(S_SPIN)}, 0")
    A(f"v_mov_b32 v{vt}, {s(S_FLO)}")
    A.label(name)
    A(f"global_load_dword v{vt+1}, v{vt}, {s(S_FLB,2)} sc1")
    spin_guard(A)
    A(f"""s_waitcnt vmcnt(0)
    v_readfirstlane_b32 {s(S_T0)}, v{vt+1}
    s_cmp_eq_u32 {s(S_T0)}, 1
    s_cbranch_scc0 {name}""")

def load_counters(A, vt, sdst):
    A(f"""v_mbcnt_lo_u32_b32 v{vt}, -1, 0
    v_mbcnt_hi_u32_b32 v{vt}, -1, v{vt}
    v_and_b32 v{vt}, 7, v{vt}
    v_lshlrev_b32 v{vt}, 2, v{vt}
    v_mov_b32 v{vt+1}, {DBG_XCC0}
    v_cmp_eq_u32 vcc, 0, v{vt}
    v_cndmask_b32 v{vt}, v{vt}, v{vt+1}, vcc
    global_load_dword v{vt+1}, v{vt}, {s(S_DBG,2)} sc1
    s_waitcnt vmcnt(0)""")
    for k in range(8): A(f"v_readlane_b32 {s(sdst+k)}, v{vt+1}, {k}")
    A(f"s_add_u32 {s(S_T0)}, {s(sdst)}, {s(sdst+1)}")
    for k in range(2, 8): A(f"s_add_u32 {s(S_T0)}, {s(S_T0)}, {s(sdst+k)}")

FORCE_MODE = None
def decide_mode(A):
    if FORCE_MODE is not None:
        A(f"s_mov_b32 {s(S_MODE)}, {FORCE_MODE}")
        return
    A(f"s_mov_b32 {s(S_SPIN)}, 0")
    A.label("L_rec_md")
    spin_guard(A)
    load_counters(A, 56, 70)
    A(f"""s_mov_b32 {s(S_MODE)}, 0
    s_cmp_ge_u32 s70, 32
    s_cbranch_scc1 L_rec_mdok
    s_mov_b32 {s(S_MODE)}, 1
    s_cmp_ge_u32 {s(S_T0)}, 256
    s_cbranch_scc0 L_rec_md""")
    A.label("L_rec_mdok")

def gen_preloop(A, timing, stamps, n_init=0):
    A.comment("pre-loop")
    trace(A, 1, 56)
    if n_init and FORCE_MODE is None:
        A(f"""s_mov_b32 {s(S_MODE)}, 0
        s_min_u32 s70, s70, s71
        s_cmp_lt_u32 s70, 32
        s_cbranch_scc1 L_rec_slowchk
        s_cmp_lt_u32 s72, {n_init}
        s_cbranch_scc1 L_rec_slowchk
        s_cmp_lg_u64 s[74:75], 0
        s_cbranch_scc1 L_rec_slowchk""")
        for x in dma4(0): A(x)
        A("s_waitcnt vmcnt(0)")
        A("s_branch L_rec_go")
        A.label("L_rec_slowchk")
    if n_init:
        decide_mode(A)
        A(f"s_mov_b32 {s(S_SPIN)}, 0")
        A.label("L_rec_gi")
        A(f"global_load_dword v56, {v(V_ZZ)}, {s(S_DBG,2)} offset:{DBG_INIT} sc1")
        spin_guard(A)
        A(f"""s_waitcnt vmcnt(0)
        v_readfirstlane_b32 {s(S_T0)}, v56
        s_cmp_ge_u32 {s(S_T0)}, {n_init}
        s_cbranch_scc0 L_rec_gi""")
    if n_init:
        A(f"""v_and_b32 v56, 3, {v(V_INL)}
        v_lshrrev_b32 v56, 4, {v(V_L16)}
        v_and_b32 v56, 3, v56
        s_lshl_b32 {s(S_T0)}, {s(S_H)}, 2
        v_add_u32 v56, {s(S_T0)}, v56
        v_lshlrev_b32 v56, 7, v56
        v_add_u32 v56, {FL_MINI}, v56
        s_mov_b32 {s(S_SPIN)}, 0""")
        A.label("L_rec_f0")
        A(f"global_load_dword v57, v56, {s(S_FLB,2)} sc1")
        spin_guard(A)
        A(f"""s_waitcnt vmcnt(0)
        v_cmp_ne_u32 vcc, 1, v57
        s_cbranch_vccnz L_rec_f0""")
    else:
        flag_wait(A, "L_rec_f0", 56)
    for x in dma4(0): A(x)
    A.label("L_rec_i0")
    A(f"global_load_dword v56, {v(V_ZZ)}, {s(S_DBG,2)} offset:{DBG_RECINIT} sc1")
    spin_guard(A)
    A(f"""s_waitcnt vmcnt(0)
    v_readfirstlane_b32 {s(S_T0)}, v56
    s_cmp_ge_u32 {s(S_T0)}, 32
    s_cbranch_scc0 L_rec_i0""")
    A.label("L_rec_go")
    A(f"s_mov_b32 {s(S_STEP)}, 0")
    A(f"s_and_b32 {s(S_T0)}, {s(S_H)}, {PRM['ncp']-1}")
    A(f"s_mul_i32 {s(S_T0)}, {s(S_T0)}, {32768 + PRM['cpo']}")
    for r in range(4): add64(A, S_MEMG + 2 * r, S_MEMX + 2 * r, s(S_T0))
    zero_acc(A)
    A(f"""v_mov_b32 v116, -1
    v_mov_b32 v112, 0
    v_mov_b32 v113, 0
    v_mov_b32 v114, 0
    v_mov_b32 v115, 0""")
    A(f"ds_read_b128 {v(V_M,4)}, {v(V_W2K)} offset:{L_MEM}")
    A(f"ds_read_b128 {v(V_M+4,4)}, {v(V_W2K)} offset:{L_MEM+1024}")
    for P in range(1, 4): A(f"v_xor_b32 v{V_T+P-1}, {P*2048}, {v(V_W2K)}")
    trace(A, 2, 56)
    A("s_nop 15")
    for k in range(5):
        for x in early_ld(k): A(x)
    A("s_waitcnt lgkmcnt(0)")
    A("s_barrier")
    if timing:
        A("s_memtime s[66:67]")
        A("s_waitcnt lgkmcnt(0)")
    if stamps:
        for k in range(NST): A(f"s_mov_b32 s{90+k}, 0")

class LT:
    def __init__(self, A): self.A, self.ops, self.done = A, [], 0
    def op(self, name, ins):
        self.ops.append(name); return ins
    def wait(self, name):
        i = len(self.ops) - 1 - self.ops[::-1].index(name)
        if i < self.done: return None
        self.done = i + 1
        return f"s_waitcnt lgkmcnt({min(len(self.ops) - 1 - i, 15)})"

def gen_step(A, k4, mode, dbg, stamps):
    sfx = f"{'s' if mode == ' sc1' else 'f'}{k4}"
    par, phase = k4 & 1, ((k4 >> 1) & 1) ^ 1
    ldf = "sc1" if mode == " sc1" else FASTLD
    def stamp(k):
        if stamps: A(f"{'s_memrealtime' if 'rt' in EXP else 's_memtime'} s[{70+2*k}:{71+2*k}]")
    M = lambda t: v(V_M + 4 * t, 4)
    F = lambda u: v(V_F + 4 * u, 4)
    KXR = lambda j: [v(88,4), v(92,4), v(104,4), v(108,4)][j] if j < 4 else M(j - 4)
    idx = v(V_IDX)
    lt = LT(A)
    def emit(x):
        if x is None: return
        if isinstance(x, str): A(x)
        elif x[0] == "ds": A(lt.op(x[1], x[2]))
        elif x[0] == "w":
            w = lt.wait(x[1])
            if w: A(w)
    def run(main, fills):
        for k, m in enumerate(main):
            for x in m: emit(x)
            for x in fills.get(k, []): emit(x)
    def post(acc, d0, d1):
        return [f"v_add_f32 v{acc}, v{acc}, v{acc+2}", f"v_add_f32 v{acc+1}, v{acc+1}, v{acc+3}",
                f"v_add_f32 v{acc+4}, v{acc+4}, v{acc+6}", f"v_add_f32 v{acc+5}, v{acc+5}, v{acc+7}",
                f"v_cvt_pk_bf16_f32 v{d0}, v{acc}, v{acc+1}", f"v_cvt_pk_bf16_f32 v{d1}, v{acc+4}, v{acc+5}"]
    mrd = lambda t, tag: ("ds", f"M{tag}{t}", f"ds_read_b128 {M(t)}, v{V_T+(t>>1)-1} offset:{L_MEM+(t&1)*1024}")
    kxrd = lambda j: ("ds", f"KX{j}", f"ds_read_b128 {KXR(j)}, {v(V_L16)} offset:{L_KX+par*8192+j*1024}")
    frd = lambda i, tag: ("ds", f"F{tag}{i}", f"ds_read_b64_tr_b16 {v(V_F+2*i,2)}, {v(V_TR)} offset:{(i>>1)*1024+(i&1)*256}")
    slots = [44, 52, 60, 68, 112]
    NS = len(slots)
    def wreg(f):
        if f < 5: return v(slots[f], 8)
        if f < 7: return v(V_WO01 + 8 * (f - 5), 8)
        if f < 12: return EARLY[f - 7]
        return v(slots[f - 12], 8)
    def wo_ld(f):
        r = slots[f] if f < 5 else slots[f - 12]
        return [("ds", f"W{f}a", f"ds_read_b128 {v(r,4)}, {v(V_WOR)} offset:{lds_slot(f)*2048}"),
                ("ds", f"W{f}", f"ds_read_b128 {v(r+4,4)}, {v(V_WOR)} offset:{lds_slot(f)*2048+1024}")]
    smf = lambda acc, T, t, W: f"v_smfmac_f32_16x16x64_bf16 {v(acc+4*T,4)}, {M(t)}, {W(T,t)}, {idx}"
    KP = 112
    A.label(f"L_rec_step_{sfx}")
    if TRACE and k4 == 0:
        lt_ = A.uid("Ltr")
        A(f"s_and_b32 {s(S_T0)}, {s(S_STEP)}, 7")
        A(f"s_cmp_eq_u32 {s(S_T0)}, 0")
        A(f"s_cbranch_scc0 {lt_}")
        A(f"s_lshr_b32 {s(S_T0)}, {s(S_STEP)}, 3")
        A(f"s_add_u32 {s(S_T0)}, {s(S_T0)}, 4")
        trace(A, s(S_T0), 117)
        A("s_memtime s[100:101]")
        A("s_waitcnt lgkmcnt(0)")
        A("v_mov_b32 v118, s100")
        A(f"v_add_u32 v117, 0x10000, v117")
        A(f"global_store_dword v117, v118, {s(S_WS,2)}")
        A.label(lt_)
    stamp(0)
    if k4 == 3:
        A(f"s_cmp_eq_u32 {s(S_STEP)}, 63")
        A("s_cbranch_scc1 L_rec_last")
    d4 = dma4(par ^ 1) if "nold" not in EXP else [None] * 6
    hk = [f"global_store_dword {v(V_MST)}, v{KP+4}, {s(S_MEMX+2*((k4+1)&3),2)}{mode}", f"v_add_u32 {v(V_KVO)}, 0x20000, {v(V_KVO)}"]
    fl = []
    if k4 == 2: fl.append(f"global_load_dword {v(V_FLAG)}, v{KP+7}, {s(S_FLB,2)} sc1")
    kvst = f"global_store_dwordx4 {v(V_KVO)}, {v(KP,4)}, {s(S_KVB,2)} sc1"
    NE = PRM["ne"]
    early = [[smf(V_AK, T, t, WK)] for t in range(2) for T in range(2)] + [[smf(V_AQ, T, t, WQ)] for t in range(2) for T in range(2)]
    for k in range(5): early[k] = [early[k][0].replace(EARLY[k], v(EARLY_STG[k], 8))]
    early[0] = ["s_waitcnt lgkmcnt(2)"] + early[0]
    run(early, {NE: ["s_waitcnt lgkmcnt(0)", "s_barrier", mrd(2, "a"), mrd(3, "a")], NE + 1: [mrd(4, "a")], NE + 2: [mrd(5, "a")], NE + 3: [mrd(6, "a")],
                NE + 4: [mrd(7, "a")], NE + 5 - PRM.get("kvp", 0): [kvst]} if PRM.get("kvp", 0) == 0 else
               {NE: ["s_waitcnt lgkmcnt(0)", "s_barrier", mrd(2, "a"), mrd(3, "a"), kvst], NE + 1: [mrd(4, "a")], NE + 2: [mrd(5, "a")], NE + 3: [mrd(6, "a")], NE + 4: [mrd(7, "a")]})
    run([[("w", f"Ma{t}"), smf(V_AK, T, t, WK)] for t in range(2, 8) for T in range(2)],
        {0: [d4[0]], 1: [d4[1]], 3: [d4[2]], 5: [d4[3]], 7: [d4[4], d4[5]], 8: hk, 9: fl + [f"s_waitcnt vmcnt({6 + len(fl)})", kxrd(2)], 11: [kxrd(3)]})
    stamp(1)
    kp = post(V_AK, V_T + 2, V_T + 3)
    fills = {7: kp[0:2], 8: kp[2:4], 9: kp[4:6],
             10: [("ds", "KW", f"ds_write2_b32 {v(V_QKW)}, v{V_T+2}, v{V_T+3} offset0:1 offset1:129"), kxrd(0)],
             11: [kxrd(1)]}
    run([[smf(V_AQ, T, t, WQ)] for t in range(2, 8) for T in range(2)], fills)
    stamp(2)
    SX, PX, SM, OA, LA = 80, 104, 88, 80, 112
    VXR = (108, 92)
    qp = post(V_AQ, V_T, V_T + 1)
    fills = {PRM.get("qi", 1): [kxrd(4), f"s_nop {5 - PRM.get('qi', 1)}"] + qp + [("ds", "QW", f"ds_write2_b32 {v(V_QKW)}, v{V_T}, v{V_T+1} offset0:0 offset1:128")],
             }
    fills[3] = fills.get(3, []) + [kxrd(5)]
    bq = PRM["bq"]
    fills[bq] = fills.get(bq, []) + [f"s_waitcnt vmcnt({6 + (1 if k4 == 2 else 0)})", ("w", "QW"), "s_barrier"]
    for j in range(4): fills[bq + j] = fills.get(bq + j, []) + [frd(2 * j, "a"), frd(2 * j + 1, "a")]
    fills[bq + 4] = fills.get(bq + 4, []) + [kxrd(6)]
    fills[bq + 5] = fills.get(bq + 5, []) + [kxrd(7)]
    run([[smf(V_AV, T, t, WV)] for t in range(6) for T in range(2)], fills)
    stamp(3)
    def sxm(kt):
        L = []
        for u in range(4):
            d = SX + 4 * kt; j = kt * 4 + u
            L.append([("w", f"Fa{2*u+1}"), ("w", f"KX{j}"),
                      f"v_mfma_f32_16x16x32_bf16 {v(d,4)}, {KXR(j)}, {F(u)}, {'0' if u == 0 else v(d,4)}"])
        return L
    smm = [[f"v_mfma_f32_16x16x32_bf16 {v(SM,4)}, {F(u)}, {F(u)}, {'0' if u == 0 else v(SM,4)}"] for u in range(4)]
    m, t1 = V_T, V_T + 1
    ta, tb = V_T + 2, V_T + 3
    xs = list(range(SX, SX + 8))
    def pexp(k): return [f"v_exp_f32 v{ta}, v{xs[2*k]}", f"v_exp_f32 v{tb}, v{xs[2*k+1]}", f"v_cvt_pk_bf16_f32 v{PX+k}, v{ta}, v{tb}"]
    vx = [("ds", "VX0", f"ds_read_b128 {v(VXR[0],4)}, {v(V_W2K)} offset:{L_VX+par*8192}"),
          ("ds", "VX1", f"ds_read_b128 {v(VXR[1],4)}, {v(V_W2K)} offset:{L_VX+par*8192+1024}")]
    w2, w3, w4, w5 = wo_ld(0), wo_ld(1), wo_ld(2), wo_ld(3)
    vb = [[smf(V_AV, T, t, WV)] for t in range(6, 8) for T in range(2)]
    vp = post(V_AV, V_X, V_X + 1)
    e0, e1, e2, e3 = pexp(0), pexp(1), pexp(2), pexp(3)
    pm = [f"v_mul_f32 v{SM+2}, {s(S_SCALE)}, v{SM+2}", f"v_mul_f32 v{SM+3}, {s(S_SCALE)}, v{SM+3}",
          f"v_exp_f32 v{SM}, v{SM+2}", f"v_exp_f32 v{SM+1}, v{SM+3}",
          f"v_cvt_pk_bf16_f32 v{V_PA}, v{SM}, v{SM+1}", f"v_cvt_pk_bf16_f32 v{V_PB+1}, v{SM}, v{SM+1}"]
    ck = [f"v_max3_f32 v{m}, |v{xs[0]}|, |v{xs[1]}|, |v{xs[2]}|", f"v_max3_f32 v{m}, v{m}, |v{xs[3]}|, v{SM+2}",
          f"v_max3_f32 v{t1}, |v{xs[4]}|, |v{xs[5]}|, v{SM+3}", f"v_max3_f32 v{m}, v{m}, |v{xs[6]}|, |v{xs[7]}|",
          f"v_max_f32 v{m}, v{m}, v{t1}", f"v_cmp_lt_f32 vcc, 0x42700000, v{m}"]
    main = sxm(0) + smm + sxm(1) + vb
    fills = {1: [w4[0]], 2: [w4[1]], 3: [vx[0]], 4: [vx[1]], 7: ["s_nop 1", e0[0]], 8: [e0[1], w2[0]], 9: [w2[1], e0[2], e1[0]], 10: [w3[0], e1[1]], 11: [w3[1], e1[2], ck[0]],
             12: pm[0:2], 13: pm[2:4] + [ck[1], w5[0]], 14: pm[4:6], 15: [w5[1]]}
    run(main, fills)
    stamp(4)
    for x in ck[2:] + e2 + e3: emit(x)
    A(f"s_and_b64 vcc, vcc, {s(S_MK3,2)}")
    A(f"s_cbranch_scc1 L_rec_fb_{sfx}")
    A.label(f"L_rec_fbret_{sfx}")
    emit(("w", "VX1"))
    for x in vp[:2]: A(x)
    A(f"v_mfma_f32_16x16x32_bf16 {v(LA,4)}, {v(V_ONES,4)}, {v(PX,4)}, 0")
    A(vp[2])
    A(f"v_mfma_f32_16x16x32_bf16 {v(OA,4)}, {v(VXR[0],4)}, {v(PX,4)}, 0")
    A(vp[3])
    A(f"v_mfma_f32_16x16x32_bf16 {v(OA+4,4)}, {v(VXR[1],4)}, {v(PX,4)}, 0")
    for x in vp[4:]: A(x)
    A(f"v_mfma_f32_16x16x16_bf16 {v(LA,4)}, {v(V_ONES,2)}, {v(V_PA,2)}, {v(LA,4)}")
    if "o1" not in EXP: emit(("ds", "XW", f"ds_write2_b32 {v(V_XW)}, v{V_X}, v{V_X+1} offset0:0 offset1:64"))
    A(f"v_mfma_f32_16x16x16_bf16 {v(OA,4)}, {v(V_X,2)}, {v(V_PA,2)}, {v(OA,4)}")
    A(f"v_mfma_f32_16x16x16_bf16 {v(OA+4,4)}, {v(V_X,2)}, {v(V_PB,2)}, {v(OA+4,4)}")
    if "nocomm" in EXP: stamp(7)
    for k in range(4): A(f"v_mov_b64 {v(96+2*k,2)}, 0")
    A(f"v_rcp_f32 v{t1}, v{LA}")
    if "o1" not in EXP:
        for x in wo_ld(4): emit(x)
    if "o2" in EXP: A(f"s_mov_b64 exec, {s(S_MK3,2)}")
    for r in range(4): A(f"v_mul_f32 v{OA+r}, v{OA+r}, v{t1}")
    for k in range(2): A(f"v_cvt_pk_bf16_f32 v{V_T+2+k}, v{OA+2*k}, v{OA+2*k+1}")
    emit(("ds", "OW0", f"ds_write_b64 {v(V_OW)}, {v(V_T+2,2)}"))
    for r in range(4, 8): A(f"v_mul_f32 v{OA+r}, v{OA+r}, v{t1}")
    for k in range(2): A(f"v_cvt_pk_bf16_f32 v{V_T+k}, v{OA+4+2*k}, v{OA+5+2*k}")
    emit(("ds", "OW", f"ds_write_b64 {v(V_OW)}, {v(V_T,2)} offset:512"))
    if "o2" in EXP: A("s_mov_b64 exec, -1")
    A(f"v_mfma_f32_32x32x8_bf16 {v(V_ACC,16)}, {v(V_ZZ,2)}, {v(V_ZZ,2)}, 0")
    for k in range(4): A(f"v_mov_b64 {v(104+2*k,2)}, 0")
    emit(("w", "OW"))
    A("s_barrier")
    stamp(5)
    OF = 120
    emit(("ds", "OF0", f"ds_read_b128 {v(OF,4)}, {v(V_L16)} offset:{L_O}"))
    emit(("ds", "OF1", f"ds_read_b128 {v(OF+4,4)}, {v(V_L16)} offset:{L_O+1024}"))
    if "o1" in EXP:
        for x in wo_ld(4): emit(x)
        emit(("ds", "XW", f"ds_write2_b32 {v(V_XW)}, v{V_X}, v{V_X+1} offset0:0 offset1:64"))
    def post_tile(T):
        b = V_ACC + 4 * T
        d = (V_T if T < 4 else V_ACC) + (T & 3)
        L = [f"v_add_f32 v{b}, v{b}, v{b+2}", f"v_add_f32 v{b+1}, v{b+1}, v{b+3}", f"v_cvt_pk_bf16_f32 v{d}, v{b}, v{b+1}"]
        if (T & 3) == 0: L.append(f"v_and_or_b32 v{d}, v{d}, -2, {phase}")
        return L
    for f in range(16):
        T, tp = f >> 1, f & 1
        if f < 2: emit(("w", f"OF{f}"))
        if f < 5 or f >= 12: emit(("w", f"W{f}"))
        A(f"v_smfmac_f32_16x16x64_bf16 {v(V_ACC+4*T,4)}, {v(OF+4*tp,4)}, {wreg(f)}, {idx}")
        if f == PRM.get("sf", 1) and "nocomm" in EXP: stamp(8)
        if 1 <= f < 9: emit(wo_ld(12 + (f - 1) // 2)[(f - 1) & 1])
        if tp == 1 and T >= 2:
            for x in post_tile(T - 2): A(x)
            if T - 2 == 3:
                A(f"global_store_dwordx4 {v(V_PST)}, {v(V_T,4)}, {s(S_PST+4*par,2)}{mode}")
    for T in (6, 7):
        for x in post_tile(T): A(x)
    A(f"global_store_dwordx4 {v(V_PST)}, {v(V_ACC,4)}, {s(S_PST+4*par+2,2)}{mode}")
    if "ack" in EXP:
        stamp(5)
        A("s_waitcnt vmcnt(0)")
    stamp(6)
    RA, SEL, D = 44, 60, 64
    kv_read(A, KP)
    for k in range(4): A(f"v_cndmask_b32 v{SEL+k}, 0, {v(V_SELV)}, {s(S_SELM+2*k,2)}")
    A(f"v_mfma_f32_32x32x8_bf16 {v(V_ACC,16)}, {v(V_ZZ,2)}, {v(V_ZZ,2)}, 0")
    for k in range(4): A(f"v_mov_b64 {v(96+2*k,2)}, 0")
    for x in early_ld(3) + early_ld(4) + early_ld(0) + early_ld(2): A(x)
    A(f"v_mov_b32 v{KP+4}, -1")
    if k4 == 1:
        A(f"""s_add_u32 {s(S_FLO)}, {s(S_FLO)}, 4096
        s_lshl_b32 {s(S_T0)}, {s(S_H)}, 7
        s_add_u32 {s(S_T0)}, {s(S_T0)}, {15*4096}
        s_min_u32 {s(S_FLO)}, {s(S_FLO)}, {s(S_T0)}
        v_mov_b32 v{KP+7}, {s(S_FLO)}""")
    A("s_waitcnt lgkmcnt(8)")
    A(f"v_min_u32 v{KP}, -2, v{KP}")
    def delay(n):
        for _ in range(n): A("s_nop 3")
    if "nocomm" in EXP:
        A(f"ds_read_b128 {v(V_M,4)}, {v(V_W2K)} offset:{L_VX+par*8192}")
        A(f"ds_read_b128 {v(V_M+4,4)}, {v(V_W2K)} offset:{L_VX+par*8192+1024}")
        for P in range(1, 4): A(f"v_xor_b32 v{V_T+P-1}, {P*2048}, {v(V_W2K)}")
        for x in early_ld(1): A(x)
        A("s_waitcnt vmcnt(2) lgkmcnt(0)")
        A(f"ds_write_b128 {v(V_W2K)}, {v(V_M,4)} offset:{L_MEM}")
        A(f"ds_write_b128 {v(V_W2K)}, {v(V_M+4,4)} offset:{L_MEM+1024}")
        stamp(9)
        A(f"s_branch L_rec_acc_{sfx}")
    lz = A.uid("Lz")
    A(f"s_cmp_lt_u32 {s(S_W)}, 2")
    A(f"s_cbranch_scc1 {lz}")
    delay(PRM["dB"])
    A.label(lz)
    delay(PRM["dA"])
    RB = 52
    oolq = []
    def pretry(name, ret, ld, inval, R0, R1, R2, fin):
        def blk():
            INV = s(S_SRC, 2)
            A.label(name)
            A(f"s_mov_b64 {INV}, vcc")
            A(f"s_mov_b64 exec, vcc")
            ld(R1)
            for _ in range(PRM["dr"]): A("s_nop 3")
            ld(R2)
            A.label(name + "_l")
            for R in (R1, R2):
                if stamps and "rt" not in EXP: A("s_add_u32 s99, s99, 1")
                A("s_waitcnt vmcnt(2)")
                inval(R)
                A(f"s_andn2_b64 exec, {INV}, vcc")
                for k in range(4): A(f"v_mov_b64 {v(R0+2*k,2)}, {v(R+2*k,2)}")
                A(f"s_and_b64 {INV}, {INV}, vcc")
                A(f"s_cbranch_scc0 {name}_d")
                A(f"s_mov_b64 exec, {INV}")
                ld(R)
            spin_guard(A)
            A(f"s_branch {name}_l")
            A.label(name + "_d")
            A("s_mov_b64 exec, -1")
            fin()
            A(f"s_branch {ret}")
        oolq.append(blk)
    def ld_in(R):
        A(f"global_load_dwordx4 {v(R,4)}, {v(V_INL)}, {s(INB(par),2)} {ldf}")
        A(f"global_load_dwordx4 {v(R+4,4)}, {v(V_INL)}, {s(INB(par),2)} offset:{1024 if 'in64' in EXP else 2048} {ldf}")
    def red_chk(R, n_after):
        A(f"s_waitcnt vmcnt({n_after+1})")
        A(f"v_mfma_f32_16x16x32_bf16 {v(D,4)}, {v(R,4)}, {v(SEL,4)}, 0")
        A(f"s_waitcnt vmcnt({n_after})")
        A(f"v_mfma_f32_16x16x32_bf16 {v(D,4)}, {v(R+4,4)}, {v(SEL,4)}, {v(D,4)}")
        A(f"v_and_b32 v117, v{R}, v{R+4}" if phase else f"v_or_b32 v117, v{R}, v{R+4}")
        A("v_and_b32 v117, 1, v117")
        A(f"v_cmp_ne_u32 vcc, {phase}, v117")
    A(f"s_mov_b32 {s(S_SPIN)}, 0")
    if PRM["dd"]:
        ld_in(RA)
        delay(PRM["dd"])
        A.label(f"L_p2_{sfx}")
        ld_in(RB)
        if stamps and "rt" not in EXP: A("s_add_u32 s99, s99, 1")
        red_chk(RA, 2)
        A(f"s_cbranch_vccz L_p2d_{sfx}")
        ld_in(RA)
        spin_guard(A)
        if stamps and "rt" not in EXP: A("s_add_u32 s99, s99, 1")
        red_chk(RB, 2)
        A(f"s_cbranch_vccnz L_p2_{sfx}")
        A.label(f"L_p2d_{sfx}")
    else:
        if "mr" in EXP: A("s_mov_b64 vcc, -1")
        A.label(f"L_p2_{sfx}")
        if stamps and "rt" not in EXP: A("s_add_u32 s99, s99, 1")
        if "mr" in EXP: A("s_mov_b64 exec, vcc")
        ld_in(RA)
        if "mr" in EXP: A("s_mov_b64 exec, -1")
        spin_guard(A)
        red_chk(RA, 0)
        if "pr" in EXP:
            A(f"s_cbranch_vccnz L_p2r_{sfx}")
            A.label(f"L_p2ok_{sfx}")
            def inv2(R):
                A(f"v_and_b32 v117, v{R}, v{R+4}" if phase else f"v_or_b32 v117, v{R}, v{R+4}")
                A("v_and_b32 v117, 1, v117")
                A(f"v_cmp_ne_u32 vcc, {phase}, v117")
            def fin2():
                A("s_nop 1")
                A(f"v_mfma_f32_16x16x32_bf16 {v(D,4)}, {v(RA,4)}, {v(SEL,4)}, 0")
                A(f"v_mfma_f32_16x16x32_bf16 {v(D,4)}, {v(RA+4,4)}, {v(SEL,4)}, {v(D,4)}")
                A("s_nop 6")
            pretry(f"L_p2r_{sfx}", f"L_p2ok_{sfx}", ld_in, inv2, RA, 52, 120, fin2)
        else:
            A(f"s_cbranch_vccnz L_p2_{sfx}")
    stamp(7)
    if "pl" in EXP:
        A(f"""v_add_f32 v{D}, v{D}, v{D+1}
        v_add_f32 v{D+2}, v{D+2}, v{D+3}
        v_add_f32 v{D+1}, v{D}, v{D+2}
        v_add_f32 v{D}, v{D}, v{D+2}
        v_permlane16_swap_b32 v{D}, v{D+1}
        v_cvt_pk_bf16_f32 v{D}, v{D}, v{D+1}
        v_min_u32 v{D}, -2, v{D}""")
    else:
        A(f"""v_permlane32_swap_b32 v{D}, v{D+2}
        v_permlane32_swap_b32 v{D+1}, v{D+3}
        v_add_f32 v{D}, v{D}, v{D+2}
        v_add_f32 v{D+1}, v{D+1}, v{D+3}
        v_mov_b32 v{D+2}, v{D}
        v_mov_b32 v{D+3}, v{D+1}
        v_permlane16_swap_b32 v{D}, v{D+2}
        v_permlane16_swap_b32 v{D+1}, v{D+3}
        v_add_f32 v{D}, v{D}, v{D+2}
        v_add_f32 v{D+1}, v{D+1}, v{D+3}
        v_cvt_pk_bf16_f32 v{D}, v{D}, v{D+1}
        v_min_u32 v{D}, -2, v{D}""")
    if "mex" in EXP: A(f"s_mov_b64 exec, {s(S_MEX,2)}")
    A(f"global_store_dword {v(V_MST)}, v{D}, {s(S_MEMX+2*k4,2)}{mode}")
    if "mex" in EXP: A("s_mov_b64 exec, -1")
    if "ack2" in EXP:
        stamp(7)
        A("s_waitcnt vmcnt(0)")
    stamp(8)
    if k4 == 2:
        A(f"v_readfirstlane_b32 {s(S_FLAG)}, {v(V_FLAG)}")
    for x in early_ld(1): A(x)
    for P in range(1, 4): A(f"v_xor_b32 v{V_T+P-1}, {P*2048}, {v(V_W2K)}")
    lz = A.uid("Lz")
    A(f"s_cmp_ge_u32 {s(S_W)}, 2")
    A(f"s_cbranch_scc1 {lz}")
    delay(PRM["dB"])
    A.label(lz)
    delay(PRM["dGA"])
    mx = s(S_MEMG + 2 * k4, 2)
    def ld_g(R):
        A(f"global_load_dwordx4 {v(R,4)}, {v(V_W2K)}, {mx} {ldf}")
        A(f"global_load_dwordx4 {v(R+4,4)}, {v(V_W2K)}, {mx} offset:1024 {ldf}")
    def g_chk(R, n_after):
        A(f"""s_waitcnt vmcnt({n_after+1})
        ds_write_b128 {v(V_W2K)}, {v(R,4)} offset:{L_MEM}
        v_max3_u32 v117, v{R}, v{R+1}, v{R+2}
        s_waitcnt vmcnt({n_after})
        ds_write_b128 {v(V_W2K)}, {v(R+4,4)} offset:{L_MEM+1024}
        v_max3_u32 v118, v{R+3}, v{R+4}, v{R+5}
        v_max3_u32 v117, v117, v{R+6}, v{R+7}
        v_max_u32 v117, v117, v118
        v_cmp_eq_u32 vcc, -1, v117""")
    A(f"s_mov_b32 {s(S_SPIN)}, 0")
    if PRM["dd3"]:
        RC = 120
        ld_g(RA)
        delay(PRM["dd3"])
        A.label(f"L_p3_{sfx}")
        ld_g(RC)
        if stamps and "rt" not in EXP: A("s_add_u32 s99, s99, 1")
        g_chk(RA, 2)
        A(f"s_cbranch_vccz L_p3d_{sfx}")
        spin_guard(A)
        if stamps and "rt" not in EXP: A("s_add_u32 s99, s99, 1")
        g_chk(RC, 0)
        A(f"s_cbranch_vccz L_p3c_{sfx}")
        ld_g(RA)
        delay(PRM["dd3"])
        A(f"s_branch L_p3_{sfx}")
        A.label(f"L_p3c_{sfx}")
        for k in range(4): A(f"v_mov_b64 {v(RA+2*k,2)}, {v(RC+2*k,2)}")
        A.label(f"L_p3d_{sfx}")
    else:
        if PRM["dEL"]:
            A(f"global_load_dwordx4 {v(RA,4)}, {v(V_W2K)}, {mx} {ldf}")
            delay(PRM["dEL"])
            A(f"global_load_dwordx4 {v(RA+4,4)}, {v(V_W2K)}, {mx} offset:1024 {ldf}")
            A(f"s_branch L_p3b_{sfx}")
        if "mr" in EXP: A("s_mov_b64 vcc, -1")
        A.label(f"L_p3_{sfx}")
        if "mr" in EXP: A("s_mov_b64 exec, vcc")
        ld_g(RA)
        if "mr" in EXP: A("s_mov_b64 exec, -1")
        spin_guard(A)
        A.label(f"L_p3b_{sfx}")
        if stamps and "rt" not in EXP: A("s_add_u32 s99, s99, 1")
        g_chk(RA, 0)
        if "pr" in EXP:
            A(f"s_cbranch_vccnz L_p3r_{sfx}")
            A.label(f"L_p3ok_{sfx}")
            def inv3(R):
                A(f"""v_max3_u32 v117, v{R}, v{R+1}, v{R+2}
                v_max3_u32 v118, v{R+3}, v{R+4}, v{R+5}
                v_max3_u32 v117, v117, v{R+6}, v{R+7}
                v_max_u32 v117, v117, v118
                v_cmp_eq_u32 vcc, -1, v117""")
            def fin3():
                A(f"ds_write_b128 {v(V_W2K)}, {v(RA,4)} offset:{L_MEM}")
                A(f"ds_write_b128 {v(V_W2K)}, {v(RA+4,4)} offset:{L_MEM+1024}")
            pretry(f"L_p3r_{sfx}", f"L_p3ok_{sfx}", ld_g, inv3, RA, 104, 120, fin3)
        else:
            A(f"s_cbranch_vccnz L_p3_{sfx}")
    stamp(9)
    if dbg:
        A(f"s_add_u32 {s(S_T0)}, {s(S_STEP)}, 1")
        A(f"s_lshl_b32 {s(S_T0)}, {s(S_T0)}, 13")
        A(f"s_add_u32 {s(S_T0)}, {s(S_T0)}, {WS_DBG}")
        add64(A, S_SRC, S_WS, s(S_T0))
        for R_, o in ((RA, 0), (RA + 4, 1024)):
            A(f"global_store_dwordx4 {v(V_W2K)}, {v(R_,4)}, {s(S_SRC,2)} offset:{o}")
    if k4 == 2:
        if "mini2" in EXP:
            A(f"s_cmp_eq_u32 {s(S_STEP)}, 2")
            A(f"s_cselect_b32 {s(S_FLAG)}, 0, {s(S_FLAG)}")
        A(f"s_cmp_eq_u32 {s(S_FLAG)}, 1")
        A(f"s_cbranch_scc1 L_rec_fok_{sfx}")
        if MINI and PRM.get('nsg', 1) == 2:
            A(f"s_cmp_eq_u32 {s(S_STEP)}, 2")
            A(f"s_cbranch_scc1 L_rec_fok_{sfx}")
        if "mini2" in EXP:
            A(f"s_cmp_eq_u32 {s(S_STEP)}, 2")
            A(f"s_cbranch_scc0 L_rec_fwn_{sfx}")
            A(f"""v_lshrrev_b32 v117, 4, {v(V_L16)}
            v_and_b32 v117, 3, v117
            s_lshl_b32 {s(S_T0)}, {s(S_H)}, 2
            v_add_u32 v117, {s(S_T0)}, v117
            v_lshlrev_b32 v117, 7, v117
            v_add_u32 v117, {FL_MINI+64}, v117
            s_mov_b32 {s(S_SPIN)}, 0""")
            A.label(f"L_rec_fm_{sfx}")
            A(f"global_load_dword v118, v117, {s(S_FLB,2)} sc1")
            spin_guard(A)
            A(f"""s_waitcnt vmcnt(0)
            v_cmp_ne_u32 vcc, 1, v118
            s_cbranch_vccnz L_rec_fm_{sfx}
            s_branch L_rec_fok_{sfx}""")
            A.label(f"L_rec_fwn_{sfx}")
        flag_wait(A, f"L_rec_fw_{sfx}", 117)
        A.label(f"L_rec_fok_{sfx}")
    A.label(f"L_rec_acc_{sfx}")
    if stamps and "rt" in EXP:
        A("s_waitcnt lgkmcnt(0)")
        if k4 == 0:
            A(f"s_cmp_eq_u32 {s(S_STEP)}, 40")
            A(f"s_cbranch_scc0 L_rec_join_{sfx}")
            for k in range(NST): A(f"s_mov_b32 s{90+k}, s{70+2*k}")
    elif stamps:
        A("s_waitcnt lgkmcnt(0)")
        for k in range(NST - 1):
            A(f"s_sub_u32 s68, s{72+2*k}, s{70 if 'nocomm' in EXP else 70+2*k}")
            A(f"s_add_u32 s{90+k}, s{90+k}, s68")
        if k4 == 3:
            A(f"s_cmp_eq_u32 {s(S_STEP)}, 7")
            A(f"s_cbranch_scc0 L_rec_join_{sfx}")
            for k in range(NST): A(f"s_mov_b32 s{90+k}, 0")
    A.label(f"L_rec_join_{sfx}")
    A(f"s_add_u32 {s(S_STEP)}, {s(S_STEP)}, 1")
    def ool():
        for b in oolq: b()
        A.label(f"L_rec_fb_{sfx}")
        A(f"""v_max3_f32 v{m}, v{xs[0]}, v{xs[1]}, v{xs[2]}
        v_max3_f32 v{t1}, v{xs[3]}, v{xs[4]}, v{xs[5]}
        v_max3_f32 v{m}, v{m}, v{xs[6]}, v{xs[7]}
        v_max3_f32 v{m}, v{m}, v{SM+2}, v{SM+3}
        v_max_f32 v{m}, v{m}, v{t1}
        v_mov_b32 v{t1}, v{m}
        v_permlane16_swap_b32 v{m}, v{t1}
        v_max_f32 v{m}, v{m}, v{t1}
        v_mov_b32 v{t1}, v{m}
        v_permlane32_swap_b32 v{m}, v{t1}
        v_max_f32 v{m}, v{m}, v{t1}""")
        for r in xs + [SM + 2, SM + 3]: A(f"v_sub_f32 v{r}, v{r}, v{m}")
        for x in e0 + e1 + e2 + e3 + pm[2:]: A(x)
        A("s_nop 1")
        A(f"s_branch L_rec_fbret_{sfx}")
    return ool

def gen_loop(A, dbg=False, timing=False, stamps=False, n_init=0):
    gen_preloop(A, timing, stamps, n_init)
    A(f"s_cmp_eq_u32 {s(S_MODE)}, 0")
    A("s_cbranch_scc0 L_rec_step_s0")
    for mode in (FASTST, " sc1"):
        if PRM.get("al", 0):
            if mode != " sc1": A("s_branch L_rec_step_f0")
            A.lines.append(".p2align 6")
            for _ in range(PRM["al"] - 1): A("s_nop 0")
        n0 = len(A.lines)
        ools = [gen_step(A, k4, mode, dbg, stamps) for k4 in range(4)]
        import re as _re
        pats = {"x_st": r"global_store_dwordx4 v6,", "x_kv": r"global_store_dwordx4 v9,|global_store_dword v7,", "x_wo": r"ds_read_b128 .*, v11 ",
                "x_bar": r"s_barrier", "x_exp": r"v_exp_f32", "x_z": r"v_mfma_f32_32x32x8|v_mov_b64", "x_kx": r"ds_read_b128 .*, v0 offset:(8|9|1[0-9]|2[0-3])\d\d\d$",
                "x_tr": r"ds_read_b64_tr", "x_add": r"v_add_f32", "x_cvt": r"v_cvt_pk", "x_smf": r"v_smfmac", "x_mf": r"v_mfma_f32_16x16", "x_dsw": r"ds_write"}
        for k, p in pats.items():
            if k in EXP: A.lines[n0:] = [l for l in A.lines[n0:] if not _re.search(p, l)]
        A(f"s_branch L_rec_step_{'s' if mode == ' sc1' else 'f'}0")
        for o in ools: o()
    A.label("L_rec_last")
    M = lambda t: v(V_M + 4 * t, 4)
    smf = lambda acc, T, t, W: f"v_smfmac_f32_16x16x64_bf16 {v(acc+4*T,4)}, {M(t)}, {W(T,t)}, {v(V_IDX)}"
    A("s_waitcnt lgkmcnt(0)")
    for k, (t, T) in enumerate(((0, 0), (0, 1), (1, 0), (1, 1))): A(smf(V_AK, T, t, WK).replace(EARLY[k], v(EARLY_STG[k], 8)))
    A("s_barrier")
    for t in range(2, 8): A(f"ds_read_b128 {M(t)}, v{V_T+(t>>1)-1} offset:{L_MEM+(t&1)*1024}")
    A(f"global_store_dwordx4 {v(V_KVO)}, {v(112,4)}, {s(S_KVB,2)} sc1")
    for t in range(2):
        for T in range(2): A(smf(V_AV, T, t, WV))
    A(f"v_add_u32 {v(V_KVO)}, 0x20000, {v(V_KVO)}")
    for t in range(2, 8):
        A(f"s_waitcnt lgkmcnt({7-t})")
        for T in range(2): A(smf(V_AK, T, t, WK))
    def post(acc, d0, d1):
        return [f"v_add_f32 v{acc}, v{acc}, v{acc+2}", f"v_add_f32 v{acc+1}, v{acc+1}, v{acc+3}",
                f"v_add_f32 v{acc+4}, v{acc+4}, v{acc+6}", f"v_add_f32 v{acc+5}, v{acc+5}, v{acc+7}",
                f"v_cvt_pk_bf16_f32 v{d0}, v{acc}, v{acc+1}", f"v_cvt_pk_bf16_f32 v{d1}, v{acc+4}, v{acc+5}"]
    for t in range(2, 8):
        for T in range(2): A(smf(V_AV, T, t, WV))
        if t == 6:
            for x in post(V_AK, V_T + 2, V_T + 3): A(x)
            A(f"ds_write2_b32 {v(V_QKW)}, v{V_T+2}, v{V_T+3} offset0:1 offset1:129")
    for x in post(V_AV, V_X, V_X + 1): A(x)
    A(f"ds_write2_b32 {v(V_XW)}, v{V_X}, v{V_X+1} offset0:0 offset1:64")
    KP = 44
    kv_read(A, KP)
    A(f"""s_waitcnt lgkmcnt(0)
    v_min_u32 v{KP}, -2, v{KP}
    global_store_dwordx4 {v(V_KVO)}, {v(KP,4)}, {s(S_KVB,2)} sc1
    """)
    trace(A, 3, 56)
    if timing:
        A(f"""s_memtime s[68:69]
        s_waitcnt lgkmcnt(0)
        s_sub_u32 s68, s68, s66
        v_mov_b32 v44, s68
        s_lshl_b32 {s(S_T0)}, {s(S_H)}, 2
        s_add_u32 {s(S_T0)}, {s(S_T0)}, {WS_DBG + (3<<20)}
        v_mov_b32 v45, {s(S_T0)}
        global_store_dword v45, v44, {s(S_WS,2)}""")
    if stamps:
        A(f"""s_lshl_b32 {s(S_T0)}, {s(S_H)}, 2
        s_add_u32 {s(S_T0)}, {s(S_T0)}, {s(S_W)}
        s_lshl_b32 {s(S_T0)}, {s(S_T0)}, 6
        s_add_u32 {s(S_T0)}, {s(S_T0)}, {WS_DBG + (1<<20)}""")
        add64(A, S_SRC, S_WS, s(S_T0))
        for k in range(NST):
            A(f"v_mov_b32 v46, s{90+k}")
            A(f"global_store_dword {v(V_ZZ)}, v46, {s(S_SRC,2)} offset:{4*k}")
    A("s_branch L_end")

HEADER = """.amdgcn_target "amdgcn-amd-amdhsa--gfx950"
.text
.globl {name}
.p2align 8
.type {name},@function
{name}:
"""
FOOTER = """.section .rodata,"a"
.p2align 6
.amdhsa_kernel {name}
  .amdhsa_next_free_vgpr 512
  .amdhsa_next_free_sgpr 102
  .amdhsa_accum_offset 256
  .amdhsa_group_segment_fixed_size 0
  .amdhsa_kernarg_size 128
  .amdhsa_user_sgpr_count 2
  .amdhsa_user_sgpr_kernarg_segment_ptr 1
  .amdhsa_system_sgpr_workgroup_id_x 1
.end_amdhsa_kernel
"""

def gen_standalone(dbg=True, timing=True, mode=0, stamps=False):
    A = Asm(); TB = Tables()
    A(f"""
    s_cmp_ge_u32 s2, 256
    s_cbranch_scc1 L_end
    s_load_dwordx2 {s(S_MEM0,2)}, s[0:1], 8
    s_load_dwordx4 {s(S_WQ,4)}, s[0:1], 16
    s_load_dwordx4 {s(S_WV,4)}, s[0:1], 32
    s_load_dwordx2 {s(S_DBG,2)}, s[0:1], 112
    s_load_dwordx2 {s(S_WS,2)}, s[0:1], 120
    s_getreg_b32 s3, hwreg(HW_REG_XCC_ID)
    s_and_b32 s3, s3, 7
    s_waitcnt lgkmcnt(0)
    s_cmp_eq_u32 s3, 0
    s_cbranch_scc0 L_end
    v_mov_b32 v2, 0
    v_mov_b32 v3, 1
    v_cmp_eq_u32 vcc, 0, v0
    s_and_saveexec_b64 s[4:5], vcc
    s_cbranch_execz L_tk
    global_atomic_add v4, v2, v3, {s(S_DBG,2)} sc0
    s_waitcnt vmcnt(0)
    ds_write_b32 v2, v4
    s_waitcnt lgkmcnt(0)
    L_tk:
    s_mov_b64 exec, -1
    s_barrier
    ds_read_b32 v4, v2
    s_waitcnt lgkmcnt(0)
    v_readfirstlane_b32 {s(S_H)}, v4
    s_barrier
    s_cmp_ge_u32 {s(S_H)}, 32
    s_cbranch_scc1 L_end
    s_mov_b32 {s(S_MODE)}, {mode}
    """)
    gen_prologue(A, TB)
    gen_loop(A, dbg, timing, stamps)
    A.label("L_end")
    A("s_waitcnt vmcnt(0)")
    A("s_endpgm")
    name = "rec_kernel"
    return f"; @launch grid=(256,1,1) block=(256,1,1) lds={LDS_TOTAL}\n" + HEADER.format(name=name) + A.text() + TB.text() + FOOTER.format(name=name)

if __name__ == "__main__":
    open("rec.s", "w").write(gen_standalone())
```

```python
import sys, gen_rec, gen_main
hdr = open("gated_mix__memory_aug_recurrent_mem_tr__moe_arch_mod__prompt.s.ref").read().split("; @launch")[0]
P0 = dict(gen_rec.PRM); E0 = set(gen_rec.EXP)
for i, e in enumerate(sys.argv[1:]):
    ex = [] if e == "base" else e.split(",")
    gen_rec.EXP = E0 | set(x for x in ex if "=" not in x)
    gen_rec.PRM = dict(P0); gen_rec.PRM.update({x.split("=")[0]: int(x.split("=")[1]) for x in ex if "=" in x})
    open(f"var{i}.s", "w").write(hdr + gen_main.gen())
```
